```python
import torch

def _softmax(x, axis=-1):
    return torch.softmax(x, dim=axis)
def _gelu(x):
    return torch.nn.functional.gelu(x, approximate="tanh")
def _silu(x):
    return torch.nn.functional.silu(x)
def _sigmoid(x):
    return torch.sigmoid(x)
def _layernorm(x, axis=-1, eps=1e-5):
    m = x.mean(dim=axis, keepdim=True)
    v = x.var(dim=axis, keepdim=True, unbiased=False)
    return (x - m) / torch.sqrt(v + eps)
def _scatter_add(tgt, idx, src, axis=0):
    return tgt.clone().index_add_(axis, idx, src)
def _segment_sum(src, seg, n):
    out = torch.zeros((n,) + src.shape[1:], dtype=src.dtype)
    return out.index_add_(0, seg, src)
def _pad(x, pw):
    flat = tuple(v for pair in reversed(pw) for v in pair)
    return torch.nn.functional.pad(x, flat)

kernel_name = 'interleave_layers__sliding_local_dilated__glu_gated_bilinear__prompt'

def setup_inputs():

    _w = (lambda a: (lambda t: t.to(torch.bfloat16) if t.is_floating_point() else t)(torch.as_tensor(a)))
    def _A_setup():
        B, S, D = 1, 2048, 576
        return {
            "x": _w((lambda *s: torch.randn(*s, dtype=torch.bfloat16) * 0.05)(B, S, D)),
            "wqkv": _w((lambda *s: torch.randn(*s, dtype=torch.bfloat16) * 0.05)(D, 3 * D)),
            "wo": _w((lambda *s: torch.randn(*s, dtype=torch.bfloat16) * 0.05)(D, D)),
        }
    _A_in = _A_setup()

    def _B_setup():
        B, S, D, F = 1, 2048, 576, 4608
        return {
            "x": _w((lambda *s: torch.randn(*s, dtype=torch.bfloat16) * 0.05)(B, S, D)),
            "w_gate": _w((lambda *s: torch.randn(*s, dtype=torch.bfloat16) * 0.8)(D, F) * (D ** -0.5)),
            "w_up": _w((lambda *s: torch.randn(*s, dtype=torch.bfloat16) * 0.8)(D, F) * (D ** -0.5)),
            "w_down": _w((lambda *s: torch.randn(*s, dtype=torch.bfloat16) * 0.8)(F, D) * (F ** -0.5)),
        }
    _B_in = _B_setup()

    return {
        "A_x": _A_in["x"],
        "A_wqkv": _A_in["wqkv"],
        "A_wo": _A_in["wo"],
        "B_x": _B_in["x"],
        "B_w_gate": _B_in["w_gate"],
        "B_w_up": _B_in["w_up"],
        "B_w_down": _B_in["w_down"],
    }

def reference(A_x, A_wqkv, A_wo, B_x, B_w_gate, B_w_up, B_w_down):
    def _A_ref(x, wqkv, wo):
        B, S, D = x.shape
        H = 32; Dh = D // H
        W, dil = 8, 2
        qkv = (lambda x, *d: x.permute(*d))((x @ wqkv).reshape(B, S, 3, H, Dh), 2, 0, 3, 1, 4)
        q, k, v = qkv[0], qkv[1], qkv[2]
        scale = Dh ** -0.5
        pos = torch.arange(S)
        off = torch.arange(W) * dil
        idx = pos[:, None] - off[None, :]
        mask = idx >= 0
        idx_c = torch.where(mask, idx, 0).reshape(-1)
        kg = k[:, :, idx_c, :].reshape(B, H, S, W, Dh)
        vg = v[:, :, idx_c, :].reshape(B, H, S, W, Dh)
        logits = torch.einsum("bhsd,bhswd->bhsw", q, kg) * scale
        logits = torch.where(mask[None, None, :, :], logits, -1e9)
        attn = _softmax(logits, axis=-1)
        o = torch.einsum("bhsw,bhswd->bhsd", attn, vg)
        return (lambda x, *d: x.permute(*d))(o, 0, 2, 1, 3).reshape(B, S, D) @ wo

    def _B_ref(x, w_gate, w_up, w_down):
        g = torch.einsum("bsd,df->bsf", x, w_gate)
        u = torch.einsum("bsd,df->bsf", x, w_up)
        h = g * u
        return torch.einsum("bsf,fd->bsd", h, w_down)

    x = A_x
    x = x + _A_ref(_layernorm(x, axis=-1), A_wqkv, A_wo)
    x = x + _B_ref(_layernorm(x, axis=-1), B_w_gate, B_w_up, B_w_down)
    x = x + _A_ref(_layernorm(x, axis=-1), A_wqkv, A_wo)
    x = x + _B_ref(_layernorm(x, axis=-1), B_w_gate, B_w_up, B_w_down)
    return x
```

```python
import math
from asm import *
from layout import *

SXA, SWQ, SRS, SOF = 4, 8, 12, 16
SG, SU, SD = 20, 24, 28
S_W, S_R, S_HP, S_M0, S_SO = 32, 33, 34, 35, 40
S_T0, S_T1, S_T2 = 36, 37, 38
S_K = 44
S_MASK = 60
S_PLO, S_PHI, S_ONE = 74, 75, 76
STG = WQ_SLICE
PITCH = 240
LDS_BYTES = STG + 144 * PITCH
V_LIN, V_LIN2, V_LH, V_LH2 = 1, 2, 3, 4
V_XH, V_XO, V_DW = 5, 6, 7
V_RS = 8
V_SH, V_SH4, V_SO = 11, 12, 13
V_KV, V_Q, V_O, V_O8 = 14, 15, 16, 17
V_NEG = 18
V_FR = 32
V_ACC = 96


def xa(i, sx):
    return a(72 * i + 4 * sx, 4)


def setup(p, warm=False, nc=2):
    p += [sload(54, 2, K_WS)]
    if warm:
        p += [sload(80, 4, K_WG), sload(84, 2, K_WD)]
    L, M, Q, T, T2 = "v20", "v21", "v22", "v23", "v24"
    p += [valu("v_lshrrev_b32", T, 6, "v0"), valu("v_and_b32", L, 63, "v0"),
          valu("v_readfirstlane_b32", s(S_W), T),
          valu("v_and_b32", M, 15, L), valu("v_lshrrev_b32", Q, 4, L),
          valu("v_lshlrev_b32", v(V_LIN), 4, L), valu("v_add_u32", v(V_LIN2), 65536, v(V_LIN)),
          salu("s_and_b32", s(S_R), "s2", 7), salu("s_lshl_b32", s(S_R), s(S_R), 1), salu("s_lshr_b32", s(S_T0), "s2", 7),
          salu("s_add_u32", s(S_R), s(S_R), s(S_T0)), salu("s_bfe_u32", s(S_HP), "s2", (4 << 16) | 3),
          salu("s_lshl_b32", s(S_M0), s(S_W), 12),
          salu("s_lshl_b32", s(S_T0), s(S_W), 10), valu("v_add_u32", v(V_LH), s(S_T0), v(V_LIN)),
          valu("v_add_u32", v(V_LH2), 65536, v(V_LH)),
          salu("s_mul_i32", s(S_T0), s(S_HP), WQ_SLICE), salu("s_add_u32", s(S_T0), s(S_T0), s(S_M0)),
          valu("v_add_u32", v(V_DW), s(S_T0), v(V_LIN)),
          salu("s_lshl_b32", s(S_T0), s(S_R), 3), salu("s_max_u32", s(S_T1), s(S_T0), 1), salu("s_sub_u32", s(S_T1), s(S_T1), 1),
          salu("s_lshl_b32", s(S_T2), s(S_W), 1), salu("s_add_u32", s(S_T0), s(S_T0), s(S_T2)),
          valu("v_lshlrev_b32", T, 2, M), salu("s_lshl_b32", s(S_T2), s(S_T1), 6), valu("v_add_u32", v(V_RS), s(S_T2), T),
          salu("s_lshl_b32", s(S_T2), s(S_T0), 6), valu("v_add_u32", v(V_RS + 1), s(S_T2), T),
          salu("s_mul_i32", s(S_T1), s(S_T1), MT), valu("v_add_u32", v(V_XH), s(S_T1), v(V_LIN)),
          salu("s_mul_i32", s(S_T0), s(S_T0), MT), valu("v_add_u32", v(V_XO), s(S_T0), v(V_LIN))]
    for i in range(5):
        p += [salu("s_mov_b32", s(S_K + i), 4096 * i), salu("s_mov_b32", s(S_K + 5 + i), MT + 4096 * i)]
    p.append(wait(lgkm_all=True))
    srd_off(p, SWQ, "s54", "s55", WS_WQ, 16 * WQ_SLICE)
    srd_off(p, SXA, "s54", "s55", WS_XA, ACT)
    srd_off(p, SRS, "s54", "s55", WS_RSTD, S * 4)
    late = []
    srd_off(late, SOF, "s54", "s55", WS_OF, ACT)
    late += [valu("v_mul_u32_u24", T, PITCH, M), valu("v_lshl_add_u32", T, Q, 3, T),
             valu("v_add_u32", v(V_SH4), STG + 32 * 4, T),
             salu("s_lshl_b32", s(S_T0), s(S_W), 5), salu("s_add_u32", s(S_T1), s(S_T0), STG), valu("v_add_u32", v(V_SH), s(S_T1), T),
             salu("s_mul_i32", s(S_T0), s(S_T0), PITCH), salu("s_add_u32", s(S_T0), s(S_T0), STG + 16 * PITCH),
             valu("v_add_u32", v(V_SO), s(S_T0), T)]
    HH = s(39)
    late += [salu("s_and_b32", HH, s(S_W), 1), salu("s_lshr_b32", s(S_T0), s(S_W), 1), salu("s_lshl_b32", s(S_T0), s(S_T0), 6),
             valu("v_add_u32", T, s(S_T0), L),
             valu("v_mul_u32_u24", T2, PITCH, T),
             salu("s_mul_i32", s(S_T1), HH, 80), salu("s_add_u32", s(S_T1), s(S_T1), STG + 2 * PITCH), valu("v_add_u32", v(V_KV), s(S_T1), T2),
             salu("s_mul_i32", s(S_T1), HH, 36), salu("s_add_u32", s(S_T1), s(S_T1), STG + 16 * PITCH + 152), valu("v_add_u32", v(V_Q), s(S_T1), T2),
             salu("s_lshl_b32", s(S_T1), s(S_R), 7), valu("v_add_u32", T, s(S_T1), T)]
    for w in range(1, 8):
        late.append(vcmp("v_cmp_le_u32", s(S_MASK + 2 * (w - 1), 2), 2 * w, T))
    late += [valu("v_lshrrev_b32", T2, 4, T), valu("v_mul_u32_u24", T2, MT, T2), valu("v_lshl_add_u32", T2, M, 4, T2),
             salu("s_lshl_b32", s(S_T1), s(S_HP), 1), salu("s_add_u32", s(S_T1), s(S_T1), HH), salu("s_lshl_b32", s(S_T1), s(S_T1), 9),
             valu("v_add_u32", v(V_O), s(S_T1), T2),
             salu("s_lshr_b32", s(S_T1), s(S_HP), 1), salu("s_add_u32", s(S_T1), s(S_T1), 64), salu("s_lshl_b32", s(S_T1), s(S_T1), 8),
             salu("s_and_b32", s(S_T2), s(S_HP), 1), salu("s_lshl_b32", s(S_T2), s(S_T2), 3), salu("s_add_u32", s(S_T1), s(S_T1), s(S_T2)),
             salu("s_lshl_b32", s(S_T2), HH, 2), salu("s_add_u32", s(S_T1), s(S_T1), s(S_T2)),
             valu("v_add_u32", v(V_O8), s(S_T1), T2),
             valu("v_mov_b32", v(V_NEG), f32(-1e9 * math.log2(math.e))),
             salu("s_mov_b32", s(S_PLO), "0x05040100"), salu("s_mov_b32", s(S_PHI), "0x07060302"), salu("s_mov_b32", s(S_ONE), "0x3f803f80")]
    if warm:
        srd(late, SG, "s80", "s81", D * F * 2); srd(late, SU, "s82", "s83", D * F * 2); srd(late, SD, "s84", "s85", D * F * 2)
        lg = nc.bit_length() - 1
        late += [salu("s_and_b32", s(S_T0), "s2", 7), salu("s_and_b32", s(S_T1), s(S_T0), 16 // nc - 1),
                 salu("s_lshl_b32", s(S_T1), s(S_T1), lg - 1), salu("s_lshr_b32", s(S_T0), s(S_T0), 4 - lg),
                 salu("s_add_u32", s(S_T0), s(S_T0), s(S_T1)),
                 salu("s_lshr_b32", s(S_T1), "s2", 3),
                 valu("v_mul_u32_u24", T, 7282, "v0"), valu("v_lshrrev_b32", T, 16, T),
                 valu("v_mul_u32_u24", T2, 9, T), valu("v_sub_u32", T2, "v0", T2),
                 salu("s_mul_i32", s(S_T2), s(S_T1), 18), valu("v_add_u32", T, s(S_T2), T),
                 valu("v_mul_u32_u24", T, 9216, T), valu("v_lshl_add_u32", T, T2, 7, T),
                 salu("s_mul_i32", s(S_T2), s(S_T0), 1152), valu("v_add_u32", "v25", s(S_T2), T),
                 salu("s_mul_i32", s(S_T2), s(S_T0), 576 * 1152), salu("s_mul_i32", s(S_T1), s(S_T1), 162 * 128),
                 salu("s_add_u32", s(S_T2), s(S_T2), s(S_T1)), valu("v_lshl_add_u32", "v26", "v0", 7, s(S_T2)),
                 valu("v_mov_b32", T, OOB), vcmp("v_cmp_gt_u32", "vcc", 162, "v0"), cnd("v25", T, "v25"), cnd("v26", T, "v26")]
    return late


def body(p, late, warm=False, la=3, st_flags=""):
    def rnd(rho):
        out = [salu("s_add_u32", "m0", s(S_M0), 16384 * rho), salu("s_mov_b32", s(S_SO), 16384 * rho)]
        out += [dma(v(V_DW), s(SWQ, 4), s(S_SO), off=1024 * i, tag=("w", rho)) for i in range(4)]
        return out

    def xl(sx):
        k, o = sx >> 2, 1024 * (sx & 3)
        return [bload("buffer_load_dwordx4", xa(1, sx), v(V_XO), s(SXA, 4), s(S_K + k), off=o),
                bload("buffer_load_dwordx4", xa(2, sx), v(V_XO), s(SXA, 4), s(S_K + 5 + k), off=o),
                bload("buffer_load_dwordx4", xa(0, sx), v(V_XH), s(SXA, 4), s(S_K + k), off=o)]

    def fr(sx, n):
        return V_FR + 32 * (sx & 1) + 4 * n

    def reads(sx):
        out = []
        for n in range(8):
            off = (7 * sx + (n if n < 7 else 0)) * 1024
            base = (V_LIN, V_LIN2) if n < 7 else (V_LH, V_LH2)
            out.append(dsr("ds_read_b128", v(fr(sx, n), 4), v(base[off >> 16]), off & 65535))
        return out

    rneed = lambda sx: (7 * sx + 6) // 16
    acc = lambda t, n: V_ACC + 28 * t + 4 * n
    HA, HB_ = V_ACC + 56, V_ACC + 60
    issued_r, issued_x = 0, 0
    while issued_x < la:
        while issued_r <= rneed(issued_x + 1):
            p += rnd(issued_r); issued_r += 1
        p += xl(issued_x); issued_x += 1
    p += [bload("buffer_load_dword", v(V_RS + 2), v(V_RS + 1), s(SRS, 4), off=64),
          bload("buffer_load_dword", v(V_RS), v(V_RS), s(SRS, 4)),
          bload("buffer_load_dword", v(V_RS + 1), v(V_RS + 1), s(SRS, 4))]
    p += late
    p += [wait(vm=[("w", 0)]), barrier()]
    p += reads(0)
    have = 0
    for sx in range(18):
        fill = []
        if sx + 1 < 18:
            fill += reads(sx + 1)
        ld = []
        if issued_x < 18:
            while issued_r < 8 and issued_r <= rneed(min(issued_x + 1, 17)):
                ld += rnd(issued_r); issued_r += 1
            ld += xl(issued_x); issued_x += 1
        elif warm and sx == 16:
            ld += [bload("buffer_load_dword", "v27", "v25", s(SG, 4)), bload("buffer_load_dword", "v28", "v25", s(SU, 4)),
                   bload("buffer_load_dword", "v29", "v26", s(SD, 4))]
        ms = []
        first = sx == 0
        for n in range(7):
            for t in range(2):
                c = v(acc(t, n), 4)
                ms.append(mfma16(c, v(fr(sx, n), 4), xa(1 + t, sx), "0" if first else c))
        ms.append(mfma16(v(HA, 4), v(fr(sx, 7), 4), xa(0, sx), "0" if first else v(HA, 4)))
        ms.append(mfma16(v(HB_, 4), v(fr(sx, 4), 4), xa(0, sx), "0" if first else v(HB_, 4)))
        for k, m in enumerate(ms):
            p.append(m)
            if k == 0 and sx + 1 < 18 and rneed(sx + 1) > have:
                have = rneed(sx + 1)
                p += [wait(vm=[("w", have)]), barrier()]
            elif fill:
                p.append(fill.pop(0))
            elif ld:
                p.append(ld.pop(0))
                if ld and ld[0].kind == "salu": p.append(ld.pop(0))
        p += fill + ld
    tiles = [(HA, V_RS, V_SH, 0), (HB_, V_RS, V_SH4, 0)] + \
            [(acc(t, n), V_RS + 1 + t, V_SO, 16 * PITCH * t + 32 * n) for n in range(7) for t in range(2)]
    tiles = tiles[2:] + tiles[:2]
    for k, (c, rs, ad, off) in enumerate(tiles):
        tt = V_FR + 2 * (k & 3)
        for e in range(4):
            p.append(valu("v_mul_f32", v(c + e), v(c + e), v(rs)))
        p += [valu("v_cvt_pk_bf16_f32", v(tt), v(c), v(c + 1)), valu("v_cvt_pk_bf16_f32", v(tt + 1), v(c + 2), v(c + 3)),
              dsw("ds_write_b64", v(ad), v(tt, 2), off)]
    p += [wait(lgkm_all=True), barrier()]
    KV, Qr, LG, PP, O, TM = 32, 192, 204, 212, 216, 236
    for i in range(4):
        p.append(Ins(f"ds_read2_b32 {v(Qr + 2 * i, 2)}, {v(V_Q)} offset0:{2 * i} offset1:{2 * i + 1}", "dsr", rd=[v(V_Q)], wr=[v(Qr + 2 * i, 2)]))
    p.append(dsr("ds_read_b32", v(Qr + 8), v(V_Q), 32))

    def kvread(w, pc):
        off = 2 * PITCH * (7 - w) + 16 * pc
        if pc < 4:
            return dsr("ds_read_b128", v(KV + 20 * w + 4 * pc, 4), v(V_KV), off)
        return dsr("ds_read_b64", v(KV + 20 * w + 16, 2), v(V_KV), off)
    for w in range(8):
        p += [kvread(w, pc) for pc in range(3)]
    vreads = [kvread(w, pc) for w in range(8) for pc in (3, 4)]
    for half in range(2):
        for i in range(9):
            for w in range(4 * half, 4 * half + 4):
                if i == 0:
                    p.append(valu("v_dot2_f32_bf16", v(LG + w), v(Qr), v(KV + 20 * w), 0))
                else:
                    p.append(valu("v_dot2_f32_bf16", v(LG + w), v(Qr + i), v(KV + 20 * w + i), v(LG + w)))
            if half == 0 and vreads:
                p += [vreads.pop(0), vreads.pop(0)]
    assert not vreads
    cs = f32(DH ** -0.5 * math.log2(math.e))
    for w in range(8):
        p.append(valu("v_mul_f32", v(LG + w), cs, v(LG + w)))
    for w in range(1, 8):
        p.append(cnd(v(LG + w), v(V_NEG), v(LG + w), s(S_MASK + 2 * (w - 1), 2)))
    MX = v(TM + 8)
    p += [valu("v_max3_f32", MX, v(LG), v(LG + 1), v(LG + 2)), valu("v_max3_f32", v(TM + 9), v(LG + 3), v(LG + 4), v(LG + 5)),
          valu("v_max3_f32", MX, MX, v(LG + 6), v(LG + 7)), valu("v_max_f32", MX, MX, v(TM + 9))]
    for w in range(8):
        p.append(valu("v_sub_f32", v(LG + w), v(LG + w), MX))
    for w in range(8):
        p.append(valu("v_exp_f32", v(LG + w), v(LG + w)))
    for j in range(4):
        p.append(valu("v_cvt_pk_bf16_f32", v(PP + j), v(LG + 2 * j), v(LG + 2 * j + 1)))
    SUM = v(TM + 10)
    p.append(valu("v_dot2_f32_bf16", SUM, v(PP), s(S_ONE), 0))
    for j in range(1, 4):
        p.append(valu("v_dot2_f32_bf16", SUM, v(PP + j), s(S_ONE), SUM))
    k = 0
    pend = []
    for j in range(4):
        for i in range(9):
            x0, x1 = v(KV + 20 * (2 * j) + 9 + i), v(KV + 20 * (2 * j + 1) + 9 + i)
            t = TM + 2 * (k & 3); k += 1
            p += [valu("v_perm_b32", v(t), x1, x0, s(S_PLO)), valu("v_perm_b32", v(t + 1), x1, x0, s(S_PHI))]
            p += pend
            pend = [valu("v_dot2_f32_bf16", v(O + 2 * i + e), v(PP + j), v(t + e), 0 if j == 0 else v(O + 2 * i + e)) for e in range(2)]
            if j == 1 and i == 0:
                p.append(valu("v_rcp_f32", SUM, SUM))
    p += pend
    for d in range(18):
        p.append(valu("v_mul_f32", v(O + d), v(O + d), SUM))
    for i in range(9):
        p.append(valu("v_cvt_pk_bf16_f32", v(Qr + i), v(O + 2 * i), v(O + 2 * i + 1)))
    p += [bstore("buffer_store_dwordx4", v(Qr, 4), v(V_O), s(SOF, 4), flags=st_flags),
          bstore("buffer_store_dwordx4", v(Qr + 4, 4), v(V_O), s(SOF, 4), off=256, flags=st_flags),
          bstore("buffer_store_dword", v(Qr + 8), v(V_O8), s(SOF, 4), flags=st_flags)]
```

```python
from asm import *
from layout import *

SWO, SOF, SXA, SXB, SSS, SDM = 4, 8, 12, 16, 20, 24
S_W, S_RB, S_CB, S_M0, S_SO = 32, 33, 34, 35, 40
S_T0, S_T1, S_T2, S_T3 = 36, 37, 38, 39
S_K = 44
S_F0, S_F1 = 56, 57
DMB = 2 * MT
LDS_BYTES = DMB + 1280
V_LIN, V_L3 = 1, 2
V_WP, V_W3, V_DO = 3, 4, 5
V_XP, V_X3 = 6, 7
V_DMW, V_DMR, V_DMR3, V_DMG, V_SSG = 8, 9, 10, 11, 12
V_BF = 32
V_ACC = 64
V_RES = 84


def wa(i, sx):
    return a(72 * i + 4 * sx, 4)


def setup(p):
    p += [sload(54, 2, K_WS)]
    L, M, T, T2, OB = "v20", "v21", "v23", "v24", "v25"
    PB, ST, W1 = s(58), s(59), s(60)
    p += [valu("v_lshrrev_b32", T, 6, "v0"), valu("v_and_b32", L, 63, "v0"),
          valu("v_readfirstlane_b32", s(S_W), T),
          valu("v_and_b32", M, 15, L), valu("v_lshlrev_b32", v(V_LIN), 4, L), valu("v_mov_b32", OB, OOB),
          salu("s_and_b32", s(S_RB), "s2", 7), salu("s_lshl_b32", s(S_RB), s(S_RB), 3), salu("s_lshr_b32", s(S_T0), "s2", 5),
          salu("s_add_u32", s(S_RB), s(S_RB), s(S_T0)), salu("s_bfe_u32", s(S_CB), "s2", (2 << 16) | 3),
          salu("s_mul_i32", s(S_M0), s(S_W), 9216), salu("s_and_b32", W1, s(S_W), 1),
          salu("s_mul_i32", s(S_T3), s(S_RB), 2 * MT),
          salu("s_add_u32", s(S_T0), s(S_T3), s(S_M0)), valu("v_add_u32", v(V_DO), s(S_T0), v(V_LIN)),
          salu("s_mul_i32", s(S_T0), s(S_CB), 9), salu("s_and_b32", s(S_T1), s(S_CB), 1),
          salu("s_add_u32", PB, s(S_T0), s(S_T1)), salu("s_xor_b32", s(S_T1), s(S_T1), 1), salu("s_lshl_b32", s(S_T1), s(S_T1), 3),
          salu("s_add_u32", ST, s(S_T0), s(S_T1)),
          salu("s_lshl_b32", s(S_T0), s(S_W), 1), salu("s_add_u32", PB, PB, s(S_T0)),
          salu("s_mul_i32", s(S_T0), PB, MT), valu("v_add_u32", v(V_WP), s(S_T0), v(V_LIN)),
          scmp("s_cmp_lt_u32", s(S_W), 2), salu("s_cselect_b32", s(S_T0), ST, 36), salu("s_cselect_b32", s(S_T2), 0, OOB),
          salu("s_mul_i32", s(S_T0), s(S_T0), MT), valu("v_add_u32", v(V_W3), s(S_T0), v(V_LIN)),
          salu("s_lshl_b32", s(S_T0), PB, 9), salu("s_add_u32", s(S_T0), s(S_T0), s(S_T3)), valu("v_add_u32", v(V_XP), s(S_T0), v(V_LIN)),
          salu("s_lshr_b32", s(S_T0), ST, 1), salu("s_lshl_b32", s(S_T0), s(S_T0), 10), salu("s_and_b32", s(S_T1), ST, 1),
          salu("s_lshl_b32", s(S_T1), s(S_T1), 3), salu("s_add_u32", s(S_T0), s(S_T0), s(S_T1)),
          salu("s_mul_i32", s(S_T1), W1, MT), valu("v_add_u32", v(V_L3), s(S_T1), v(V_LIN)),
          salu("s_add_u32", s(S_T0), s(S_T0), s(S_T3)), valu("v_add_u32", v(V_X3), s(S_T0), v(V_L3)),
          valu("v_or_b32", v(V_X3), s(S_T2), v(V_X3))]
    for i in range(5):
        p += [salu("s_mov_b32", s(S_K + i), 4096 * i), salu("s_mov_b32", s(S_K + 5 + i), MT + 4096 * i)]
    p.append(wait(lgkm_all=True))
    srd_off(p, SOF, "s54", "s55", WS_OF, ACT)
    srd_off(p, SWO, "s54", "s55", WS_WO, 37 * MT)
    srd_off(p, SXA, "s54", "s55", WS_XA, ACT)
    late = []
    srd_off(late, SXB, "s54", "s55", WS_XB, ACT)
    srd_off(late, SSS, "s54", "s55", WS_SS, S * 64)
    srd_off(late, SDM, "s54", "s55", WS_DM, S * 4)
    late += [valu("v_lshlrev_b32", T, 2, M), valu("v_add_u32", v(V_DMR), DMB, T),
             salu("s_lshl_b32", s(S_T0), W1, 6), valu("v_add_u32", v(V_DMR3), s(S_T0), v(V_DMR)),
             valu("v_lshlrev_b32", T2, 2, "v0"), valu("v_add_u32", T2, DMB + 128, T2),
             valu("v_and_b32", T, 0xb0, "v0"), vcmp("v_cmp_eq_u32", "vcc", 0x80, T), cnd(v(V_DMW), T2, v(V_DMR3)),
             salu("s_lshl_b32", s(S_T0), s(S_RB), 7), salu("s_sub_u32", s(S_T0), s(S_T0), DMB),
             valu("v_add_u32", T2, s(S_T0), v(V_DMR3)), cnd(v(V_DMG), OB, T2),
             scmp("s_cmp_eq_u32", s(S_CB), 0), salu("s_cselect_b32", s(S_T1), 0, OOB), valu("v_or_b32", v(V_DMG), s(S_T1), v(V_DMG)),
             valu("v_lshrrev_b32", T, 5, L), valu("v_lshl_add_u32", T, T, 4, M), valu("v_lshlrev_b32", T, 6, T),
             salu("s_lshl_b32", s(S_T0), s(S_RB), 11), salu("s_lshl_b32", s(S_T1), s(S_CB), 4), salu("s_add_u32", s(S_T0), s(S_T0), s(S_T1)),
             salu("s_lshl_b32", s(S_T1), s(S_W), 2), salu("s_add_u32", s(S_T0), s(S_T0), s(S_T1)),
             valu("v_add_u32", v(V_SSG), s(S_T0), T),
             scmp("s_cmp_eq_u32", s(S_W), 0), salu("s_cselect_b32", s(S_F0), "1.0", 0),
             scmp("s_cmp_eq_u32", s(S_W), 1), salu("s_cselect_b32", s(S_F1), "1.0", 0)]
    return late


def body(p, late, la=4, st_flags=""):
    for g in range(3):
        p += [salu("s_add_u32", "m0", s(S_M0), 4096 * g)]
        p += [dma(v(V_DO), s(SOF, 4), s(S_K + g), off=1024 * i, tag="o") for i in range(4 if g < 2 else 1)]

    def wl(sx):
        k, o = sx >> 2, 1024 * (sx & 3)
        return [bload("buffer_load_dwordx4", wa(0, sx), v(V_WP), s(SWO, 4), s(S_K + k), off=o),
                bload("buffer_load_dwordx4", wa(1, sx), v(V_WP), s(SWO, 4), s(S_K + 5 + k), off=o),
                bload("buffer_load_dwordx4", wa(2, sx), v(V_W3), s(SWO, 4), s(S_K + k), off=o)]

    def bf(sx, i):
        return v(V_BF + 12 * (sx & 1) + 4 * i, 4)

    def reads(sx):
        return [dsr("ds_read_b128", bf(sx, 0), v(V_LIN), 1024 * sx), dsr("ds_read_b128", bf(sx, 1), v(V_LIN), MT + 1024 * sx),
                dsr("ds_read_b128", bf(sx, 2), v(V_L3), 1024 * sx)]
    for sx in range(la):
        p += wl(sx)
    p += late
    p += [wait(vm=["o"]), barrier()]
    p += reads(0)
    acc = [v(V_ACC + 4 * i, 4) for i in range(5)]
    for sx in range(18):
        fill = (reads(sx + 1) if sx + 1 < 18 else [])
        ld = wl(sx + la) if sx + la < 18 else []
        if sx + la == 18:
            ld = [bload("buffer_load_dwordx4", v(V_RES, 4), v(V_XP), s(SXA, 4)),
                  bload("buffer_load_dwordx4", v(V_RES + 4, 4), v(V_XP), s(SXA, 4), s(S_K + 5)),
                  bload("buffer_load_dwordx2", v(V_RES + 8, 2), v(V_X3), s(SXA, 4))]
        ms = [(4, 2, 2), (0, 0, 0), (1, 0, 1), (2, 1, 0), (3, 1, 1)]
        for k, (c, wi, bi) in enumerate(ms):
            p.append(mfma16(acc[c], wa(wi, sx), bf(sx, bi), "0" if sx == 0 else acc[c]))
            if fill: p.append(fill.pop(0))
            if ld and k >= 2: p.append(ld.pop(0))
    T = "v26"
    p += [valu("v_add_f32", T, v(V_ACC + 16), v(V_ACC + 17)), dsw("ds_write_b32", v(V_DMW), T, tag="dm"),
          bstore("buffer_store_dword", T, v(V_DMG), s(SDM, 4), flags=st_flags)]
    U = 32
    src = {0: V_RES, 2: V_RES + 2, 1: V_RES + 4, 3: V_RES + 6, 4: V_RES + 8}
    p += [wait(lgkm=["dm"]), barrier(),
          dsr("ds_read_b32", "v27", v(V_DMR)), dsr("ds_read_b32", "v28", v(V_DMR), 64), dsr("ds_read_b32", "v29", v(V_DMR3))]
    for c in range(5):
        for d in range(2):
            r = v(src[c] + d); e = V_ACC + 4 * c + 2 * d
            p += [valu("v_lshlrev_b32", v(U), 16, r), valu("v_and_b32", v(U + 1), "0xffff0000", r),
                  valu("v_add_f32", v(e), v(e), v(U)), valu("v_add_f32", v(e + 1), v(e + 1), v(U + 1))]
    dm = {0: "v27", 2: "v27", 1: "v28", 3: "v28", 4: "v29"}
    for c in range(5):
        for e in range(4):
            p.append(valu("v_sub_f32", v(V_ACC + 4 * c + e), v(V_ACC + 4 * c + e), dm[c]))
    dst = {0: 36, 2: 38, 1: 40, 3: 42, 4: 44}
    for c in (0, 2, 1, 3, 4):
        for d in range(2):
            e = V_ACC + 4 * c + 2 * d
            p.append(valu("v_cvt_pk_bf16_f32", v(dst[c] + d), v(e), v(e + 1)))
    p += [bstore("buffer_store_dwordx4", v(36, 4), v(V_XP), s(SXB, 4), flags=st_flags),
          bstore("buffer_store_dwordx4", v(40, 4), v(V_XP), s(SXB, 4), s(S_K + 5), flags=st_flags),
          bstore("buffer_store_dwordx2", v(44, 2), v(V_X3), s(SXB, 4), flags=st_flags)]
    ss = {0: "v48", 2: "v48", 1: "v49", 3: "v49", 4: "v50"}
    seen = set()
    for e in range(4):
        for c in (0, 1, 4, 2, 3):
            x = v(V_ACC + 4 * c + e)
            if ss[c] not in seen:
                seen.add(ss[c]); p.append(valu("v_mul_f32", ss[c], x, x))
            else:
                p.append(valu("v_fmac_f32", ss[c], x, x, rmw=True))
    p += [valu("v_fmac_f32", "v48", s(S_F0), "v50", rmw=True), valu("v_fmac_f32", "v49", s(S_F1), "v50", rmw=True),
          swap("v_permlane32_swap_b32", "v48", "v49"), valu("v_add_f32", "v48", "v48", "v49"),
          valu("v_mov_b32", "v49", "v48"), swap("v_permlane16_swap_b32", "v48", "v49"), valu("v_add_f32", "v48", "v48", "v49"),
          bstore("buffer_store_dword", "v48", v(V_SSG), s(SSS, 4), flags=st_flags)]
```

```python
import re

VM_MAX = 63
LGKM_MAX = 15


def regs(spec):
    out = set()
    if spec is None:
        return out
    if isinstance(spec, (list, tuple, set)):
        for s in spec:
            out |= regs(s)
        return out
    spec = spec.strip()
    if spec.startswith("-"):
        spec = spec[1:]
    if spec.startswith("abs(") or spec.startswith("|"):
        spec = spec.replace("abs(", "").replace(")", "").replace("|", "")
    m = re.fullmatch(r"([vas])\[(\d+):(\d+)\]", spec)
    if m:
        return {(m.group(1), i) for i in range(int(m.group(2)), int(m.group(3)) + 1)}
    m = re.fullmatch(r"([vas])(\d+)", spec)
    if m:
        return {(m.group(1), int(m.group(2)))}
    if spec in ("vcc", "m0", "scc", "exec"):
        return {(spec, 0)}
    return out


def R(f, lo, n=1):
    return f"{f}{lo}" if n == 1 else f"{f}[{lo}:{lo + n - 1}]"


def v(lo, n=1): return R("v", lo, n)
def a(lo, n=1): return R("a", lo, n)
def s(lo, n=1): return R("s", lo, n)


class Ins:
    __slots__ = ("text", "kind", "rd", "wr", "tag", "need", "passes", "srcc", "trans", "cost", "note")

    def __init__(self, text, kind, rd=(), wr=(), tag=None, need=None, passes=0, srcc=(), trans=False, cost=1):
        self.text = text
        self.kind = kind
        self.rd = regs(rd)
        self.wr = regs(wr)
        self.tag = tag
        self.need = need
        self.passes = passes
        self.srcc = regs(srcc)
        self.trans = trans
        self.cost = cost
        self.note = None


TRANS = ("v_exp_f32", "v_log_f32", "v_rcp_f32", "v_rsq_f32", "v_sqrt_f32", "v_sin_f32", "v_cos_f32")


def valu(op, dst, *src, extra="", rmw=False, wr_extra=(), rd_extra=()):
    rd = list(src) + ([dst] if rmw else []) + list(rd_extra)
    t = f"{op} " + ", ".join([dst] + [str(x) for x in src]) + (" " + extra if extra else "")
    base = op.replace("_e32", "").replace("_e64", "")
    return Ins(t, "valu", rd=[str(x) for x in rd], wr=[dst] + list(wr_extra), trans=base in TRANS)


def salu(op, dst, *src, scc_w=True, scc_r=False):
    t = f"{op} " + ", ".join([dst] + [str(x) for x in src])
    wr = [dst] + (["scc"] if scc_w and not op.startswith("s_mov") and not op.startswith("s_mul_i32") and not op.startswith("s_cselect") else [])
    rd = [str(x) for x in src] + (["scc"] if scc_r or op.startswith("s_cselect") or op.startswith("s_addc") or op.startswith("s_subb") else [])
    return Ins(t, "salu", rd=rd, wr=wr)


def scmp(op, x, y):
    return Ins(f"{op} {x}, {y}", "salu", rd=[str(x), str(y)], wr=["scc"])


def mfma16(d, A, B, c):
    return Ins(f"v_mfma_f32_16x16x32_bf16 {d}, {A}, {B}, {c}", "mfma", rd=[A, B, c], wr=[d], passes=4, srcc=[c], cost=2)


def mfma32(d, A, B, c):
    return Ins(f"v_mfma_f32_32x32x16_bf16 {d}, {A}, {B}, {c}", "mfma", rd=[A, B, c], wr=[d], passes=8, srcc=[c], cost=2)


def dsr(op, dst, addr, off=0, tag=None):
    assert 0 <= off < 65536, off
    return Ins(f"{op} {dst}, {addr}" + (f" offset:{off}" if off else ""), "dsr", rd=[addr], wr=[dst], tag=tag)


def dsw(op, addr, src, off=0, tag=None):
    assert 0 <= off < 65536, off
    return Ins(f"{op} {addr}, {src}" + (f" offset:{off}" if off else ""), "dsw", rd=[addr, src], tag=tag)


def bload(op, dst, voff, srd, soff="0", off=0, flags="", tag=None):
    assert 0 <= off < 4096, off
    t = f"{op} {dst}, {voff}, {srd}, {soff} offen" + (f" offset:{off}" if off else "") + (" " + flags if flags else "")
    return Ins(t, "vld", rd=[voff, srd, str(soff)], wr=[dst], tag=tag)


def bstore(op, src, voff, srd, soff="0", off=0, flags="", tag=None):
    assert 0 <= off < 4096, off
    t = f"{op} {src}, {voff}, {srd}, {soff} offen" + (f" offset:{off}" if off else "") + (" " + flags if flags else "")
    return Ins(t, "vst", rd=[src, voff, srd, str(soff)], tag=tag)


def dma(voff, srd, soff="0", off=0, flags="", tag=None, op="buffer_load_dwordx4"):
    assert 0 <= off < 4096, off
    t = f"{op} {voff}, {srd}, {soff} offen" + (f" offset:{off}" if off else "") + " lds" + (" " + flags if flags else "")
    return Ins(t, "dma", rd=[voff, srd, str(soff), "m0"], tag=tag)


def wait(vm=(), lgkm=(), vm_all=False, lgkm_all=False):
    return Ins("", "wait", need=(set(vm), set(lgkm), vm_all, lgkm_all))


def barrier():
    return Ins("s_barrier", "barrier")


def raw(text, kind="raw", rd=(), wr=()):
    return Ins(text, kind, rd=rd, wr=wr)


def label(name):
    return Ins(f"{name}:", "label")


def comment(t):
    return Ins(f"; {t}", "comment")


def _is_vec(r):
    return r[0] in ("v", "a")


def finalize(prog, vm_state=None, verbose=False):
    out = []
    lg = []
    vm = list(vm_state or [])
    hist = []
    stats = {"nops": 0, "waits": 0}

    def emit(i, states=1):
        out.append(i)
        if i.kind not in ("label", "comment"):
            hist.append((i, states))
            if len(hist) > 40:
                del hist[0]

    def do_wait(nvm, nlg):
        parts = []
        if nvm is not None and nvm < len(vm) :
            n = min(nvm, VM_MAX)
            parts.append(f"vmcnt({n})")
            del vm[:len(vm) - n]
        if nlg is not None and nlg < len(lg):
            if any(x.kind == "smem" for x in lg):
                nlg = 0
            n = min(nlg, LGKM_MAX)
            parts.append(f"lgkmcnt({n})")
            del lg[:len(lg) - n]
        if parts:
            stats["waits"] += 1
            emit(Ins("s_waitcnt " + " ".join(parts), "waitcnt"))

    def dist_need(i):
        need = 0
        d = 0
        for p, st in reversed(hist):
            req = 0
            touch = i.rd | i.wr
            if p.kind == "valu":
                vw = {r for r in p.wr if _is_vec(r)}
                sw = {r for r in p.wr if r[0] in ("s", "vcc")}
                if i.kind == "mfma" and vw & i.rd:
                    req = max(req, 2)
                if p.trans and i.kind == "valu" and not i.trans and vw & i.rd:
                    req = max(req, 1)
                if p.trans and i.kind == "valu" and i.trans and vw & i.rd:
                    req = max(req, 1)
                if i.kind == "valu" and (i.text.startswith("v_readfirstlane") or i.text.startswith("v_readlane")) and vw & i.rd:
                    req = max(req, 1)
                if i.kind == "valu" and i.text.startswith("v_permlane") and vw & touch:
                    req = max(req, 2)
                if i.kind == "valu" and ("dpp" in i.text or "row_" in i.text or "quad_perm" in i.text) and vw & i.rd:
                    req = max(req, 2)
                if i.kind == "valu" and sw & i.rd:
                    req = max(req, 4 if "lane" in i.text.split()[0] else 2)
                if i.kind in ("vld", "vst", "dma") and sw & i.rd:
                    req = max(req, 5)
                if "dot2" in p.text.split()[0] and i.kind != "mfma" and vw & touch:
                    same = i.text.split()[0] == p.text.split()[0]
                    ops = [x.strip() for x in i.text.split(None, 1)[1].split(",")] if same else []
                    if not (same and not (vw & regs(ops[1:3]))):
                        req = max(req, 3)
                if ("exec", 0) in p.wr:
                    req = max(req, 5)
                if "op_sel" in p.text or "sdwa" in p.text:
                    if i.kind == "valu" and vw & touch:
                        req = max(req, 1)
            if p.kind == "mfma":
                tbl_ab = {4: 8, 8: 12}[p.passes]
                if i.kind == "mfma":
                    ab = i.rd - i.srcc
                    if p.wr & ab:
                        req = max(req, tbl_ab)
                    if p.wr & i.srcc and not (p.wr == i.srcc and p.passes == i.passes):
                        req = max(req, {4: 6, 8: 10}[p.passes])
                    if p.wr & i.wr and not (p.wr & i.srcc):
                        req = max(req, {4: 6, 8: 10}[p.passes])
                elif i.kind in ("valu", "dsr", "dsw", "vld", "vst", "dma"):
                    if p.wr & touch:
                        req = max(req, tbl_ab)
                    if i.kind == "valu" and p.srcc & i.wr:
                        req = max(req, {4: 3, 8: 7}[p.passes])
            if p.kind == "salu" and ("m0", 0) in p.wr and i.kind == "dma":
                req = max(req, 1)
            if p.kind == "vst" and ("dwordx4" in p.text or "dwordx3" in p.text):
                data = regs(p.text.split(None, 1)[1].split(",")[0]) if p.text.startswith("buffer") else regs(p.text.split(None, 1)[1].split(",")[1])
                if data & i.wr:
                    req = max(req, 2)
            need = max(need, req - d)
            d += st
            if d >= 20:
                break
        return need

    for i in prog:
        if i.kind in ("label", "comment", "waitcnt"):
            if i.kind == "waitcnt":
                m = re.search(r"vmcnt\((\d+)\)", i.text)
                if m:
                    n = int(m.group(1))
                    if n < len(vm):
                        del vm[:len(vm) - n]
                m = re.search(r"lgkmcnt\((\d+)\)", i.text)
                if m:
                    n = int(m.group(1))
                    if n < len(lg):
                        del lg[:len(lg) - n]
            emit(i)
            continue
        if i.kind == "wait":
            vt, lt, va, la = i.need
            nvm = nlg = None
            if va:
                nvm = 0
            else:
                for k, p in enumerate(vm):
                    if p.tag in vt:
                        nvm = len(vm) - 1 - k
            if la:
                nlg = 0
            else:
                for k, p in enumerate(lg):
                    if p.tag in lt:
                        nlg = len(lg) - 1 - k
            do_wait(nvm, nlg)
            continue
        touch = i.rd | i.wr
        nvm = nlg = None
        for k, p in enumerate(vm):
            if p.wr & (i.rd if i.kind == "vld" else touch):
                nvm = len(vm) - 1 - k
        for k, p in enumerate(lg):
            if p.wr & touch:
                nlg = len(lg) - 1 - k
        do_wait(nvm, nlg)
        n = dist_need(i)
        while n > 0:
            k = min(n, 16)
            stats["nops"] += 1
            emit(Ins(f"s_nop {k - 1}", "nop"), k)
            n -= k
        emit(i)
        if i.kind in ("dsr", "dsw", "smem"):
            lg.append(i)
            if i.kind == "smem":
                lg.append(i)
        if i.kind in ("vld", "vst", "dma"):
            vm.append(i)
            if len(vm) > VM_MAX + 1 and verbose:
                print("warning: more than 64 vm ops outstanding at", i.text)
    if verbose:
        print("finalize:", stats)
    return out


def text(prog):
    lines = []
    for i in prog:
        if i.kind in ("label",):
            lines.append(i.text)
        elif i.text:
            lines.append("  " + i.text)
    return "\n".join(lines)


def kernel_header(name):
    return f".globl {name}\n.p2align 8\n.type {name},@function\n{name}:"


def kernel_desc(name, vgpr=512, sgpr=102, accum=256):
    return f""".amdhsa_kernel {name}
  .amdhsa_next_free_vgpr {vgpr}
  .amdhsa_next_free_sgpr {sgpr}
  .amdhsa_accum_offset {accum}
  .amdhsa_group_segment_fixed_size 0
  .amdhsa_kernarg_size 80
  .amdhsa_user_sgpr_count 2
  .amdhsa_user_sgpr_kernarg_segment_ptr 1
  .amdhsa_system_sgpr_workgroup_id_x 1
  .amdhsa_float_denorm_mode_32 3
.end_amdhsa_kernel"""


def srd(p, base, lo, hi, nbytes):
    p += [salu("s_mov_b32", s(base), lo), salu("s_and_b32", s(base + 1), hi, "0xffff"),
          salu("s_mov_b32", s(base + 2), nbytes), salu("s_mov_b32", s(base + 3), "0x20000")]


def srd_off(p, base, lo, hi, off, nbytes):
    p += [salu("s_add_u32", s(base), lo, off), salu("s_addc_u32", s(base + 1), hi, 0),
          salu("s_and_b32", s(base + 1), s(base + 1), "0xffff"),
          salu("s_mov_b32", s(base + 2), nbytes), salu("s_mov_b32", s(base + 3), "0x20000")]


def sload(dst, n, off, base="s[0:1]"):
    op = {1: "s_load_dword", 2: "s_load_dwordx2", 4: "s_load_dwordx4", 8: "s_load_dwordx8"}[n]
    return Ins(f"{op} {s(dst, n)}, {base}, {off}", "smem", rd=[base], wr=[s(dst, n)])


def dpp(op, dst, a_, b_, ctrl):
    return Ins(f"{op}_dpp {dst}, {a_}, {b_} {ctrl} row_mask:0xf bank_mask:0xf", "valu", rd=[a_, b_], wr=[dst])


def swap(op, x, y):
    return Ins(f"{op} {x}, {y}", "valu", rd=[x, y], wr=[x, y])


def vcmp(op, dst, x, y):
    return Ins(f"{op} {dst}, {x}, {y}", "valu", rd=[str(x), str(y)], wr=[dst])


def cnd(dst, f, t, mask="vcc"):
    return Ins(f"v_cndmask_b32 {dst}, {f}, {t}, {mask}", "valu", rd=[str(f), str(t), mask], wr=[dst])


def f32(x):
    import struct
    return "0x%08x" % struct.unpack("<I", struct.pack("<f", x))[0]
```

```python
from asm import *
from layout import *

S_WG, S_WU, S_WD, S_XF, S_P, S_WS = 4, 8, 12, 16, 20, 24
S_W, S_W1K, S_OFF, S_OFF2, S_T0, S_T1, S_T2, S_C, S_R = 32, 33, 34, 35, 36, 37, 38, 39, 40
V_RD = [[8, 9, 10], [11, 12, 13]]
V_RS = [14, 15, 25]
V_LX = [26, 27, 28]
V_H, V_HW, V_HS = 16, 17, 18
V_DD, V_DS, V_DW, V_DW8, V_DX = 19, 20, 21, 22, 23
V_LIN = 24
V_TMP = 32
V_FR = 56
V_XV = 96
V_ACC = [128, 192]


def xreg(sidx, t):
    if sidx < 16:
        return a(16 * sidx + 4 * t, 4)
    return v(V_XV + 16 * (sidx - 16) + 4 * t, 4)


def setup(p, nc=2):
    p.append(Ins(f"s_load_dwordx4 s[44:47], s[0:1], {K_WG}", "smem", wr="s[44:47]"))
    p.append(Ins(f"s_load_dwordx2 s[48:49], s[0:1], {K_WD}", "smem", wr="s[48:49]"))
    p.append(Ins(f"s_load_dwordx2 s[50:51], s[0:1], {K_WS}", "smem", wr="s[50:51]"))
    L, I, Q, T, T2, T3 = "v1", "v2", "v3", "v4", "v5", "v6"
    p += [valu("v_lshrrev_b32", T, 6, "v0"), valu("v_and_b32", L, 63, "v0"),
          valu("v_readfirstlane_b32", s(S_W), T),
          valu("v_and_b32", I, 15, L), valu("v_lshrrev_b32", Q, 4, L),
          valu("v_lshlrev_b32", v(V_LIN), 4, L)]
    lg = nc.bit_length() - 1
    p += [salu("s_and_b32", s(S_T0), "s2", 7), salu("s_lshr_b32", s(S_T1), "s2", 3),
          salu("s_and_b32", s(S_C), s(S_T0), 16 // nc - 1), salu("s_lshl_b32", s(S_C), s(S_C), lg),
          salu("s_and_b32", s(S_T2), s(S_T1), nc - 1), salu("s_add_u32", s(S_C), s(S_C), s(S_T2)),
          salu("s_lshr_b32", s(S_R), s(S_T0), 4 - lg), salu("s_lshl_b32", s(S_R), s(S_R), 5 - lg),
          salu("s_lshr_b32", s(S_T2), s(S_T1), lg), salu("s_add_u32", s(S_R), s(S_R), s(S_T2)),
          salu("s_lshl_b32", s(S_W1K), s(S_W), 10)]
    FG, MG, ODD = s(41), s(42), s(43)
    p += [salu("s_and_b32", FG, s(S_W), 1), salu("s_lshr_b32", MG, s(S_W), 1), salu("s_and_b32", ODD, s(S_C), 1)]
    p += [valu("v_lshrrev_b32", T, 2, I), valu("v_lshl_add_u32", T, Q, 2, T),
          valu("v_and_b32", T2, 3, I), valu("v_lshlrev_b32", T2, 3, T2),
          valu("v_lshrrev_b32", T3, 1, T), valu("v_and_b32", T3, 3, T3),
          salu("s_lshl_b32", s(S_T0), FG, 1)]
    for k in range(2):
        p += [salu("s_add_u32", s(S_T1), s(S_T0), k),
              valu("v_xor_b32", v(V_RD[k][0]), s(S_T1), T3), valu("v_lshlrev_b32", v(V_RD[k][0]), 5, v(V_RD[k][0])),
              valu("v_lshl_add_u32", v(V_RD[k][0]), T, 7, v(V_RD[k][0])), valu("v_add_u32", v(V_RD[k][0]), v(V_RD[k][0]), T2),
              valu("v_add_u32", v(V_RD[k][1]), 65536, v(V_RD[k][0])), valu("v_add_u32", v(V_RD[k][2]), 131072, v(V_RD[k][0]))]
    p += [valu("v_and_b32", T3, 1, Q), valu("v_xor_b32", T3, FG, T3), valu("v_lshlrev_b32", T3, 5, T3),
          valu("v_lshl_add_u32", v(V_RS[0]), T, 6, T3), valu("v_add_u32", v(V_RS[0]), v(V_RS[0]), T2),
          valu("v_add_u32", v(V_RS[1]), 65536, v(V_RS[0])), valu("v_add_u32", v(V_RS[2]), 131072, v(V_RS[0]))]
    p += [salu("s_lshl_b32", s(S_T0), MG, 11), valu("v_add_u32", v(V_LX[0]), s(S_T0), v(V_LIN)),
          valu("v_add_u32", v(V_LX[1]), 65536, v(V_LX[0])), valu("v_add_u32", v(V_LX[2]), 131072, v(V_LX[0])),
          salu("s_mul_i32", s(S_T0), MG, 36864), salu("s_add_u32", s(S_T0), s(S_T0), HB),
          valu("v_add_u32", v(V_H), s(S_T0), v(V_LIN)),
          salu("s_lshl_b32", s(S_T1), FG, 12), valu("v_add_u32", v(V_HW), s(S_T1), v(V_H)),
          salu("s_lshl_b32", s(S_T1), FG, 3), valu("v_add_u32", v(V_HS), s(S_T1), v(V_H))]
    p += [valu("v_bfe_u32", T, L, 1, 2), valu("v_xor_b32", T, T, Q), valu("v_lshlrev_b32", T, 5, T),
          valu("v_and_b32", T2, 1, L), valu("v_lshl_add_u32", T, T2, 4, T),
          valu("v_lshrrev_b32", T2, 3, L), salu("s_lshl_b32", s(S_T0), s(S_W), 3),
          valu("v_add_u32", T2, s(S_T0), T2),
          salu("s_mul_i32", s(S_T0), s(S_C), 576), salu("s_lshl_b32", s(S_T1), ODD, 6),
          salu("s_add_u32", s(S_T1), s(S_T0), s(S_T1)),
          valu("v_mul_u32_u24", T3, 9216, T2), valu("v_add3_u32", v(V_DD), T3, T, s(S_T1)),
          valu("v_mul_u32_u24", T3, 1152, T2), valu("v_add_u32", T3, T3, T),
          salu("s_mul_i32", s(S_T1), s(S_C), 288 * 1152), salu("s_mul_i32", s(S_T2), ODD, 32 * 1152),
          salu("s_add_u32", s(S_T2), s(S_T2), s(S_T1)), valu("v_add_u32", v(V_DW), s(S_T2), T3),
          salu("s_xor_b32", s(S_T2), ODD, 1), salu("s_mul_i32", s(S_T2), s(S_T2), 256 * 1152),
          salu("s_add_u32", s(S_T2), s(S_T2), s(S_T1)), valu("v_add_u32", v(V_DW8), s(S_T2), T3)]
    p += [valu("v_bfe_u32", T, L, 1, 1), valu("v_and_b32", T2, 1, Q), valu("v_xor_b32", T, T, T2),
          valu("v_lshlrev_b32", T, 5, T), valu("v_and_b32", T2, 1, L), valu("v_lshl_add_u32", T, T2, 4, T),
          valu("v_lshrrev_b32", T2, 2, L), salu("s_lshl_b32", s(S_T1), FG, 4), valu("v_add_u32", T2, s(S_T1), T2),
          valu("v_mul_u32_u24", T2, 9216, T2),
          salu("s_xor_b32", s(S_T2), ODD, 1), salu("s_lshl_b32", s(S_T2), s(S_T2), 9),
          salu("s_add_u32", s(S_T2), s(S_T2), s(S_T0)), valu("v_add3_u32", v(V_DS), T2, T, s(S_T2))]
    p += [salu("s_lshl_b32", s(S_T1), s(S_R), 1), salu("s_add_u32", s(S_T1), s(S_T1), MG), salu("s_lshl_b32", s(S_T1), s(S_T1), 2),
          salu("s_add_u32", s(S_T1), s(S_T1), FG),
          salu("s_mul_i32", s(S_T1), s(S_T1), 18432), valu("v_add_u32", v(V_DX), s(S_T1), v(V_LIN))]
    p.append(wait(lgkm_all=True))
    srd(p, S_WG, "s44", "s45", D * F * 2)
    srd(p, S_WU, "s46", "s47", D * F * 2)
    srd(p, S_WD, "s48", "s49", D * F * 2)
    p += [scmp("s_cmp_eq_u32", MG, 0), salu("s_cselect_b32", s(S_WS), "s44", "s46"),
          salu("s_cselect_b32", s(S_WS + 1), s(S_WG + 1), s(S_WU + 1)),
          salu("s_mov_b32", s(S_WS + 2), D * F * 2), salu("s_mov_b32", s(S_WS + 3), "0x20000")]
    p += [salu("s_add_u32", s(S_XF), "s50", WS_XF), salu("s_addc_u32", s(S_XF + 1), "s51", 0),
          salu("s_and_b32", s(S_XF + 1), s(S_XF + 1), "0xffff"),
          salu("s_mov_b32", s(S_XF + 2), ACT), salu("s_mov_b32", s(S_XF + 3), "0x20000")]
    p += [salu("s_mul_i32", s(S_T0), s(S_C), ACT), salu("s_lshl_b32", s(S_T1), s(S_R), 1),
          salu("s_add_u32", s(S_T1), s(S_T1), MG), salu("s_mul_i32", s(S_T1), s(S_T1), 4 * 18432),
          salu("s_add_u32", s(S_T0), s(S_T0), s(S_T1)), salu("s_lshl_b32", s(S_T1), FG, 10),
          salu("s_add_u32", s(S_T0), s(S_T0), s(S_T1)), salu("s_add_u32", s(S_T0), s(S_T0), WS_P),
          salu("s_add_u32", s(S_P), "s50", s(S_T0)), salu("s_addc_u32", s(S_P + 1), "s51", 0),
          salu("s_and_b32", s(S_P + 1), s(S_P + 1), "0xffff"),
          salu("s_mov_b32", s(S_P + 2), 4 * 18432 - 1024), salu("s_mov_b32", s(S_P + 3), "0x20000")]


NSLOT = 40
HSLOT = 22
HB = HSLOT * 4096
LDS_BYTES = NSLOT * 4096
CH = 3
G = 4 * CH


def body(p, nb=3, nb0=2, la=30, store_flags="", verbose=False, nodma=False, noread=False, stamps=(), nobar=False,
         nostore=False, chain=True, sets=2, rdper=1, onewait=True, dmaper=2, pro=14, dmagap=0):
    AH = sets - 1
    W = []
    ring = []
    X = {}
    for j in range(4):
        for tau in range(6):
            n0 = len(W)
            if j == 0:
                for i in range(3):
                    for ab in range(2):
                        u = dict(kind="X", ab=ab, s=3 * tau + i, first=n0 - 3 + i, done=n0 - 1 + i)
                        if tau == 0: u["first"], u["done"] = -1, 0
                        X[ab, 3 * tau + i] = u; ring.append(u)
            for m in range(2):
                tr = [dict(kind="D", j=j, s=3 * tau + i, m=m, first=n0 + 2 * m - AH, done=n0 + 2 * m + 1) for i in range(3)]
                ring += tr
                for k in range(2):
                    W.append(dict(kind="D", src=tr, k=k, b0=3 * tau, acc=V_ACC[j & 1] + 32 * m + 16 * k))
    for tau in range(6):
        n0 = len(W)
        tr = [dict(kind="S", s=3 * tau + i, first=n0 - AH, done=n0 + 1) for i in range(3)]
        ring += tr
        for k in range(2):
            W.append(dict(kind="S", src=tr, k=k, b0=3 * tau, acc=V_ACC[0] + 16 * k))
    P2 = len(W)
    OACC = [192, 224, 160, 128]
    for dl in range(9):
        for tau in range(3):
            n0 = len(W)
            tr = [dict(kind="O", dl=dl, kp=3 * tau + i, first=n0 - AH, done=n0 + 1) for i in range(3)]
            ring += tr
            for k in range(2):
                W.append(dict(kind="O", src=tr, k=k, b0=3 * tau, acc=OACC[dl & 3] + 16 * k))
    for i, u in enumerate(ring):
        u["ri"] = i
        if not onewait: u["done"] += 1
    NU = len(W)

    bar_units = sorted(set(list(range(0, 24, nb0)) + list(range(24, 96, nb)) + list(range(96, P2 + 3, 3)) + list(range(P2 + 3, NU - 1, nb))))
    isbar = set(bar_units)

    def bar_at_or_after(n):
        while n not in isbar:
            n += 1
            if n > NU: return 10 ** 6
        return n

    def lds3(regs3, off):
        return v(regs3[off >> 16]), off & 65535

    def frag(n, i):
        return V_FR + 4 * (3 * (n % sets) + i)

    def reads(n):
        w = W[n]; k = w["k"]; out = []
        for i, u in enumerate(w["src"]):
            for hf in range(2):
                if w["kind"] == "S":
                    ad, off = lds3(V_RS, u["slot"] * 4096 + 2048 * k + 1024 * hf)
                else:
                    ad, off = lds3(V_RD[k], u["slot"] * 4096 + 2048 * hf)
                out.append(dsr("ds_read_b64_tr_b16", v(frag(n, i) + 2 * hf, 2), ad, off, tag=("rd", n, i, hf)))
        return out

    def xreads(sx):
        out = []
        for t in range(4):
            ad, off = lds3(V_LX, X[t >> 1, sx]["slot"] * 4096 + 1024 * (t & 1))
            out.append(dsr("ds_read_b128", xreg(sx, t), ad, off, tag=("xr", sx, t)))
        return out

    last_soff = {}

    def dmas(u):
        k = u["kind"]
        if k == "X":
            vo, sr, so = V_DX, S_XF, u["ab"] * 2 * 18432 + 1024 * u["s"]
        elif k == "D":
            vo, sr, so = V_DD, (S_WG, S_WU)[u["m"]], 32 * u["s"] * 9216 + 128 * u["j"]
        elif k == "S":
            vo, sr, so = V_DS, S_WS, 32 * u["s"] * 9216
        else:
            if u["kp"] < 8:
                vo, sr, so = V_DW, S_WD, 32 * u["kp"] * 1152 + 128 * u["dl"]
            else:
                vo, sr, so = V_DW8, S_WD, 128 * u["dl"]
        out = [salu("s_add_u32", "m0", s(S_W1K), u["slot"] * 4096)]
        if last_soff.get(S_OFF) != so:
            out.append(salu("s_mov_b32", s(S_OFF), so)); last_soff[S_OFF] = so
        out.append(dma(v(vo), s(sr, 4), s(S_OFF), tag=("dma", u["ri"])))
        return out

    def mfmas(n):
        w = W[n]; out = []
        order = [(t, i) for t in range(4) for i in range(3)] if chain else [(t, i) for i in range(3) for t in range(4)]
        for t, i in order:
            c = v(w["acc"] + 4 * t, 4)
            first = w["b0"] + i == 0
            out.append(mfma16(c, v(frag(n, i), 4), xreg(w["b0"] + i, t), "0" if first else c))
        return out

    reserve = {}
    for kp in range(9):
        for mg in range(2):
            reserve[HSLOT + 9 * mg + kp] = 24 * (kp // 2 + 1) if kp < 8 else P2
    h_release = bar_at_or_after(P2 + 6)
    free = list(range(NSLOT))
    busy = []
    nxt = 0
    issue = {n: [] for n in range(-1, NU)}

    def take(u, n):
        fb = bar_at_or_after(max(u["done"], 0))
        for sl in free:
            if sl in reserve and n < h_release and fb > reserve[sl]:
                continue
            free.remove(sl); u["slot"] = sl; busy.append(u)
            return True
        return False

    def consumed(n):
        return sum(1 for u in ring if u["first"] <= n)

    while nxt < len(ring) and nxt < pro and take(ring[nxt], -1):
        issue[-1].append(ring[nxt]); ring[nxt]["iss"] = -1; nxt += 1
    for n in range(NU):
        if n in isbar:
            for u in list(busy):
                if u["done"] <= n:
                    busy.remove(u); free.append(u["slot"])
        kmax = (4 if n < 24 else 2)
        cnt = 0
        while nxt < len(ring) and cnt < kmax and nxt < consumed(n) + la and take(ring[nxt], n):
            issue[n].append(ring[nxt]); ring[nxt]["iss"] = n; nxt += 1; cnt += 1
    assert nxt == len(ring)

    NG = NU * G
    gaps = [[] for _ in range(NG)]
    cap = [2] * NG

    def put(g, ins):
        gaps[g].append(ins); cap[g] -= 1

    def flow(items, g, per=1, limit=None, note="flow"):
        for it in items:
            while cap[g] < 1 or sum(1 for x in gaps[g] if x.note == note) >= per:
                g += 1
            it.note = note
            put(g, it)
        if limit is not None:
            assert g <= limit, (g, limit)
        return g

    prologue = []
    for u in issue[-1]:
        prologue += dmas(u)
    for n in range(NU):
        g = G * n
        if n in isbar:
            cap[g] -= 2; g += 1
        cap[G * n + G - 1] -= 1
        g0 = g
        if n + AH < NU and not noread:
            g = flow(reads(n + AH), g, per=rdper, note="rd")
        if n < 20 and n % 4 > 0 and not noread:
            g = flow(xreads(3 * (n // 4 + 1) + n % 4 - 1), g, per=rdper, note="rd")
        seq = [dmas(u) for u in issue[n]]
        if not nodma:
            if rdper == 2:
                cap[G * n + G - 1] += 3
                flow(sum(seq, []), g, per=2, note="dma", limit=G * n + G - 1)
                cap[G * n + G - 1] -= 3
            else:
                gg = g0 if (n < 24 or dmagap == 0) else g0 + dmagap
                step = 3 if len(seq) > 2 else (5 if dmagap == 0 else 3)
                for q_, sq in enumerate(seq):
                    ga = gg + step * q_
                    for e, it in enumerate(sq):
                        put(min(ga + e, G * n + G - 1), it)
    bars = {}
    minfl = 1e9
    for bi, n in enumerate(bar_units):
        nn = bar_units[bi + 1] if bi + 1 < len(bar_units) else NU
        need = [u for u in ring if n <= u["first"] < nn]
        for u in need:
            if n > 30: minfl = min(minfl, n - u["iss"])
            assert u["iss"] < n
        bars[n] = dict(vm=[("dma", u["ri"]) for u in need], lg=[])
    if verbose: print("b1: min DMA flight (units of 192 cyc):", minfl)

    T = V_TMP
    hready = {}
    for j in range(4):
        base = V_ACC[j & 1]; items = []
        for t in range(4):
            tt = T + 4 * (t & 1)
            for k in range(2):
                g_, u_ = base + 16 * k + 4 * t, base + 32 + 16 * k + 4 * t
                for e in range(4):
                    items.append(valu("v_mul_f32", v(g_ + e), v(g_ + e), v(u_ + e)))
                items.append(valu("v_cvt_pk_bf16_f32", v(tt + 2 * k), v(g_), v(g_ + 1)))
                items.append(valu("v_cvt_pk_bf16_f32", v(tt + 2 * k + 1), v(g_ + 2), v(g_ + 3)))
            items.append(dsw("ds_write_b128", v(V_HW), v(tt, 4), (8 * j + t) * 1024, tag=("hw", j, t)))
        g = flow(items, G * 24 * (j + 1) + 1, per=2 if j == 3 else 1)
        nbar = bar_at_or_after(g // G + 1); bars[nbar]["lg"].append(("hw", j, 3))
        hready[2 * j] = hready[2 * j + 1] = nbar
    items = []
    for t in range(4):
        tt = T + 2 * t
        g_, u_ = V_ACC[0] + 4 * t, V_ACC[0] + 16 + 4 * t
        for e in range(4):
            items.append(valu("v_mul_f32", v(g_ + e), v(g_ + e), v(u_ + e)))
        items.append(valu("v_cvt_pk_bf16_f32", v(tt), v(g_), v(g_ + 1)))
        items.append(valu("v_cvt_pk_bf16_f32", v(tt + 1), v(g_ + 2), v(g_ + 3)))
        items.append(dsw("ds_write_b64", v(V_HS), v(tt, 2), (32 + t) * 1024, tag=("hw", 4, t)))
    g = flow(items, G * P2 + 1, per=2)
    nbar = bar_at_or_after(g // G + 1); bars[nbar]["lg"].append(("hw", 4, 3)); hready[8] = nbar
    g = 0
    for kp in range(9):
        g = max(g, G * (96 + 2 * (kp // 3) + 2), G * hready[kp] + 1)
        items = [dsr("ds_read_b128", xreg(kp, t), v(V_H), (4 * kp + t) * 1024, tag=("hr", kp, t)) for t in range(4)]
        g = flow(items, g, per=2, limit=G * (P2 + 2 * (kp // 3)) - (4 if kp < 8 else 0))
    tail = []
    for dl in range(9):
        base = OACC[dl & 3]; items = []
        for t in range(4):
            tt = T + 8 + 4 * t
            for k in range(2):
                c = base + 16 * k + 4 * t
                items.append(valu("v_cvt_pk_bf16_f32", v(tt + 2 * k), v(c), v(c + 1)))
                items.append(valu("v_cvt_pk_bf16_f32", v(tt + 2 * k + 1), v(c + 2), v(c + 3)))
            items.append(salu("s_mov_b32", s(S_OFF2), (18 * t + 2 * dl) * 1024))
            if not nostore: items.append(bstore("buffer_store_dwordx4", v(tt, 4), v(V_LIN), s(S_P, 4), s(S_OFF2), flags=store_flags, tag=("st", dl, t)))
        if dl < 8:
            flow(items, G * (P2 + 6 * (dl + 1)) + 1)
        else:
            tail = items

    p += prologue
    p.append(wait(vm=[("dma", u["ri"]) for u in ring if u["first"] < 0]))
    p.append(barrier())
    p += reads(0) + xreads(0) + xreads(1) + xreads(2) + (reads(1) if AH == 2 else [])
    for n in range(NU):
        if n in stamps:
            k = stamps.index(n)
            p.append(Ins(f"s_memtime s[{62+2*k}:{63+2*k}]", "smem", wr=f"s[{62+2*k}:{63+2*k}]"))
        if not noread and onewait:
            p.append(wait(lgkm=[("rd", n, 2, 1)]))
        for k, m in enumerate(mfmas(n)):
            p.append(m)
            if k == 0 and n in isbar:
                p.append(wait(vm=bars[n]["vm"], lgkm=bars[n]["lg"]))
                if not nobar: p.append(barrier())
            p += gaps[G * n + k]
    p += tail
    if verbose:
        over = sum(1 for c in cap if c < 0)
        print("b1: gaps over capacity:", over, " free slots:", sum(max(c, 0) for c in cap))


def stamp0(p):
    p.append(Ins("s_memrealtime s[96:97]", "smem", wr="s[96:97]"))
    p.append(Ins("s_memtime s[98:99]", "smem", wr="s[98:99]"))
    p.append(wait(lgkm_all=True))


def stamp0_store(p):
    p += [valu("v_mov_b32", "v92", "s96"), valu("v_mov_b32", "v93", "s98")]
    p.append(Ins(f"global_store_dwordx2 v94, v[92:93], s[54:55]", "vst", rd=["v94", "v[92:93]", "s[54:55]"]))


def stamp(p, idx, sbase=52):
    p.append(Ins("s_memrealtime s[56:57]", "smem", wr="s[56:57]"))
    p.append(Ins("s_memtime s[58:59]", "smem", wr="s[58:59]"))
    p.append(wait(lgkm_all=True))
    p += [valu("v_mov_b32", "v92", "s56"), valu("v_mov_b32", "v93", "s58")]
    p.append(Ins(f"global_store_dwordx2 v94, v[92:93], s[54:55] offset:{8 * idx}", "vst", rd=["v94", "v[92:93]", "s[54:55]"]))


def stamp_init(p):
    p += [salu("s_add_u32", "s54", "s50", WS_STAMP), salu("s_addc_u32", "s55", "s51", 0),
          salu("s_lshl_b32", "s60", "s2", 2), salu("s_add_u32", "s60", "s60", s(S_W)), salu("s_lshl_b32", "s60", "s60", 7),
          valu("v_mov_b32", "v94", "s60")]


def dump_stamps(p, n, first_idx):
    p.append(wait(lgkm_all=True))
    for k in range(n):
        p += [valu("v_mov_b32", "v92", 0), valu("v_mov_b32", "v93", f"s{62+2*k}")]
        p.append(Ins(f"global_store_dwordx2 v94, v[92:93], s[54:55] offset:{8 * (first_idx + k)}", "vst", rd=["v94", "v[92:93]", "s[54:55]"]))
```

```python
S, D, H, DH, F = 2048, 576, 32, 18, 4608
ACT = S * D * 2
MT = 18432
WQ_SLICE = 18 * 7 * 1024
WS_XB = 0
WS_XF = WS_XB
WS_XA = WS_XB + ACT
WS_OF = WS_XA + ACT
WS_WQ = WS_OF + ACT
WS_WO = WS_WQ + 16 * WQ_SLICE
WS_RSTD = WS_WO + 37 * MT + 2048
WS_MU = WS_RSTD + S * 4
WS_DM = WS_MU + S * 4
WS_SS = WS_DM + S * 4
WS_FLAGS = WS_SS + S * 64
WS_STAMP = WS_FLAGS + 65536
WS_P = WS_STAMP + (1 << 20)
WS_END = WS_P + 16 * ACT
K_X, K_WQKV, K_WO, K_BX, K_WG, K_WU, K_WD, K_OUT, K_DBG, K_WS = [8 * i for i in range(10)]
assert WS_P % 4096 == 0 and WS_RSTD % 4096 == 0
OOB = "0x7ffffff0"
```

```python
from asm import *
from layout import *

S_W = 32
S_RO = 33
S_T0, S_T1, S_T2, S_T3 = 36, 37, 38, 39
V_L, V_SEG, V_M8 = 1, 2, 3
V_FO = 4
V_FO8 = 5
V_RO = 6
V_RO8 = 7
V_ROW4 = 8
V_RED = 9
V_REDR = 10
V_OOB = 11
Y = 64
LDS_RED = 0
LDS_S8 = 1024


def common(p):
    T, T2 = "v12", "v13"
    p += [valu("v_lshrrev_b32", T, 6, "v0"), valu("v_and_b32", v(V_L), 63, "v0"),
          valu("v_readfirstlane_b32", s(S_W), T),
          valu("v_lshrrev_b32", v(V_SEG), 3, v(V_L)), valu("v_and_b32", v(V_M8), 7, v(V_L)),
          valu("v_mov_b32", v(V_OOB), OOB),
          salu("s_and_b32", s(S_T0), "s2", 7), salu("s_lshl_b32", s(S_T0), s(S_T0), 5),
          salu("s_lshr_b32", s(S_T1), "s2", 3), salu("s_add_u32", s(S_RO), s(S_T0), s(S_T1)),
          salu("s_lshr_b32", s(S_T0), s(S_RO), 1), salu("s_mul_i32", s(S_T0), s(S_T0), MT),
          salu("s_and_b32", s(S_T1), s(S_RO), 1), salu("s_lshl_b32", s(S_T1), s(S_T1), 7),
          salu("s_add_u32", s(S_T0), s(S_T0), s(S_T1)),
          valu("v_lshlrev_b32", T, 8, v(V_SEG)), valu("v_lshl_add_u32", T, v(V_M8), 4, T),
          salu("s_lshl_b32", s(S_T1), s(S_W), 12), salu("s_add_u32", s(S_T1), s(S_T1), s(S_T0)),
          valu("v_add_u32", v(V_FO), s(S_T1), T),
          salu("s_lshl_b32", s(S_T1), s(S_W), 2), salu("s_add_u32", s(S_T1), s(S_T1), s(S_T0)),
          salu("s_add_u32", s(S_T1), s(S_T1), 16384), valu("v_add_u32", v(V_FO8), s(S_T1), T),
          salu("s_lshl_b32", s(S_T0), s(S_RO), 3), valu("v_add_u32", T2, s(S_T0), v(V_M8)),
          valu("v_lshlrev_b32", v(V_ROW4), 2, T2),
          valu("v_mul_u32_u24", T2, 1152, T2),
          valu("v_lshrrev_b32", T, 2, v(V_SEG)), valu("v_lshl_add_u32", T2, T, 6, T2),
          valu("v_and_b32", T, 3, v(V_SEG)), valu("v_lshl_add_u32", T2, T, 3, T2),
          salu("s_lshl_b32", s(S_T1), s(S_W), 8), valu("v_add_u32", v(V_RO), s(S_T1), T2),
          salu("s_lshr_b32", s(S_T1), s(S_W), 1), salu("s_lshl_b32", s(S_T1), s(S_T1), 5),
          salu("s_and_b32", s(S_T2), s(S_W), 1), salu("s_lshl_b32", s(S_T2), s(S_T2), 2),
          salu("s_add_u32", s(S_T1), s(S_T1), s(S_T2)), salu("s_add_u32", s(S_T1), s(S_T1), 1024),
          valu("v_add_u32", v(V_RO8), s(S_T1), T2),
          valu("v_lshlrev_b32", v(V_REDR), 4, v(V_M8)),
          salu("s_lshl_b32", s(S_T1), s(S_W), 2), valu("v_add_u32", v(V_RED), s(S_T1), v(V_REDR))]


def only_first(p, dst, src):
    p += [vcmp("v_cmp_gt_u32", "vcc", 8, "v0"), cnd(dst, v(V_OOB), src)]


def xsum(p, x, t):
    p += [dpp("v_add_f32", x, x, x, "row_ror:8"),
          valu("v_mov_b32", t, x), swap("v_permlane16_swap_b32", x, t), valu("v_add_f32", x, x, t),
          valu("v_mov_b32", t, x), swap("v_permlane32_swap_b32", x, t), valu("v_add_f32", x, x, t)]


def wgsum(p, x, t4, slot):
    p += [dsw("ds_write_b32", v(V_RED), x, LDS_RED + 128 * slot, tag=("red", slot)), wait(lgkm=[("red", slot)]), barrier(),
          dsr("ds_read_b128", v(t4, 4), v(V_REDR), LDS_RED + 128 * slot),
          valu("v_add_f32", v(t4), v(t4), v(t4 + 1)), valu("v_add_f32", v(t4 + 2), v(t4 + 2), v(t4 + 3)),
          valu("v_add_f32", x, v(t4), v(t4 + 2))]


def tree_sum(p, dst, srcs, tmp):
    p.append(valu("v_add_f32", dst, srcs[0], srcs[1]))
    p.append(valu("v_add_f32", tmp, srcs[2], srcs[3]))
    for i, x in enumerate(srcs[4:]):
        p.append(valu("v_add_f32", (dst, tmp)[i & 1], (dst, tmp)[i & 1], x))
    p.append(valu("v_add_f32", dst, dst, tmp))


def centre_and_store(p, S_XA, S_RS, S_MU, mu_in, flags=""):
    M, T, Q4 = "v14", "v15", 16
    tree_sum(p, M, [v(Y + i) for i in range(18)], T)
    xsum(p, M, T)
    wgsum(p, M, Q4, 0)
    p.append(valu("v_mul_f32", M, f32(1.0 / D), M))
    for i in range(18):
        p.append(valu("v_sub_f32", v(Y + i), v(Y + i), M))
    V2, V2b = "v20", "v21"
    p += [valu("v_mul_f32", V2, v(Y), v(Y)), valu("v_mul_f32", V2b, v(Y + 1), v(Y + 1))]
    for i in range(2, 18):
        p.append(valu("v_fmac_f32", (V2, V2b)[i & 1], v(Y + i), v(Y + i), rmw=True))
    p.append(valu("v_add_f32", V2, V2, V2b))
    for i in range(9):
        p.append(valu("v_cvt_pk_bf16_f32", v(24 + i), v(Y + 2 * i), v(Y + 2 * i + 1)))
    p += [bstore("buffer_store_dwordx4", v(24, 4), v(V_FO), s(S_XA, 4), flags=flags),
          bstore("buffer_store_dwordx4", v(28, 4), v(V_FO), s(S_XA, 4), off=2048, flags=flags),
          bstore("buffer_store_dword", v(32), v(V_FO8), s(S_XA, 4), flags=flags)]
    xsum(p, V2, T)
    wgsum(p, V2, Q4, 1)
    p += [valu("v_mov_b32", T, f32(1e-5)), valu("v_fmac_f32", T, f32(1.0 / D), V2, rmw=True),
          valu("v_rsq_f32", T, T)]
    if mu_in is not None:
        p.append(valu("v_add_f32", M, M, mu_in))
    only_first(p, "v22", v(V_ROW4))
    p += [bstore("buffer_store_dword", T, "v22", s(S_RS, 4), flags=flags),
          bstore("buffer_store_dword", M, "v22", s(S_MU, 4), flags=flags)]


def unpack(p, dst, src):
    p += [valu("v_lshlrev_b32", v(dst), 16, src), valu("v_and_b32", v(dst + 1), "0xffff0000", src)]


def prep(p):
    SX, SQ, SO, SXA, SRS, SMU, SWQ, SWO = 4, 8, 12, 16, 20, 24, 28, 40
    p += [sload(44, 4, K_X), sload(48, 2, K_WO), sload(50, 2, K_WS)]
    common(p)
    p.append(wait(lgkm_all=True))
    srd(p, SX, "s44", "s45", ACT)
    srd(p, SQ, "s46", "s47", D * 3 * D * 2)
    srd(p, SO, "s48", "s49", D * D * 2)
    p += [bload("buffer_load_dwordx2", v(24, 2), v(V_RO), s(SX, 4)),
          bload("buffer_load_dwordx2", v(26, 2), v(V_RO), s(SX, 4), off=32),
          bload("buffer_load_dwordx2", v(28, 2), v(V_RO), s(SX, 4), off=128),
          bload("buffer_load_dwordx2", v(30, 2), v(V_RO), s(SX, 4), off=160),
          bload("buffer_load_dword", v(32), v(V_RO8), s(SX, 4))]
    srd_off(p, SXA, "s50", "s51", WS_XA, ACT)
    srd_off(p, SRS, "s50", "s51", WS_RSTD, S * 4)
    srd_off(p, SMU, "s50", "s51", WS_MU, S * 4)
    srd_off(p, SWQ, "s50", "s51", WS_WQ, 16 * WQ_SLICE)
    srd_off(p, SWO, "s50", "s51", WS_WO, 37 * MT)
    GW, FI, N, SS_, HP = s(52), s(53), s(54), s(55), s(56)
    C, Q, T, T2, T3, E = "v34", "v35", "v36", "v37", "v38", "v39"
    p += [salu("s_lshl_b32", GW, "s2", 2), salu("s_add_u32", GW, GW, s(S_W)),
          valu("v_and_b32", C, 15, v(V_L)), valu("v_lshrrev_b32", Q, 4, v(V_L)),
          salu("s_mov_b32", s(57), 2 * 3456), salu("s_mov_b32", s(58), 16 * 3456), salu("s_mov_b32", s(59), 18 * 3456)]
    for it in range(2):
        vo, dst, vst = v(52 + it), 40 + 4 * it, v(56 + it)
        p += [salu("s_lshl_b32", FI, GW, 1), salu("s_add_u32", FI, FI, it),
              salu("s_mul_hi_u32", s(S_T0), FI, (2 ** 32 + 6) // 7), salu("s_mul_i32", s(S_T1), s(S_T0), 7),
              salu("s_sub_u32", N, FI, s(S_T1)),
              salu("s_mul_hi_u32", HP, s(S_T0), (2 ** 32 + 17) // 18), salu("s_mul_i32", s(S_T1), HP, 18),
              salu("s_sub_u32", SS_, s(S_T0), s(S_T1)),
              salu("s_lshl_b32", s(S_T1), N, 4), valu("v_add_u32", T, s(S_T1), C),
              vcmp("v_cmp_le_u32", "vcc", 40, T), cnd(T2, 0, "1"),
              valu("v_mul_u32_u24", T3, 40, T2), valu("v_sub_u32", E, T, T3),
              valu("v_mul_u32_u24", T2, 18, T2), valu("v_add_u32", T2, T2, E),
              vcmp("v_cmp_le_u32", "vcc", 18, E), cnd(T3, 0, "1"),
              valu("v_mul_u32_u24", T3, 558, T3), valu("v_add_u32", T2, T2, T3), valu("v_add_u32", T2, 576, T2),
              valu("v_subrev_u32", T3, 76, T), vcmp("v_cmp_le_u32", "vcc", 76, T), cnd(T2, T2, T3),
              salu("s_mul_i32", s(S_T1), HP, 36), valu("v_add_u32", T2, s(S_T1), T2),
              salu("s_lshl_b32", s(S_T1), SS_, 5), valu("v_lshl_add_u32", T3, Q, 2, s(S_T1)),
              valu("v_mul_u32_u24", T3, 3456, T3), valu("v_lshl_add_u32", vo, T2, 1, T3),
              valu("v_subrev_u32", T3, 36, T), vcmp("v_cmp_gt_u32", "vcc", 4, T3), cnd(vo, vo, v(V_OOB)),
              salu("s_lshl_b32", s(S_T1), FI, 10), valu("v_lshl_add_u32", vst, v(V_L), 4, s(S_T1)),
              scmp("s_cmp_lt_u32", FI, 2016), salu("s_cselect_b32", s(S_T1), 0, OOB),
              valu("v_or_b32", vo, s(S_T1), vo)]
        for i, so in enumerate(["0", s(57), s(58), s(59)]):
            p += [bload("buffer_load_ushort", v(dst + i), vo, s(SQ, 4), so),
                  bload("buffer_load_ushort", v(dst + 44 + i), vo, s(SQ, 4), so, off=3456)]
    vo, vst = "v54", "v58"
    p += [salu("s_mul_hi_u32", N, GW, (2 ** 32 + 17) // 18), salu("s_mul_i32", s(S_T1), N, 18), salu("s_sub_u32", SS_, GW, s(S_T1))]

    def wo_rows(qsrc, dst):
        return [valu("v_lshrrev_b32", T, 1, qsrc), valu("v_mul_u32_u24", T, 18, T),
                valu("v_and_b32", T2, 1, qsrc), valu("v_lshl_add_u32", T, T2, 3, T),
                salu("s_mul_i32", s(S_T1), SS_, 36), valu("v_add_u32", T, s(S_T1), T),
                valu("v_mul_u32_u24", T2, 72, qsrc), salu("s_mul_i32", s(S_T1), SS_, 288),
                salu("s_sub_u32", s(S_T1), s(S_T1), 16 * 288 - 16), valu("v_add_u32", T2, s(S_T1), T2),
                scmp("s_cmp_lt_u32", SS_, 16), salu("s_cselect_b64", "vcc", -1, 0), cnd(dst, T2, T)]
    p += wo_rows(Q, T3)
    p += [salu("s_cselect_b32", s(60), 2, 18), salu("s_mul_i32", s(60), s(60), 1152), salu("s_mul_i32", s(61), s(60), 2),
          salu("s_mul_i32", s(62), s(60), 3),
          valu("v_mul_u32_u24", T3, 1152, T3), salu("s_lshl_b32", s(S_T1), N, 5),
          valu("v_lshl_add_u32", T, C, 1, s(S_T1)), valu("v_add_u32", vo, T3, T),
          salu("s_lshl_b32", s(S_T1), GW, 10), valu("v_lshl_add_u32", vst, v(V_L), 4, s(S_T1)),
          scmp("s_cmp_lt_u32", GW, 648), salu("s_cselect_b32", s(S_T1), 0, OOB),
          valu("v_or_b32", vo, s(S_T1), vo), valu("v_or_b32", vst, s(S_T1), vst)]
    for i, so in enumerate(["0", s(60), s(61), s(62)]):
        p += [bload("buffer_load_ushort", v(48 + i), vo, s(SO, 4), so),
              bload("buffer_load_ushort", v(92 + i), vo, s(SO, 4), so, off=1152)]
    for i in range(9):
        unpack(p, Y + 2 * i, v(24 + i))
    centre_and_store(p, SXA, SRS, SMU, None)
    for i in range(12):
        p.append(valu("v_lshl_or_b32", v(40 + i), v(84 + i), 16, v(40 + i)))
    p += [bstore("buffer_store_dwordx4", v(40, 4), "v56", s(SWQ, 4)),
          bstore("buffer_store_dwordx4", v(44, 4), "v57", s(SWQ, 4)),
          bstore("buffer_store_dwordx4", v(48, 4), "v58", s(SWO, 4))]
    p += [wait(vm_all=True, lgkm_all=True), scmp("s_cmp_lt_u32", "s2", 238), raw("s_cbranch_scc1 L_prep_done", "branch"),
          salu("s_sub_u32", SS_, "s2", 238), valu("v_mov_b32", Q, s(S_W))]
    p += wo_rows(Q, T3)
    p += [valu("v_lshrrev_b32", T, 1, v(V_SEG)), valu("v_mul_u32_u24", T, 18, T), valu("v_and_b32", T2, 1, v(V_SEG)),
          valu("v_add_u32", T, T, T2), cnd(T, T, v(V_SEG)), valu("v_add_u32", T3, T3, T),
          valu("v_mul_u32_u24", T3, 1152, T3), valu("v_lshl_add_u32", vo, v(V_M8), 4, T3)]
    for t in range(9):
        p.append(bload("buffer_load_dwordx4", v(64 + 4 * t, 4), vo, s(SO, 4), off=128 * t))
    p += [valu("v_mov_b32", T, 0), valu("v_mov_b32", T2, 0), salu("s_mov_b32", s(S_T1), "0x3f803f80")]
    for t in range(36):
        p.append(valu("v_dot2c_f32_bf16", (T, T2)[t & 1], s(S_T1), v(64 + t), rmw=True))
    p += [valu("v_add_f32", T, T, T2),
          dpp("v_add_f32", T, T, T, "quad_perm:[1,0,3,2]"), dpp("v_add_f32", T, T, T, "quad_perm:[2,3,0,1]"),
          dpp("v_add_f32", T, T, T, "row_half_mirror"),
          valu("v_mul_f32", T, f32(1.0 / D), T),
          valu("v_cvt_pk_bf16_f32", T2, T, T), valu("v_and_b32", T2, "0xffff0000", T2),
          valu("v_sub_f32", T, T, T2), valu("v_cvt_pk_bf16_f32", T, T, T),
          salu("s_add_u32", s(S_T1), SS_, 36 * 18), salu("s_lshl_b32", s(S_T1), s(S_T1), 10),
          salu("s_lshl_b32", s(S_T2), s(S_W), 8), salu("s_add_u32", s(S_T1), s(S_T1), s(S_T2)),
          valu("v_lshl_add_u32", T3, v(V_SEG), 1, s(S_T1)),
          vcmp("v_cmp_eq_u32", "vcc", 0, v(V_M8)), cnd(T3, v(V_OOB), T3),
          bstore("buffer_store_short_d16_hi", T2, T3, s(SWO, 4)),
          bstore("buffer_store_short", T, T3, s(SWO, 4), off=16),
          valu("v_lshl_add_u32", T3, v(V_L), 4, s(S_T1)),
          vcmp("v_cmp_gt_u32", "vcc", 14, v(V_L)), cnd(T3, v(V_OOB), T3)]
    for i in range(4):
        p.append(valu("v_mov_b32", v(40 + i), 0))
    p += [bstore("buffer_store_dwordx4", v(40, 4), T3, s(SWO, 4), off=32), label("L_prep_done")]


def b2(p, last, ld_flags=""):
    SP, SXB, SSS, SMU, SDM, SXA, SRS, SOUT = 4, 8, 12, 16, 20, 24, 28, 40
    p += [sload(44, 2, K_OUT), sload(50, 2, K_WS)]
    common(p)
    T, T2 = "v12", "v13"
    p += [salu("s_mul_i32", s(S_T0), s(S_W), 4 * ACT - 4), valu("v_add_u32", "v34", s(S_T0), v(V_FO8)),
          valu("v_lshlrev_b32", T, 5, v(V_L)), salu("s_lshl_b32", s(S_T0), s(S_W), 11),
          salu("s_add_u32", s(S_T0), s(S_T0), LDS_S8), valu("v_add_u32", "v35", s(S_T0), T),
          salu("s_lshl_b32", s(S_T0), s(S_W), 3), salu("s_add_u32", s(S_T0), s(S_T0), LDS_S8),
          valu("v_add_u32", "v36", s(S_T0), T),
          valu("v_lshlrev_b32", T, 4, v(V_ROW4)), valu("v_lshl_add_u32", "v37", v(V_SEG), 3, T)]
    for c in range(1, 16):
        p.append(salu("s_mov_b32", s(52 + c), c * ACT))
    p.append(wait(lgkm_all=True))
    srd_off(p, SP, "s50", "s51", WS_P, 16 * ACT)
    so = lambda c: s(52 + c) if c else "0"
    R8, RA = 96, 112
    for i in range(4):
        p.append(bload("buffer_load_dwordx4", v(R8 + 4 * i, 4), "v34", s(SP, 4), so(i), flags=ld_flags))
    srd_off(p, SXB, "s50", "s51", WS_XB, ACT)
    srd_off(p, SSS, "s50", "s51", WS_SS, S * 64)
    srd_off(p, SMU, "s50", "s51", WS_MU, S * 4)
    srd_off(p, SDM, "s50", "s51", WS_DM, S * 4)
    p += [bload("buffer_load_dwordx2", "v[38:39]", "v37", s(SSS, 4)),
          bload("buffer_load_dword", "v40", v(V_ROW4), s(SMU, 4)), bload("buffer_load_dword", "v41", v(V_ROW4), s(SDM, 4)),
          bload("buffer_load_dwordx4", v(44, 4), v(V_FO), s(SXB, 4)),
          bload("buffer_load_dwordx4", v(48, 4), v(V_FO), s(SXB, 4), off=2048),
          bload("buffer_load_dword", v(52), v(V_FO8), s(SXB, 4))]
    for c in range(16):
        for h in range(2):
            p.append(bload("buffer_load_dwordx4", v(RA + 8 * c + 4 * h, 4), v(V_FO), s(SP, 4), so(c), off=2048 * h, flags=ld_flags))
    if last:
        srd(p, SOUT, "s44", "s45", ACT)
    else:
        srd_off(p, SXA, "s50", "s51", WS_XA, ACT)
        srd_off(p, SRS, "s50", "s51", WS_RSTD, S * 4)
    LO, HI = s(68), s(69)
    p += [salu("s_mov_b32", LO, "0x3f80"), salu("s_mov_b32", HI, "0x3f800000")]

    def acc(dst, src, first):
        for d in range(4):
            if first:
                unpack(p, dst + 2 * d, v(src + d))
            else:
                p.append(valu("v_dot2c_f32_bf16", v(dst + 2 * d), LO, v(src + d), rmw=True))
                p.append(valu("v_dot2c_f32_bf16", v(dst + 2 * d + 1), HI, v(src + d), rmw=True))
    A8 = 84
    for i in range(4):
        acc(A8, R8 + 4 * i, i == 0)
    p += [dsw("ds_write_b128", "v35", v(A8, 4), tag="s8"), dsw("ds_write_b128", "v35", v(A8 + 4, 4), 16, tag="s8")]
    RS2 = "v38"
    p.append(valu("v_add_f32", RS2, "v38", "v39"))
    xsum(p, RS2, T)
    p += [valu("v_mov_b32", T, f32(1e-5)), valu("v_fmac_f32", T, f32(1.0 / D), RS2, rmw=True), valu("v_rcp_f32", RS2, T),
          valu("v_add_f32", "v40", "v40", "v41")]
    p += [wait(lgkm=["s8"]), barrier()]
    for i in range(4):
        p.append(dsr("ds_read_b64", v(R8 + 2 * i, 2), "v36", 2048 * i))
    for c in range(16):
        for h in range(2):
            acc(Y + 8 * h, RA + 8 * c + 4 * h, c == 0)
    for e in range(2):
        p += [valu("v_add_f32", v(R8 + e), v(R8 + e), v(R8 + 2 + e)), valu("v_add_f32", v(R8 + 4 + e), v(R8 + 4 + e), v(R8 + 6 + e)),
              valu("v_add_f32", v(Y + 16 + e), v(R8 + e), v(R8 + 4 + e))]
    for i in range(9):
        unpack(p, 54, v(44 + i))
        p += [valu("v_fma_f32", v(Y + 2 * i), v(Y + 2 * i), RS2, "v54"), valu("v_fma_f32", v(Y + 2 * i + 1), v(Y + 2 * i + 1), RS2, "v55")]
    if not last:
        centre_and_store(p, SXA, SRS, SMU, "v40")
    else:
        for i in range(18):
            p.append(valu("v_add_f32", v(Y + i), v(Y + i), "v40"))
        for i in range(9):
            p.append(valu("v_cvt_pk_bf16_f32", v(24 + i), v(Y + 2 * i), v(Y + 2 * i + 1)))
        p += [bstore("buffer_store_dwordx2", v(24, 2), v(V_RO), s(SOUT, 4)),
              bstore("buffer_store_dwordx2", v(26, 2), v(V_RO), s(SOUT, 4), off=32),
              bstore("buffer_store_dwordx2", v(28, 2), v(V_RO), s(SOUT, 4), off=128),
              bstore("buffer_store_dwordx2", v(30, 2), v(V_RO), s(SOUT, 4), off=160),
              bstore("buffer_store_dword", v(32), v(V_RO8), s(SOUT, 4))]
```

```python
import sys, os
sys.path.insert(0, os.path.dirname(os.path.abspath(__file__)))
from asm import *
from layout import *
import rows, a1, a2, b1

NAME = "interleave_layers__sliding_local_dilated__glu_gated_bilinear__prompt"
out = sys.argv[1]
kw = dict(x.split("=") for x in sys.argv[2:])
I = lambda k, d: int(kw.get(k, d))
nc = I("nc", 4)
stamps = I("stamps", 0)


def stamp_begin(p):
    if not stamps: return
    p += [Ins("s_memrealtime s[96:97]", "smem", wr="s[96:97]"), Ins("s_memtime s[98:99]", "smem", wr="s[98:99]"), wait(lgkm_all=True)]


def stamp_end(p, idx):
    if not stamps: return
    p += [wait(vm_all=True, lgkm_all=True), Ins("s_memrealtime s[92:93]", "smem", wr="s[92:93]"), Ins("s_memtime s[94:95]", "smem", wr="s[94:95]"),
          sload(90, 2, K_WS), wait(lgkm_all=True),
          salu("s_add_u32", "s90", "s90", WS_STAMP + idx * 16384), salu("s_addc_u32", "s91", "s91", 0),
          valu("v_lshrrev_b32", "v1", 6, "v0"), salu("s_lshl_b32", "s89", "s2", 2), valu("v_add_u32", "v1", "s89", "v1"), valu("v_lshlrev_b32", "v1", 4, "v1"),
          valu("v_mov_b32", "v4", "s96"), valu("v_mov_b32", "v5", "s98"), valu("v_mov_b32", "v6", "s92"), valu("v_mov_b32", "v7", "s94"),
          Ins("global_store_dwordx4 v1, v[4:7], s[90:91]", "vst", rd=["v1", "v[4:7]", "s[90:91]"])]


def kernel(name, fn, idx, vgpr=512, accum=256):
    p = [scmp("s_cmp_ge_u32", "s2", 256), raw(f"s_cbranch_scc1 L_{name}_end", "branch")]
    stamp_begin(p)
    fn(p)
    stamp_end(p, idx)
    p += [label(f"L_{name}_end"), raw("s_endpgm")]
    return kernel_header(name) + "\n" + text(finalize(p, verbose=I("v", 0))), kernel_desc(name, vgpr=vgpr, accum=accum)


def k_a1(warm):
    def f(p):
        late = a1.setup(p, warm=warm, nc=nc)
        a1.body(p, late, warm=warm, la=I("a1la", 3))
    return f


def k_a2(p):
    late = a2.setup(p)
    a2.body(p, late, la=I("a2la", 4))


def k_b1(p):
    b1.setup(p, nc=nc)
    b1.body(p, nb=I("nb", 4), nb0=I("nb0", 2), la=I("la", 24), pro=I("pro", 22), sets=I("sets", 3), dmagap=I("dmagap", 6),
            store_flags=kw.get("sf", "").replace("+", " "), verbose=I("v", 0))


K = [(NAME + "_kernel", rows.prep, 9216, 128, 128), ("a1w_kernel", k_a1(True), a1.LDS_BYTES, 512, 256), ("a2_kernel", k_a2, a2.LDS_BYTES, 512, 256),
     ("b1_kernel", k_b1, b1.LDS_BYTES, 512, 256), ("b2_kernel", lambda p: rows.b2(p, False), 9216, 256, 256),
     ("a1_kernel", k_a1(False), a1.LDS_BYTES, 512, 256), ("b2l_kernel", lambda p: rows.b2(p, True), 9216, 256, 256)]
order = [0, 1, 2, 3, 4, 5, 2, 3, 6]
if stamps:
    K += [("a2b_kernel", k_a2, a2.LDS_BYTES, 512, 256), ("b1b_kernel", k_b1, b1.LDS_BYTES, 512, 256)]
    order = [0, 1, 2, 3, 4, 5, 7, 8, 6]
order = order[:I("n", 9)]
head = open(os.path.join(os.path.dirname(os.path.abspath(__file__)), "..", NAME + ".s.ref")).read().split("; Override")[0]
src = head + "; Generated by gen/build.py (hand-scheduled generator scripts in gen/).\n"
for i in order:
    src += f"; @launch kernel={K[i][0]} grid=(256,1,1) block=(256,1,1) lds={K[i][2]}\n"
src += '.amdgcn_target "amdgcn-amd-amdhsa--gfx950"\n.text\n'
descs = []
for i in sorted(set(order)):
    name, fn, lds, vg, ac = K[i]
    t, d = kernel(name, fn, order.index(i), vg, ac)
    src += t + "\n"; descs.append(d)
src += '.section .rodata,"a"\n' + "".join(".p2align 6\n" + d + "\n" for d in descs)
open(out, "w").write(src)
```

```python
import math
from asm import *
from layout import *

import sync
SXA, SRS, SOF = 4, 8, 12
SWQ, SWO = 44, 60
S_HP = G_C
S_W, S_R = G_W, G_R
S_MH = 35
S_W4K = 66
S_T0, S_T1, S_T2 = 36, 37, 38
S_K = 48
S_MASK = 64
S_PLO, S_PHI, S_ONE = 32, 33, 34
STG = WQ_SLICE
PITCH = 240
LDS_BYTES = STG + 144 * PITCH
V_LIN, V_LIN2, V_LH, V_LH2, V_LX = 1, 2, 3, 4, 19
V_XH, V_XO, V_DW = 5, 6, 7
V_RS = 8
V_SH, V_SH4, V_SO = 11, 12, 13
V_KV, V_Q, V_O, V_O8 = 14, 15, 16, 17
V_NEG = 18
V_PA = 25
V_FR = 176
V_ACC = 112
V_WP, V_W3 = 250, 251


def xa(i, sx):
    return a(72 * i + 4 * sx, 4)


def wq_setup(enable=None):
    p = []
    srd_off(p, SWQ, s(G_WS), s(G_WS + 1), WS_WQ, 16 * WQ_SLICE)
    if enable is not None:
        p += [scmp("s_cmp_eq_u32", s(G_LAYER), 0), salu("s_cselect_b32", s(SWQ + 2), s(SWQ + 2), 0)]
    p += [salu("s_mul_i32", s(S_T0), s(S_HP), WQ_SLICE), salu("s_lshl_b32", s(S_W4K), s(S_W), 12), salu("s_add_u32", s(S_T0), s(S_T0), s(S_W4K)),
          valu("v_and_b32", v(V_DW), 63, "v0"), valu("v_lshlrev_b32", v(V_DW), 4, v(V_DW)), valu("v_add_u32", v(V_DW), s(S_T0), v(V_DW))]
    return p


def wq_round(rho, sreg):
    out = [salu("s_add_u32", "m0", s(S_W4K), 16384 * rho), salu("s_mov_b32", sreg, 16384 * rho)]
    out += [dma(v(V_DW), s(SWQ, 4), sreg, off=1024 * i, tag=("wq", rho)) for i in range(4)]
    return out


def wq_piece(rho, i, sreg):
    r = wq_round(rho, sreg)
    return r[:2] + [r[2 + i]]


def setup(p):
    L, M, Q, T, T2 = "v20", "v21", "v22", "v23", "v24"
    p += [valu("v_and_b32", L, 63, "v0"), valu("v_and_b32", M, 15, L), valu("v_lshrrev_b32", Q, 4, L),
          valu("v_lshlrev_b32", v(V_LIN), 4, L), valu("v_add_u32", v(V_LIN2), 65536, v(V_LIN)),
          valu("v_add_u32", v(V_LX), STG + 2048, v(V_LIN)),
          salu("s_lshl_b32", s(S_T0), s(S_W), 10), valu("v_add_u32", v(V_LH), s(S_T0), v(V_LIN)),
          valu("v_add_u32", v(V_LH2), 65536, v(V_LH)),
          salu("s_lshl_b32", s(S_T0), s(S_R), 3), salu("s_max_u32", s(S_T1), s(S_T0), 1), salu("s_sub_u32", s(S_T1), s(S_T1), 1),
          salu("s_lshl_b32", s(S_T2), s(S_W), 1), salu("s_add_u32", s(S_T0), s(S_T0), s(S_T2)),
          valu("v_lshlrev_b32", T, 2, M), salu("s_lshl_b32", s(S_T2), s(S_T1), 6), valu("v_add_u32", v(V_RS), s(S_T2), T),
          salu("s_lshl_b32", s(S_T2), s(S_T0), 6), valu("v_add_u32", v(V_RS + 1), s(S_T2), T),
          salu("s_mul_i32", s(S_T1), s(S_T1), MT), salu("s_mul_i32", s(S_MH), s(S_W), 5120), salu("s_add_u32", s(S_T1), s(S_T1), s(S_MH)),
          valu("v_add_u32", v(V_XH), s(S_T1), v(V_LIN)), salu("s_add_u32", s(S_MH), s(S_MH), STG + 2048),
          salu("s_mul_i32", s(S_T0), s(S_T0), MT), valu("v_add_u32", v(V_XO), s(S_T0), v(V_LIN)),
          salu("s_max_u32", s(S_T0), s(S_R), 1), salu("s_sub_u32", s(S_T0), s(S_T0), 1), salu("s_lshl_b32", s(S_T0), s(S_T0), 7),
          salu("s_add_u32", s(S_T0), s(S_T0), 56), valu("v_and_b32", T, 1, L), valu("v_lshl_add_u32", T, T, 2, s(S_T0)),
          vcmp("v_cmp_gt_u32", "vcc", 16, L), cnd(v(V_PA), T, v(GV_POLL))]
    for i in range(5):
        p += [salu("s_mov_b32", s(S_K + i), 4096 * i), salu("s_mov_b32", s(S_K + 5 + i), MT + 4096 * i)]
    srd_off(p, SXA, s(G_LB), s(G_LB + 1), L_XA, ACT)
    srd_off(p, SRS, s(G_LB), s(G_LB + 1), L_RSTD, S * 4)
    late = []
    srd_off(late, SOF, s(G_LB), s(G_LB + 1), L_OF, ACT)
    late += [valu("v_mul_u32_u24", T, PITCH, M), valu("v_lshl_add_u32", T, Q, 3, T),
             valu("v_add_u32", v(V_SH4), STG + 32 * 4, T),
             salu("s_lshl_b32", s(S_T0), s(S_W), 5), salu("s_add_u32", s(S_T1), s(S_T0), STG), valu("v_add_u32", v(V_SH), s(S_T1), T),
             salu("s_mul_i32", s(S_T0), s(S_T0), PITCH), salu("s_add_u32", s(S_T0), s(S_T0), STG + 16 * PITCH),
             valu("v_add_u32", v(V_SO), s(S_T0), T)]
    HH = s(39)
    late += [salu("s_and_b32", HH, s(S_W), 1), salu("s_lshr_b32", s(S_T0), s(S_W), 1), salu("s_lshl_b32", s(S_T0), s(S_T0), 6),
             valu("v_add_u32", T, s(S_T0), L),
             valu("v_mul_u32_u24", T2, PITCH, T),
             salu("s_mul_i32", s(S_T1), HH, 80), salu("s_add_u32", s(S_T1), s(S_T1), STG + 2 * PITCH), valu("v_add_u32", v(V_KV), s(S_T1), T2),
             salu("s_mul_i32", s(S_T1), HH, 36), salu("s_add_u32", s(S_T1), s(S_T1), STG + 16 * PITCH + 152), valu("v_add_u32", v(V_Q), s(S_T1), T2),
             salu("s_lshl_b32", s(S_T1), s(S_R), 7), valu("v_add_u32", T, s(S_T1), T)]
    for w in range(1, 8):
        late.append(vcmp("v_cmp_le_u32", s(S_MASK + 2 * (w - 1), 2), 2 * w, T))
    late += [valu("v_lshrrev_b32", T2, 4, T), valu("v_mul_u32_u24", T2, MT, T2), valu("v_lshl_add_u32", T2, M, 4, T2),
             salu("s_lshl_b32", s(S_T1), s(S_HP), 1), salu("s_add_u32", s(S_T1), s(S_T1), HH), salu("s_lshl_b32", s(S_T1), s(S_T1), 9),
             valu("v_add_u32", v(V_O), s(S_T1), T2),
             salu("s_lshr_b32", s(S_T1), s(S_HP), 1), salu("s_add_u32", s(S_T1), s(S_T1), 64), salu("s_lshl_b32", s(S_T1), s(S_T1), 8),
             salu("s_and_b32", s(S_T2), s(S_HP), 1), salu("s_lshl_b32", s(S_T2), s(S_T2), 3), salu("s_add_u32", s(S_T1), s(S_T1), s(S_T2)),
             salu("s_lshl_b32", s(S_T2), HH, 2), salu("s_add_u32", s(S_T1), s(S_T1), s(S_T2)),
             valu("v_add_u32", v(V_O8), s(S_T1), T2),
             valu("v_mov_b32", v(V_NEG), f32(-1e9 * math.log2(math.e))),
             salu("s_mov_b32", s(S_PLO), "0x05040100"), salu("s_mov_b32", s(S_PHI), "0x07060302"), salu("s_mov_b32", s(S_ONE), "0x3f803f80")]
    srd_off(late, SWO, s(G_WS), s(G_WS + 1), WS_WO, 37 * MT)
    late += [salu("s_and_b32", s(S_T0), s(G_C), 3), salu("s_and_b32", s(S_T1), s(S_T0), 1), salu("s_mul_i32", s(S_T0), s(S_T0), 9),
             salu("s_add_u32", s(S_T2), s(S_T0), s(S_T1)), salu("s_xor_b32", s(S_T1), s(S_T1), 1), salu("s_lshl_b32", s(S_T1), s(S_T1), 3),
             salu("s_add_u32", s(S_T0), s(S_T0), s(S_T1)),
             salu("s_lshl_b32", s(S_T1), s(S_W), 1), salu("s_add_u32", s(S_T2), s(S_T2), s(S_T1)),
             salu("s_mul_i32", s(S_T2), s(S_T2), MT), valu("v_add_u32", v(V_WP), s(S_T2), v(V_LIN)),
             scmp("s_cmp_lt_u32", s(S_W), 2), salu("s_cselect_b32", s(S_T0), s(S_T0), 36),
             salu("s_mul_i32", s(S_T0), s(S_T0), MT), valu("v_add_u32", v(V_W3), s(S_T0), v(V_LIN))]
    return late


def wo_load(i, sx):
    k, o = sx >> 2, 1024 * (sx & 3)
    return bload("buffer_load_dwordx4", xa(i, sx), v(V_W3 if i == 2 else V_WP), s(SWO, 4), s(S_K + k + (5 if i == 1 else 0)), off=o)


def body(p, late, tail, la=5, st_flags="", ld_flags="sc1", wo_early=8, T=None):
    skip = sync.uid("a1np")
    p += [scmp("s_cmp_eq_u32", s(G_LAYER), 0), raw(f"s_cbranch_scc1 {skip}", "branch")]
    q = sync.poll(F_A, False, s(S_T0), tail, addr=v(V_PA))
    p += [raw(i.text, "branch" if i.kind == "branch" else "raw") if i.kind != "label" else i for i in finalize(q)]
    p.append(label(skip))
    if T: T(p)

    def xl(sx):
        k, o = sx >> 2, 1024 * (sx & 3)
        return [bload("buffer_load_dwordx4", xa(0, sx), v(V_XO), s(SXA, 4), s(S_K + k), off=o, flags=ld_flags),
                bload("buffer_load_dwordx4", xa(1, sx), v(V_XO), s(SXA, 4), s(S_K + 5 + k), off=o, flags=ld_flags)]

    def fr(sx, n):
        return V_FR + 36 * (sx & 1) + 4 * n

    def reads(sx):
        out = []
        for n in range(8):
            off = (7 * sx + (n if n < 7 else 0)) * 1024
            base = (V_LIN, V_LIN2) if n < 7 else (V_LH, V_LH2)
            out.append(dsr("ds_read_b128", v(fr(sx, n), 4), v(base[off >> 16]), off & 65535))
        out.append(dsr("ds_read_b128", v(fr(sx, 8), 4), v(V_LX), 1024 * sx))
        return out

    acc = lambda t, n: V_ACC + 28 * t + 4 * n
    HA, HB_ = V_ACC + 56, V_ACC + 60
    p += xl(0)
    p.append(salu("s_mov_b32", "m0", s(S_MH)))
    p += [dma(v(V_XH), s(SXA, 4), "0", off=1024 * i, flags=ld_flags, tag="xh") for i in range(4)]
    p += [salu("s_add_u32", "m0", s(S_MH), 4096), dma(v(V_XH), s(SXA, 4), s(S_K + 1), flags=ld_flags, tag="xh")]
    for sx in range(1, la):
        p += xl(sx)
    p += [bload("buffer_load_dword", v(V_RS + 2), v(V_RS + 1), s(SRS, 4), off=64, flags=ld_flags),
          bload("buffer_load_dword", v(V_RS), v(V_RS), s(SRS, 4), flags=ld_flags),
          bload("buffer_load_dword", v(V_RS + 1), v(V_RS + 1), s(SRS, 4), flags=ld_flags)]
    p += late
    p += [wait(vm=["xh"]), barrier()]
    p += reads(0)
    w3 = [wo_load(2, sx) for sx in range(18)]
    for sx in range(18):
        fill = reads(sx + 1) if sx + 1 < 18 else []
        ld = xl(sx + la) if sx + la < 18 else [w3.pop(0) for _ in range(min(len(w3), 4))]
        ms = []
        first = sx == 0
        for n in range(7):
            for t in range(2):
                c = v(acc(t, n), 4)
                ms.append(mfma16(c, v(fr(sx, n), 4), xa(t, sx), "0" if first else c))
        ms.append(mfma16(v(HA, 4), v(fr(sx, 7), 4), v(fr(sx, 8), 4), "0" if first else v(HA, 4)))
        ms.append(mfma16(v(HB_, 4), v(fr(sx, 4), 4), v(fr(sx, 8), 4), "0" if first else v(HB_, 4)))
        for k, m in enumerate(ms):
            p.append(m)
            if fill:
                p.append(fill.pop(0))
            elif ld:
                p.append(ld.pop(0))
        p += fill + ld
    p.append(barrier())
    if T: T(p)
    wo = w3 + [wo_load(i, sx) for sx in range(18) for i in range(2)]
    n_early = len(w3) + 2 * wo_early
    early, rest = wo[:n_early], wo[n_early:]
    tiles = [(HA, V_RS, V_SH, 0), (HB_, V_RS, V_SH4, 0)] + \
            [(acc(t, n), V_RS + 1 + t, V_SO, 16 * PITCH * t + 32 * n) for n in range(7) for t in range(2)]
    tiles = tiles[2:] + tiles[:2]
    for k, (c, rs, ad, off) in enumerate(tiles):
        tt = V_FR + 2 * (k & 3)
        for e in range(4):
            p.append(valu("v_mul_f32", v(c + e), v(c + e), v(rs)))
        p += [valu("v_cvt_pk_bf16_f32", v(tt), v(c), v(c + 1)), valu("v_cvt_pk_bf16_f32", v(tt + 1), v(c + 2), v(c + 3)),
              dsw("ds_write_b64", v(ad), v(tt, 2), off)]
        if early: p.append(early.pop(0))
    p += early
    p += [wait(lgkm_all=True), barrier()]
    if T: T(p)
    KV, Qr, LG, PP, O, TM = 36, 196, 208, 216, 220, 238
    for i in range(4):
        p.append(Ins(f"ds_read2_b32 {v(Qr + 2 * i, 2)}, {v(V_Q)} offset0:{2 * i} offset1:{2 * i + 1}", "dsr", rd=[v(V_Q)], wr=[v(Qr + 2 * i, 2)]))
    p.append(dsr("ds_read_b32", v(Qr + 8), v(V_Q), 32))

    def kvread(w, pc):
        off = 2 * PITCH * (7 - w) + 16 * pc
        if pc < 4:
            return dsr("ds_read_b128", v(KV + 20 * w + 4 * pc, 4), v(V_KV), off)
        return dsr("ds_read_b64", v(KV + 20 * w + 16, 2), v(V_KV), off)
    for w in range(8):
        p += [kvread(w, pc) for pc in range(3)]
    vreads = [kvread(w, pc) for w in range(8) for pc in (3, 4)]
    for half in range(2):
        for i in range(9):
            for w in range(4 * half, 4 * half + 4):
                if i == 0:
                    p.append(valu("v_dot2_f32_bf16", v(LG + w), v(Qr), v(KV + 20 * w), 0))
                else:
                    p.append(valu("v_dot2_f32_bf16", v(LG + w), v(Qr + i), v(KV + 20 * w + i), v(LG + w)))
            if half == 0 and vreads:
                p += [vreads.pop(0), vreads.pop(0)]
    assert not vreads
    cs = f32(DH ** -0.5 * math.log2(math.e))
    for w in range(8):
        p.append(valu("v_mul_f32", v(LG + w), cs, v(LG + w)))
    for w in range(1, 8):
        p.append(cnd(v(LG + w), v(V_NEG), v(LG + w), s(S_MASK + 2 * (w - 1), 2)))
    MX = v(TM + 8)
    p += [valu("v_max3_f32", MX, v(LG), v(LG + 1), v(LG + 2)), valu("v_max3_f32", v(TM + 9), v(LG + 3), v(LG + 4), v(LG + 5)),
          valu("v_max3_f32", MX, MX, v(LG + 6), v(LG + 7)), valu("v_max_f32", MX, MX, v(TM + 9))]
    for w in range(8):
        p.append(valu("v_sub_f32", v(LG + w), v(LG + w), MX))
    for w in range(8):
        p.append(valu("v_exp_f32", v(LG + w), v(LG + w)))
    for j in range(4):
        p.append(valu("v_cvt_pk_bf16_f32", v(PP + j), v(LG + 2 * j), v(LG + 2 * j + 1)))
    SUM = v(TM + 10)
    p.append(valu("v_dot2_f32_bf16", SUM, v(PP), s(S_ONE), 0))
    for j in range(1, 4):
        p.append(valu("v_dot2_f32_bf16", SUM, v(PP + j), s(S_ONE), SUM))
    k = 0
    pend = []
    for j in range(4):
        for i in range(9):
            x0, x1 = v(KV + 20 * (2 * j) + 9 + i), v(KV + 20 * (2 * j + 1) + 9 + i)
            t = TM + 2 * (k & 3); k += 1
            p += [valu("v_perm_b32", v(t), x1, x0, s(S_PLO)), valu("v_perm_b32", v(t + 1), x1, x0, s(S_PHI))]
            p += pend
            pend = [valu("v_dot2_f32_bf16", v(O + 2 * i + e), v(PP + j), v(t + e), 0 if j == 0 else v(O + 2 * i + e)) for e in range(2)]
            if j == 1 and i == 0:
                p.append(valu("v_rcp_f32", SUM, SUM))
    p += pend
    for d in range(18):
        p.append(valu("v_mul_f32", v(O + d), v(O + d), SUM))
    for i in range(9):
        p.append(valu("v_cvt_pk_bf16_f32", v(Qr + i), v(O + 2 * i), v(O + 2 * i + 1)))
    p += [bstore("buffer_store_dwordx4", v(Qr, 4), v(V_O), s(SOF, 4), flags=st_flags),
          bstore("buffer_store_dwordx4", v(Qr + 4, 4), v(V_O), s(SOF, 4), off=256, flags=st_flags),
          bstore("buffer_store_dword", v(Qr + 8), v(V_O8), s(SOF, 4), flags=st_flags)]
    if T: T(p)
    return rest
```

```python
from asm import *
from layout import *

import sync
from a1 import S_K, xa as wa
SOF, SXA, SXB, SSS, SDM = 64, 68, 72, 76, 44
S_W = G_W
S_M0, S_F0, S_F1 = 3, 58, 59
S_T0, S_T1, S_T2, S_T3 = 36, 37, 38, 39
DMB = 2 * MT
LDS_BYTES = DMB + 1280
V_LIN, V_L3 = 160, 161
V_DO = 162
V_XP, V_X3 = 163, 164
V_DMW, V_DMR, V_DMR3, V_DMG, V_SSG = 165, 166, 167, 168, 169
V_BF = 32
V_ACC = 64
V_RES = 84


def setup(p):
    L, M, T, T2, OB = "v170", "v171", "v173", "v174", "v175"
    PB, ST, W1, RB, CB = s(32), s(33), s(34), s(35), s(40)
    p += [valu("v_and_b32", L, 63, "v0"),
          valu("v_and_b32", M, 15, L), valu("v_lshlrev_b32", v(V_LIN), 4, L), valu("v_mov_b32", OB, OOB),
          salu("s_lshl_b32", RB, s(G_R), 2), salu("s_lshr_b32", s(S_T0), s(G_C), 2), salu("s_add_u32", RB, RB, s(S_T0)),
          salu("s_and_b32", CB, s(G_C), 3),
          salu("s_mul_i32", s(S_M0), s(S_W), 9216), salu("s_and_b32", W1, s(S_W), 1),
          salu("s_mul_i32", s(S_T3), RB, 2 * MT),
          salu("s_add_u32", s(S_T0), s(S_T3), s(S_M0)), valu("v_add_u32", v(V_DO), s(S_T0), v(V_LIN)),
          salu("s_mul_i32", s(S_T0), CB, 9), salu("s_and_b32", s(S_T1), CB, 1),
          salu("s_add_u32", PB, s(S_T0), s(S_T1)), salu("s_xor_b32", s(S_T1), s(S_T1), 1), salu("s_lshl_b32", s(S_T1), s(S_T1), 3),
          salu("s_add_u32", ST, s(S_T0), s(S_T1)),
          salu("s_lshl_b32", s(S_T0), s(S_W), 1), salu("s_add_u32", PB, PB, s(S_T0)),
          scmp("s_cmp_lt_u32", s(S_W), 2), salu("s_cselect_b32", s(S_T2), 0, OOB),
          salu("s_lshl_b32", s(S_T0), PB, 9), salu("s_add_u32", s(S_T0), s(S_T0), s(S_T3)), valu("v_add_u32", v(V_XP), s(S_T0), v(V_LIN)),
          salu("s_lshr_b32", s(S_T0), ST, 1), salu("s_lshl_b32", s(S_T0), s(S_T0), 10), salu("s_and_b32", s(S_T1), ST, 1),
          salu("s_lshl_b32", s(S_T1), s(S_T1), 3), salu("s_add_u32", s(S_T0), s(S_T0), s(S_T1)),
          salu("s_mul_i32", s(S_T1), W1, MT), valu("v_add_u32", v(V_L3), s(S_T1), v(V_LIN)),
          salu("s_add_u32", s(S_T0), s(S_T0), s(S_T3)), valu("v_add_u32", v(V_X3), s(S_T0), v(V_L3)),
          valu("v_or_b32", v(V_X3), s(S_T2), v(V_X3))]
    srd_off(p, SOF, s(G_LB), s(G_LB + 1), L_OF, ACT)
    srd_off(p, SXA, s(G_LB), s(G_LB + 1), L_XA, ACT)
    srd_off(p, SXB, s(G_LB), s(G_LB + 1), L_XB, ACT)
    srd_off(p, SSS, s(G_LB), s(G_LB + 1), L_SS, S * 64)
    srd_off(p, SDM, s(G_LB), s(G_LB + 1), L_DM, S * 4)
    p += [valu("v_lshlrev_b32", T, 2, M), valu("v_add_u32", v(V_DMR), DMB, T),
          salu("s_lshl_b32", s(S_T0), W1, 6), valu("v_add_u32", v(V_DMR3), s(S_T0), v(V_DMR)),
          valu("v_lshlrev_b32", T2, 2, "v0"), valu("v_add_u32", T2, DMB + 128, T2),
          valu("v_and_b32", T, 0xb0, "v0"), vcmp("v_cmp_eq_u32", "vcc", 0x80, T), cnd(v(V_DMW), T2, v(V_DMR3)),
          salu("s_lshl_b32", s(S_T0), RB, 7), salu("s_sub_u32", s(S_T0), s(S_T0), DMB),
          valu("v_add_u32", T2, s(S_T0), v(V_DMR3)), cnd(v(V_DMG), OB, T2),
          scmp("s_cmp_eq_u32", CB, 0), salu("s_cselect_b32", s(S_T1), 0, OOB), valu("v_or_b32", v(V_DMG), s(S_T1), v(V_DMG)),
          valu("v_lshrrev_b32", T, 5, L), valu("v_lshl_add_u32", T, T, 4, M), valu("v_lshlrev_b32", T, 6, T),
          salu("s_lshl_b32", s(S_T0), RB, 11), salu("s_lshl_b32", s(S_T1), CB, 4), salu("s_add_u32", s(S_T0), s(S_T0), s(S_T1)),
          salu("s_lshl_b32", s(S_T1), s(S_W), 2), salu("s_add_u32", s(S_T0), s(S_T0), s(S_T1)),
          valu("v_add_u32", v(V_SSG), s(S_T0), T),
          scmp("s_cmp_eq_u32", s(S_W), 0), salu("s_cselect_b32", s(S_F0), "1.0", 0),
          scmp("s_cmp_eq_u32", s(S_W), 1), salu("s_cselect_b32", s(S_F1), "1.0", 0)]


def residual_loads():
    return [bload("buffer_load_dwordx4", v(V_RES, 4), v(V_XP), s(SXA, 4), flags="sc1"),
            bload("buffer_load_dwordx4", v(V_RES + 4, 4), v(V_XP), s(SXA, 4), s(S_K + 5), flags="sc1"),
            bload("buffer_load_dwordx2", v(V_RES + 8, 2), v(V_X3), s(SXA, 4), flags="sc1")]


def body(p, extra, st_flags="", ld_flags="", T=None):
    for g in range(3):
        p += [salu("s_add_u32", "m0", s(S_M0), 4096 * g)]
        p += [dma(v(V_DO), s(SOF, 4), s(S_K + g), off=1024 * i, tag="o", flags=ld_flags) for i in range(4 if g < 2 else 1)]

    def bf(sx, i):
        return v(V_BF + 12 * (sx & 1) + 4 * i, 4)

    def reads(sx):
        return [dsr("ds_read_b128", bf(sx, 0), v(V_LIN), 1024 * sx), dsr("ds_read_b128", bf(sx, 1), v(V_LIN), MT + 1024 * sx),
                dsr("ds_read_b128", bf(sx, 2), v(V_L3), 1024 * sx)]
    p += [wait(vm=["o"]), barrier()]
    if T: T(p)
    p += reads(0)
    acc = [v(V_ACC + 4 * i, 4) for i in range(5)]
    for sx in range(18):
        fill = (reads(sx + 1) if sx + 1 < 18 else [])
        ld = extra.pop(0) if extra else []
        ms = [(4, 2, 2), (0, 0, 0), (1, 0, 1), (2, 1, 0), (3, 1, 1)]
        for k, (c, wi, bi) in enumerate(ms):
            p.append(mfma16(acc[c], wa(wi, sx), bf(sx, bi), "0" if sx == 0 else acc[c]))
            if fill: p.append(fill.pop(0))
            if ld and k >= 2: p.append(ld.pop(0))
        p += ld
    if T: T(p)
    T = "v176"
    p += [valu("v_add_f32", T, v(V_ACC + 16), v(V_ACC + 17)), dsw("ds_write_b32", v(V_DMW), T, tag="dm"),
          bstore("buffer_store_dword", T, v(V_DMG), s(SDM, 4), flags=st_flags)]
    U = 32
    src = {0: V_RES, 2: V_RES + 2, 1: V_RES + 4, 3: V_RES + 6, 4: V_RES + 8}
    p += [wait(lgkm=["dm"]), barrier(),
          dsr("ds_read_b32", "v177", v(V_DMR)), dsr("ds_read_b32", "v178", v(V_DMR), 64), dsr("ds_read_b32", "v179", v(V_DMR3))]
    for c in range(5):
        for d in range(2):
            r = v(src[c] + d); e = V_ACC + 4 * c + 2 * d
            p += [valu("v_lshlrev_b32", v(U), 16, r), valu("v_and_b32", v(U + 1), "0xffff0000", r),
                  valu("v_add_f32", v(e), v(e), v(U)), valu("v_add_f32", v(e + 1), v(e + 1), v(U + 1))]
    dm = {0: "v177", 2: "v177", 1: "v178", 3: "v178", 4: "v179"}
    for c in range(5):
        for e in range(4):
            p.append(valu("v_sub_f32", v(V_ACC + 4 * c + e), v(V_ACC + 4 * c + e), dm[c]))
    dst = {0: 36, 2: 38, 1: 40, 3: 42, 4: 44}
    for c in (0, 2, 1, 3, 4):
        for d in range(2):
            e = V_ACC + 4 * c + 2 * d
            p.append(valu("v_cvt_pk_bf16_f32", v(dst[c] + d), v(e), v(e + 1)))
    p += [bstore("buffer_store_dwordx4", v(36, 4), v(V_XP), s(SXB, 4), flags=st_flags),
          bstore("buffer_store_dwordx4", v(40, 4), v(V_XP), s(SXB, 4), s(S_K + 5), flags=st_flags),
          bstore("buffer_store_dwordx2", v(44, 2), v(V_X3), s(SXB, 4), flags=st_flags)]
    ss = {0: "v48", 2: "v48", 1: "v49", 3: "v49", 4: "v50"}
    seen = set()
    for e in range(4):
        for c in (0, 1, 4, 2, 3):
            x = v(V_ACC + 4 * c + e)
            if ss[c] not in seen:
                seen.add(ss[c]); p.append(valu("v_mul_f32", ss[c], x, x))
            else:
                p.append(valu("v_fmac_f32", ss[c], x, x, rmw=True))
    p += [valu("v_fmac_f32", "v48", s(S_F0), "v50", rmw=True), valu("v_fmac_f32", "v49", s(S_F1), "v50", rmw=True),
          swap("v_permlane32_swap_b32", "v48", "v49"), valu("v_add_f32", "v48", "v48", "v49"),
          valu("v_mov_b32", "v49", "v48"), swap("v_permlane16_swap_b32", "v48", "v49"), valu("v_add_f32", "v48", "v48", "v49"),
          bstore("buffer_store_dword", "v48", v(V_SSG), s(SSS, 4), flags=st_flags)]
```

```python
import re

VM_MAX = 63
LGKM_MAX = 15


def regs(spec):
    out = set()
    if spec is None:
        return out
    if isinstance(spec, (list, tuple, set)):
        for s in spec:
            out |= regs(s)
        return out
    spec = spec.strip()
    if spec.startswith("-"):
        spec = spec[1:]
    if spec.startswith("abs(") or spec.startswith("|"):
        spec = spec.replace("abs(", "").replace(")", "").replace("|", "")
    m = re.fullmatch(r"([vas])\[(\d+):(\d+)\]", spec)
    if m:
        return {(m.group(1), i) for i in range(int(m.group(2)), int(m.group(3)) + 1)}
    m = re.fullmatch(r"([vas])(\d+)", spec)
    if m:
        return {(m.group(1), int(m.group(2)))}
    if spec in ("vcc", "m0", "scc", "exec"):
        return {(spec, 0)}
    return out


def R(f, lo, n=1):
    return f"{f}{lo}" if n == 1 else f"{f}[{lo}:{lo + n - 1}]"


def v(lo, n=1): return R("v", lo, n)
def a(lo, n=1): return R("a", lo, n)
def s(lo, n=1): return R("s", lo, n)


class Ins:
    __slots__ = ("text", "kind", "rd", "wr", "tag", "need", "passes", "srcc", "trans", "cost", "note", "glue")

    def __init__(self, text, kind, rd=(), wr=(), tag=None, need=None, passes=0, srcc=(), trans=False, cost=1):
        self.text = text
        self.kind = kind
        self.rd = regs(rd)
        self.wr = regs(wr)
        self.tag = tag
        self.need = need
        self.passes = passes
        self.srcc = regs(srcc)
        self.trans = trans
        self.cost = cost
        self.note = None
        self.glue = ("scc", 0) in self.rd


TRANS = ("v_exp_f32", "v_log_f32", "v_rcp_f32", "v_rsq_f32", "v_sqrt_f32", "v_sin_f32", "v_cos_f32")


def valu(op, dst, *src, extra="", rmw=False, wr_extra=(), rd_extra=()):
    rd = list(src) + ([dst] if rmw else []) + list(rd_extra)
    t = f"{op} " + ", ".join([dst] + [str(x) for x in src]) + (" " + extra if extra else "")
    base = op.replace("_e32", "").replace("_e64", "")
    return Ins(t, "valu", rd=[str(x) for x in rd], wr=[dst] + list(wr_extra), trans=base in TRANS)


def salu(op, dst, *src, scc_w=True, scc_r=False):
    t = f"{op} " + ", ".join([dst] + [str(x) for x in src])
    wr = [dst] + (["scc"] if scc_w and not op.startswith("s_mov") and not op.startswith("s_mul_i32") and not op.startswith("s_cselect") else [])
    rd = [str(x) for x in src] + (["scc"] if scc_r or op.startswith("s_cselect") or op.startswith("s_addc") or op.startswith("s_subb") else [])
    return Ins(t, "salu", rd=rd, wr=wr)


def scmp(op, x, y):
    return Ins(f"{op} {x}, {y}", "salu", rd=[str(x), str(y)], wr=["scc"])


def mfma16(d, A, B, c):
    return Ins(f"v_mfma_f32_16x16x32_bf16 {d}, {A}, {B}, {c}", "mfma", rd=[A, B, c], wr=[d], passes=4, srcc=[c], cost=2)


def mfma32(d, A, B, c):
    return Ins(f"v_mfma_f32_32x32x16_bf16 {d}, {A}, {B}, {c}", "mfma", rd=[A, B, c], wr=[d], passes=8, srcc=[c], cost=2)


def dsr(op, dst, addr, off=0, tag=None):
    assert 0 <= off < 65536, off
    return Ins(f"{op} {dst}, {addr}" + (f" offset:{off}" if off else ""), "dsr", rd=[addr], wr=[dst], tag=tag)


def dsw(op, addr, src, off=0, tag=None):
    assert 0 <= off < 65536, off
    return Ins(f"{op} {addr}, {src}" + (f" offset:{off}" if off else ""), "dsw", rd=[addr, src], tag=tag)


def bload(op, dst, voff, srd, soff="0", off=0, flags="", tag=None):
    assert 0 <= off < 4096, off
    t = f"{op} {dst}, {voff}, {srd}, {soff} offen" + (f" offset:{off}" if off else "") + (" " + flags if flags else "")
    return Ins(t, "vld", rd=[voff, srd, str(soff)], wr=[dst], tag=tag)


def bstore(op, src, voff, srd, soff="0", off=0, flags="", tag=None):
    assert 0 <= off < 4096, off
    t = f"{op} {src}, {voff}, {srd}, {soff} offen" + (f" offset:{off}" if off else "") + (" " + flags if flags else "")
    return Ins(t, "vst", rd=[src, voff, srd, str(soff)], tag=tag)


def dma(voff, srd, soff="0", off=0, flags="", tag=None, op="buffer_load_dwordx4"):
    assert 0 <= off < 4096, off
    t = f"{op} {voff}, {srd}, {soff} offen" + (f" offset:{off}" if off else "") + (" " + flags if flags else "") + " lds"
    return Ins(t, "dma", rd=[voff, srd, str(soff), "m0"], tag=tag)


def wait(vm=(), lgkm=(), vm_all=False, lgkm_all=False):
    return Ins("", "wait", need=(set(vm), set(lgkm), vm_all, lgkm_all))


def barrier():
    return Ins("s_barrier", "barrier")


def raw(text, kind="raw", rd=(), wr=()):
    return Ins(text, kind, rd=rd, wr=wr)


def label(name):
    return Ins(f"{name}:", "label")


def comment(t):
    return Ins(f"; {t}", "comment")


def _is_vec(r):
    return r[0] in ("v", "a")


def finalize(prog, state=None, verbose=False, keep=False):
    out = []
    lg = list(state[0]) if state else []
    vm = list(state[1]) if state else []
    hist = list(state[2]) if state else []
    stats = {"nops": 0, "waits": 0}

    def emit(i, states=1):
        out.append(i)
        if i.kind not in ("label", "comment"):
            hist.append((i, states))
            if len(hist) > 40:
                del hist[0]

    def do_wait(nvm, nlg):
        parts = []
        if nvm is not None and nvm < len(vm) :
            n = min(nvm, VM_MAX)
            parts.append(f"vmcnt({n})")
            del vm[:len(vm) - n]
        if nlg is not None and nlg < len(lg):
            if any(x.kind == "smem" for x in lg):
                nlg = 0
            n = min(nlg, LGKM_MAX)
            parts.append(f"lgkmcnt({n})")
            del lg[:len(lg) - n]
        if parts:
            stats["waits"] += 1
            emit(Ins("s_waitcnt " + " ".join(parts), "waitcnt"))

    def dist_need(i):
        need = 0
        d = 0
        for p, st in reversed(hist):
            req = 0
            touch = i.rd | i.wr
            if p.kind == "valu":
                vw = {r for r in p.wr if _is_vec(r)}
                sw = {r for r in p.wr if r[0] in ("s", "vcc")}
                if i.kind == "mfma" and vw & i.rd:
                    req = max(req, 2)
                if p.trans and i.kind == "valu" and not i.trans and vw & i.rd:
                    req = max(req, 1)
                if p.trans and i.kind == "valu" and i.trans and vw & i.rd:
                    req = max(req, 1)
                if i.kind == "valu" and (i.text.startswith("v_readfirstlane") or i.text.startswith("v_readlane")) and vw & i.rd:
                    req = max(req, 1)
                if i.kind == "valu" and i.text.startswith("v_permlane") and vw & touch:
                    req = max(req, 2)
                if i.kind == "valu" and ("dpp" in i.text or "row_" in i.text or "quad_perm" in i.text) and vw & i.rd:
                    req = max(req, 2)
                if i.kind == "valu" and sw & i.rd:
                    req = max(req, 4 if "lane" in i.text.split()[0] else 2)
                if i.kind in ("vld", "vst", "dma") and sw & i.rd:
                    req = max(req, 5)
                if "dot2" in p.text.split()[0] and i.kind != "mfma" and vw & touch:
                    same = i.text.split()[0] == p.text.split()[0]
                    ops = [x.strip() for x in i.text.split(None, 1)[1].split(",")] if same else []
                    if not (same and not (vw & regs(ops[1:3]))):
                        req = max(req, 3)
                if ("exec", 0) in p.wr:
                    req = max(req, 5)
                if "op_sel" in p.text or "sdwa" in p.text:
                    if i.kind == "valu" and vw & touch:
                        req = max(req, 1)
            if p.kind == "mfma":
                tbl_ab = {4: 8, 8: 12}[p.passes]
                if i.kind == "mfma":
                    ab = i.rd - i.srcc
                    if p.wr & ab:
                        req = max(req, tbl_ab)
                    if p.wr & i.srcc and not (p.wr == i.srcc and p.passes == i.passes):
                        req = max(req, {4: 6, 8: 10}[p.passes])
                    if p.wr & i.wr and not (p.wr & i.srcc):
                        req = max(req, {4: 6, 8: 10}[p.passes])
                elif i.kind in ("valu", "dsr", "dsw", "vld", "vst", "dma"):
                    if p.wr & touch:
                        req = max(req, tbl_ab)
                    if i.kind == "valu" and p.srcc & i.wr:
                        req = max(req, {4: 3, 8: 7}[p.passes])
            if p.kind == "salu" and ("m0", 0) in p.wr and i.kind == "dma":
                req = max(req, 1)
            if p.kind == "vst" and ("dwordx4" in p.text or "dwordx3" in p.text):
                data = regs(p.text.split(None, 1)[1].split(",")[0]) if p.text.startswith("buffer") else regs(p.text.split(None, 1)[1].split(",")[1])
                if data & i.wr:
                    req = max(req, 2)
            need = max(need, req - d)
            d += st
            if d >= 20:
                break
        return need

    for i in prog:
        if i.kind in ("label", "comment", "waitcnt"):
            if i.kind == "waitcnt":
                m = re.search(r"vmcnt\((\d+)\)", i.text)
                if m:
                    n = int(m.group(1))
                    if n < len(vm):
                        del vm[:len(vm) - n]
                m = re.search(r"lgkmcnt\((\d+)\)", i.text)
                if m:
                    n = int(m.group(1))
                    if n < len(lg):
                        del lg[:len(lg) - n]
            emit(i)
            continue
        if i.kind == "wait":
            vt, lt, va, la = i.need
            nvm = nlg = None
            if va:
                nvm = 0
            else:
                for k, p in enumerate(vm):
                    if p.tag in vt:
                        nvm = len(vm) - 1 - k
            if la:
                nlg = 0
            else:
                for k, p in enumerate(lg):
                    if p.tag in lt:
                        nlg = len(lg) - 1 - k
            do_wait(nvm, nlg)
            continue
        touch = i.rd | i.wr
        nvm = nlg = None
        for k, p in enumerate(vm):
            if p.wr & (i.rd if i.kind == "vld" else touch):
                nvm = len(vm) - 1 - k
        for k, p in enumerate(lg):
            if p.wr & touch:
                nlg = len(lg) - 1 - k
        do_wait(nvm, nlg)
        n = dist_need(i)
        while n > 0:
            k = min(n, 16)
            stats["nops"] += 1
            emit(Ins(f"s_nop {k - 1}", "nop"), k)
            n -= k
        emit(i)
        if i.kind in ("dsr", "dsw", "smem"):
            lg.append(i)
            if i.kind == "smem":
                lg.append(i)
        if i.kind in ("vld", "vst", "dma"):
            vm.append(i)
            if len(vm) > VM_MAX + 1 and verbose:
                print("warning: more than 64 vm ops outstanding at", i.text)
    if verbose:
        print("finalize:", stats)
    if keep:
        return out, (lg, vm, hist)
    return out


def text(prog):
    lines = []
    for i in prog:
        if i.kind in ("label",):
            lines.append(i.text)
        elif i.text:
            lines.append("  " + i.text)
    return "\n".join(lines)


def kernel_header(name):
    return f".globl {name}\n.p2align 8\n.type {name},@function\n{name}:"


def kernel_desc(name, vgpr=512, sgpr=102, accum=256):
    return f""".amdhsa_kernel {name}
  .amdhsa_next_free_vgpr {vgpr}
  .amdhsa_next_free_sgpr {sgpr}
  .amdhsa_accum_offset {accum}
  .amdhsa_group_segment_fixed_size 0
  .amdhsa_kernarg_size 80
  .amdhsa_user_sgpr_count 2
  .amdhsa_user_sgpr_kernarg_segment_ptr 1
  .amdhsa_system_sgpr_workgroup_id_x 1
  .amdhsa_float_denorm_mode_32 3
.end_amdhsa_kernel"""


def srd(p, base, lo, hi, nbytes):
    p += [salu("s_mov_b32", s(base), lo), salu("s_and_b32", s(base + 1), hi, "0xffff"),
          salu("s_mov_b32", s(base + 2), nbytes), salu("s_mov_b32", s(base + 3), "0x20000")]


def srd_off(p, base, lo, hi, off, nbytes):
    p += [salu("s_add_u32", s(base), lo, off), salu("s_addc_u32", s(base + 1), hi, 0),
          salu("s_and_b32", s(base + 1), s(base + 1), "0xffff"),
          salu("s_mov_b32", s(base + 2), nbytes), salu("s_mov_b32", s(base + 3), "0x20000")]


def sload(dst, n, off, base="s[0:1]"):
    op = {1: "s_load_dword", 2: "s_load_dwordx2", 4: "s_load_dwordx4", 8: "s_load_dwordx8"}[n]
    return Ins(f"{op} {s(dst, n)}, {base}, {off}", "smem", rd=[base], wr=[s(dst, n)])


def dpp(op, dst, a_, b_, ctrl):
    return Ins(f"{op}_dpp {dst}, {a_}, {b_} {ctrl} row_mask:0xf bank_mask:0xf", "valu", rd=[a_, b_], wr=[dst])


def swap(op, x, y):
    return Ins(f"{op} {x}, {y}", "valu", rd=[x, y], wr=[x, y])


def vcmp(op, dst, x, y):
    return Ins(f"{op} {dst}, {x}, {y}", "valu", rd=[str(x), str(y)], wr=[dst])


def cnd(dst, f, t, mask="vcc"):
    return Ins(f"v_cndmask_b32 {dst}, {f}, {t}, {mask}", "valu", rd=[str(f), str(t), mask], wr=[dst])


def f32(x):
    import struct
    return "0x%08x" % struct.unpack("<I", struct.pack("<f", x))[0]
```

```python
from asm import *
from layout import *
import sync, a1
from rows import xsum, tree_sum

S_WG, S_WU, S_WD, S_XF, S_P, S_WS = 4, 8, 12, 16, 20, 24
S_W1K, S_OFF, S_OFF2, S_T0, S_T1, S_T2 = 33, 34, 35, 36, 37, 38
S_W, S_C, S_R = G_W, G_C, G_R
V_RD = [[8, 9, 10], [11, 12, 13]]
V_RS = [14, 15, 25]
V_LX = [26, 27, 28]
V_H, V_HW, V_HS = 16, 17, 18
V_DD, V_DS, V_DW, V_DW8, V_DX = 19, 20, 21, 22, 23
V_LIN = 24
V_TMP = 32
V_FR = 56
V_XV = 96
V_ACC = [128, 192]


def xreg(sidx, t):
    if sidx < 16:
        return a(16 * sidx + 4 * t, 4)
    return v(V_XV + 16 * (sidx - 16) + 4 * t, 4)


def setup(p):
    L, I, Q, T, T2, T3 = "v1", "v2", "v3", "v4", "v5", "v6"
    p += [valu("v_and_b32", L, 63, "v0"), valu("v_and_b32", I, 15, L), valu("v_lshrrev_b32", Q, 4, L),
          valu("v_lshlrev_b32", v(V_LIN), 4, L), salu("s_lshl_b32", s(S_W1K), s(S_W), 10)]
    FG, MG, ODD = s(41), s(42), s(43)
    p += [salu("s_and_b32", FG, s(S_W), 1), salu("s_lshr_b32", MG, s(S_W), 1), salu("s_and_b32", ODD, s(S_C), 1)]
    p += [valu("v_lshrrev_b32", T, 2, I), valu("v_lshl_add_u32", T, Q, 2, T),
          valu("v_and_b32", T2, 3, I), valu("v_lshlrev_b32", T2, 3, T2),
          valu("v_lshrrev_b32", T3, 1, T), valu("v_and_b32", T3, 3, T3),
          salu("s_lshl_b32", s(S_T0), FG, 1)]
    for k in range(2):
        p += [salu("s_add_u32", s(S_T1), s(S_T0), k),
              valu("v_xor_b32", v(V_RD[k][0]), s(S_T1), T3), valu("v_lshlrev_b32", v(V_RD[k][0]), 5, v(V_RD[k][0])),
              valu("v_lshl_add_u32", v(V_RD[k][0]), T, 7, v(V_RD[k][0])), valu("v_add_u32", v(V_RD[k][0]), v(V_RD[k][0]), T2),
              valu("v_add_u32", v(V_RD[k][1]), 65536, v(V_RD[k][0])), valu("v_add_u32", v(V_RD[k][2]), 131072, v(V_RD[k][0]))]
    p += [valu("v_and_b32", T3, 1, Q), valu("v_xor_b32", T3, FG, T3), valu("v_lshlrev_b32", T3, 5, T3),
          valu("v_lshl_add_u32", v(V_RS[0]), T, 6, T3), valu("v_add_u32", v(V_RS[0]), v(V_RS[0]), T2),
          valu("v_add_u32", v(V_RS[1]), 65536, v(V_RS[0])), valu("v_add_u32", v(V_RS[2]), 131072, v(V_RS[0]))]
    p += [salu("s_lshl_b32", s(S_T0), MG, 11), valu("v_add_u32", v(V_LX[0]), s(S_T0), v(V_LIN)),
          valu("v_add_u32", v(V_LX[1]), 65536, v(V_LX[0])), valu("v_add_u32", v(V_LX[2]), 131072, v(V_LX[0])),
          salu("s_mul_i32", s(S_T0), MG, 36864), salu("s_add_u32", s(S_T0), s(S_T0), HB),
          valu("v_add_u32", v(V_H), s(S_T0), v(V_LIN)),
          salu("s_lshl_b32", s(S_T1), FG, 12), valu("v_add_u32", v(V_HW), s(S_T1), v(V_H)),
          salu("s_lshl_b32", s(S_T1), FG, 3), valu("v_add_u32", v(V_HS), s(S_T1), v(V_H))]
    p += [valu("v_bfe_u32", T, L, 1, 2), valu("v_xor_b32", T, T, Q), valu("v_lshlrev_b32", T, 5, T),
          valu("v_and_b32", T2, 1, L), valu("v_lshl_add_u32", T, T2, 4, T),
          valu("v_lshrrev_b32", T2, 3, L), salu("s_lshl_b32", s(S_T0), s(S_W), 3),
          valu("v_add_u32", T2, s(S_T0), T2),
          salu("s_mul_i32", s(S_T0), s(S_C), 576), salu("s_lshl_b32", s(S_T1), ODD, 6),
          salu("s_add_u32", s(S_T1), s(S_T0), s(S_T1)),
          valu("v_mul_u32_u24", T3, 9216, T2), valu("v_add3_u32", v(V_DD), T3, T, s(S_T1)),
          valu("v_mul_u32_u24", T3, 1152, T2), valu("v_add_u32", T3, T3, T),
          salu("s_mul_i32", s(S_T1), s(S_C), 288 * 1152), salu("s_mul_i32", s(S_T2), ODD, 32 * 1152),
          salu("s_add_u32", s(S_T2), s(S_T2), s(S_T1)), valu("v_add_u32", v(V_DW), s(S_T2), T3),
          salu("s_xor_b32", s(S_T2), ODD, 1), salu("s_mul_i32", s(S_T2), s(S_T2), 256 * 1152),
          salu("s_add_u32", s(S_T2), s(S_T2), s(S_T1)), valu("v_add_u32", v(V_DW8), s(S_T2), T3)]
    p += [valu("v_bfe_u32", T, L, 1, 1), valu("v_and_b32", T2, 1, Q), valu("v_xor_b32", T, T, T2),
          valu("v_lshlrev_b32", T, 5, T), valu("v_and_b32", T2, 1, L), valu("v_lshl_add_u32", T, T2, 4, T),
          valu("v_lshrrev_b32", T2, 2, L), salu("s_lshl_b32", s(S_T1), FG, 4), valu("v_add_u32", T2, s(S_T1), T2),
          valu("v_mul_u32_u24", T2, 9216, T2),
          salu("s_xor_b32", s(S_T2), ODD, 1), salu("s_lshl_b32", s(S_T2), s(S_T2), 9),
          salu("s_add_u32", s(S_T2), s(S_T2), s(S_T0)), valu("v_add3_u32", v(V_DS), T2, T, s(S_T2))]
    p += [salu("s_lshl_b32", s(S_T1), s(S_R), 1), salu("s_add_u32", s(S_T1), s(S_T1), MG), salu("s_lshl_b32", s(S_T1), s(S_T1), 2),
          salu("s_add_u32", s(S_T1), s(S_T1), FG),
          salu("s_mul_i32", s(S_T1), s(S_T1), 18432), valu("v_add_u32", v(V_DX), s(S_T1), v(V_LIN))]
    srd(p, S_WG, s(G_WG), s(G_WG + 1), D * F * 2)
    srd(p, S_WU, s(G_WU), s(G_WU + 1), D * F * 2)
    srd(p, S_WD, s(G_WD), s(G_WD + 1), D * F * 2)
    p += [scmp("s_cmp_eq_u32", MG, 0), salu("s_cselect_b32", s(S_WS), s(G_WG), s(G_WU)),
          salu("s_cselect_b32", s(S_WS + 1), s(S_WG + 1), s(S_WU + 1)),
          salu("s_mov_b32", s(S_WS + 2), D * F * 2), salu("s_mov_b32", s(S_WS + 3), "0x20000")]
    srd_off(p, S_XF, s(G_LB), s(G_LB + 1), L_XB, ACT)
    p += [salu("s_mul_i32", s(S_T0), s(S_C), ACT), salu("s_lshl_b32", s(S_T1), s(S_R), 1),
          salu("s_add_u32", s(S_T1), s(S_T1), MG), salu("s_mul_i32", s(S_T1), s(S_T1), 4 * MT),
          salu("s_add_u32", s(S_T0), s(S_T0), s(S_T1)), salu("s_lshl_b32", s(S_T1), FG, 10),
          salu("s_add_u32", s(S_T0), s(S_T0), s(S_T1)), salu("s_add_u32", s(S_T0), s(S_T0), L_P)]
    srd_off(p, S_P, s(G_LB), s(G_LB + 1), s(S_T0), 4 * MT - 1024)


NSLOT = 40
HSLOT = 22
HB = HSLOT * 4096
LDS_BYTES = NSLOT * 4096
CH = 3
G = 4 * CH
A2_SLOTS = 10
S_PA, S_SS, S_MU, S_DM, S_XA, S_RS, S_MU2 = 28, 48, 52, 56, 48, 52, 56
S_C4 = 60
S_PO, S_WO, S_RO = 63, 64, 65
V_Y = 96
V_SEL = 180
V_RS2, V_MU, V_X0, V_X1 = 188, 189, 190, 191
V_PL, V_X8, V_XO4, V_RO, V_RO8, V_ROW4, V_SSA, V_RED, V_REDR, V_OB = range(160, 170)
V_XB = 170
V_ONE = 179
V_WARM = 92
A_PL = 144
RED = LDS_BYTES - 512


class B1:
    def __init__(self, nb=4, nb0=2, nb2=3, lau=9, pro=3, npre=(12, 6), sets=3, chain=True, local=False, lags=(5, 4, 4, 4),
                 wqd=(24, 27, 30, 33, 36, 39, 99, 99), verbose=False, warm=True):
        self.__dict__.update(locals())
        self.stf = "" if local else "sc1"
        self.ldf = "" if local else "sc1"
        self.plan()

    def plan(self):
        AH = self.AH = self.sets - 1
        W, ring, X = [], [], {}
        for j in range(4):
            for tau in range(6):
                n0 = len(W)
                if j == 0:
                    for i in range(3):
                        for ab in range(2):
                            u = dict(kind="X", ab=ab, s=3 * tau + i, first=n0 - 3 + i, done=n0 - 1 + i)
                            if tau == 0: u["first"], u["done"] = -1, 0
                            X[ab, 3 * tau + i] = u; ring.append(u)
                for m in range(2):
                    tr = [dict(kind="D", j=j, s=3 * tau + i, m=m, first=n0 + 2 * m - AH, done=n0 + 2 * m + 1) for i in range(3)]
                    ring += tr
                    for k in range(2):
                        W.append(dict(kind="D", src=tr, k=k, b0=3 * tau, acc=V_ACC[j & 1] + 32 * m + 16 * k))
        for tau in range(6):
            n0 = len(W)
            tr = [dict(kind="S", s=3 * tau + i, first=n0 - AH, done=n0 + 1) for i in range(3)]
            ring += tr
            for k in range(2):
                W.append(dict(kind="S", src=tr, k=k, b0=3 * tau, acc=V_ACC[0] + 16 * k))
        P2 = self.P2 = len(W)
        self.OACC = [192, 224]
        for dl in range(9):
            for tau in range(3):
                n0 = len(W)
                tr = [dict(kind="O", dl=dl, kp=3 * tau + i, first=n0 - AH, done=n0 + 1) for i in range(3)]
                ring += tr
                for k in range(2):
                    W.append(dict(kind="O", src=tr, k=k, b0=3 * tau, acc=self.OACC[dl & 1] + 16 * k))
        for i, u in enumerate(ring):
            u["ri"] = i
        NU = self.NU = len(W)
        self.W, self.ring, self.X = W, ring, X
        self.bar_units = sorted(set(list(range(0, 24, self.nb0)) + list(range(24, 96, self.nb)) + list(range(96, P2 + 3, 3)) +
                                    list(range(P2 + 3, NU - 1, self.nb2))))
        self.isbar = set(self.bar_units)
        reserve = {}
        for kp in range(9):
            for mg in range(2):
                reserve[HSLOT + 9 * mg + kp] = 24 * (kp // 2 + 1) if kp < 8 else P2
        h_release = self.bar_at(P2 + 6)
        self.wq_at = [self.bar_at(P2 + d) for d in self.wqd]
        final = {4 * rho + i: n for rho, n in enumerate(self.wq_at) for i in range(4)}
        free = list(range(A2_SLOTS, NSLOT)) + list(range(A2_SLOTS))
        busy = []

        def take(u, n, lo=0):
            fb = self.bar_at(max(u["done"], 0))
            for sl in free:
                if sl < lo: continue
                if sl in reserve and n < h_release and fb > reserve[sl]: continue
                if sl in final and fb > final[sl]: continue
                free.remove(sl); u["slot"] = sl; busy.append(u); u["iss"] = n
                return True
            return False
        wunits = [u for u in ring if u["kind"] == "D"]
        self.pre = [wunits[:self.npre[0]], wunits[self.npre[0]:sum(self.npre)]]
        for u in self.pre[0]: assert take(u, -3, A2_SLOTS)
        for u in self.pre[1]: assert take(u, -2)
        pend = [u for u in ring if "slot" not in u]
        issue = self.issue = {n: [] for n in range(-1, NU)}
        while pend[0]["first"] <= self.pro and take(pend[0], -1):
            issue[-1].append(pend.pop(0))
        for n in range(NU):
            if n in self.isbar:
                for u in list(busy):
                    if u["done"] <= n:
                        busy.remove(u); free.append(u["slot"])
            cnt = 0
            lau = self.lau if not (24 <= n < 72) else self.lau + 6
            while pend and cnt < (3 if n < 24 else 2) and pend[0]["first"] - n <= lau and take(pend[0], n):
                issue[n].append(pend.pop(0)); cnt += 1
        assert not pend
        self.last_soff = None

    def bar_at(self, n):
        while n not in self.isbar:
            n += 1
            if n > self.NU: return 10 ** 6
        return n

    def dmas(self, u):
        k = u["kind"]
        if k == "X":
            vo, sr, so = V_DX, S_XF, u["ab"] * 2 * MT + 1024 * u["s"]
        elif k == "D":
            vo, sr, so = V_DD, (S_WG, S_WU)[u["m"]], 32 * u["s"] * 9216 + 128 * u["j"]
        elif k == "S":
            vo, sr, so = V_DS, S_WS, 32 * u["s"] * 9216
        elif u["kp"] < 8:
            vo, sr, so = V_DW, S_WD, 32 * u["kp"] * 1152 + 128 * u["dl"]
        else:
            vo, sr, so = V_DW8, S_WD, 128 * u["dl"]
        return [salu("s_add_u32", "m0", s(S_W1K), u["slot"] * 4096), salu("s_mov_b32", s(S_OFF), so),
                dma(v(vo), s(sr, 4), s(S_OFF), tag=("dma", u["ri"]), flags=self.ldf if k == "X" else "")]

    def prefetch(self, part):
        return [self.dmas(u) for u in self.pre[part]]

    def red_setup(self):
        p = []
        L, RHO, T, T2, T3 = "v1", "v2", "v4", "v5", "v6"
        lb = (s(G_LB), s(G_LB + 1))
        srd_off(p, S_PA, *lb, L_P, 16 * ACT)
        srd_off(p, S_SS, *lb, L_SS, S * 64)
        srd_off(p, S_MU, *lb, L_MU, S * 4)
        srd_off(p, S_DM, *lb, L_DM, S * 4)
        p += [valu("v_and_b32", L, 63, "v0"), valu("v_lshrrev_b32", RHO, 4, L), valu("v_mov_b32", v(V_OB), OOB),
              salu("s_lshl_b32", s(S_T0), s(S_R), 4), salu("s_add_u32", s(S_T0), s(S_T0), s(S_C)), salu("s_lshl_b32", s(S_T1), s(S_T0), 3),
              valu("v_and_b32", T, 7, L), valu("v_add_u32", T2, s(S_T1), T), valu("v_lshlrev_b32", v(V_ROW4), 2, T2),
              valu("v_lshrrev_b32", T3, 3, L), valu("v_lshlrev_b32", T3, 3, T3), valu("v_lshl_add_u32", v(V_SSA), T2, 6, T3),
              bload("buffer_load_dwordx2", v(V_X0, 2), v(V_SSA), s(S_SS, 4), flags=self.ldf),
              bload("buffer_load_dword", v(V_MU), v(V_ROW4), s(S_MU, 4), flags="sc1"),
              bload("buffer_load_dword", v(V_RS2), v(V_ROW4), s(S_DM, 4), flags=self.ldf),
              valu("v_lshlrev_b32", v(V_REDR), 4, T), valu("v_add_u32", v(V_REDR), RED, v(V_REDR)),
              salu("s_lshl_b32", s(S_T1), s(S_W), 2), valu("v_add_u32", v(V_RED), s(S_T1), v(V_REDR)),
              valu("v_mul_u32_u24", T2, 1152, T2), valu("v_bfe_u32", T3, L, 3, 1), valu("v_lshl_add_u32", T2, T3, 3, T2),
              salu("s_lshr_b32", s(S_T1), s(S_W), 1), salu("s_lshl_b32", s(S_T1), s(S_T1), 6), salu("s_and_b32", s(S_T2), s(S_W), 1),
              salu("s_lshl_b32", s(S_T2), s(S_T2), 4), salu("s_add_u32", s(S_T1), s(S_T1), s(S_T2)), valu("v_add_u32", T2, s(S_T1), T2),
              valu("v_lshl_add_u32", v(V_RO), RHO, 7, T2),
              valu("v_lshrrev_b32", v(V_RO8), 1, RHO), valu("v_lshl_add_u32", T2, v(V_RO8), 5, T2),
              valu("v_and_b32", v(V_RO8), 1, RHO), valu("v_lshl_add_u32", v(V_RO8), v(V_RO8), 2, T2),
              salu("s_lshr_b32", s(S_T1), s(S_T0), 1), salu("s_mul_i32", s(S_T1), s(S_T1), MT), salu("s_and_b32", s(S_T2), s(S_T0), 1),
              salu("s_lshl_b32", s(S_T2), s(S_T2), 7), salu("s_add_u32", s(S_T1), s(S_T1), s(S_T2)),
              salu("s_lshl_b32", s(S_T2), s(S_W), 9), salu("s_add_u32", s(S_T1), s(S_T1), s(S_T2)),
              valu("v_lshlrev_b32", T, 4, T), valu("v_lshl_add_u32", T, T3, 8, T), valu("v_add_u32", T, s(S_T1), T),
              valu("v_lshl_add_u32", v(V_X8), RHO, 2, T), valu("v_lshl_add_u32", v(V_XO4), RHO, 11, T),
              salu("s_mov_b32", s(S_T1), ACT), valu("v_mul_lo_u32", T2, RHO, s(S_T1)), valu("v_add_u32", v(V_PL), T, T2)]
        for i in range(1, 4):
            p.append(salu("s_mov_b32", s(S_C4 + i - 1), 4 * ACT * i))
        for dl in range(9):
            if dl % 2 == 0: p.append(salu("s_mov_b32", s(S_RO), 2048 * dl))
            p.append(bload("buffer_load_dword", v(V_XB + dl), v(V_X8), s(S_XF, 4), s(S_RO), off=2048 * (dl & 1), flags=self.ldf))
        p += [valu("v_and_b32", T, 1, L), valu("v_lshlrev_b32", T, 4, T), valu("v_mov_b32", T2, "0x3f80"), valu("v_lshlrev_b32", T, T, T2),
              valu("v_bfe_u32", T2, L, 1, 3)]
        for odd in range(2):
            for d in range(4):
                p += [vcmp("v_cmp_eq_u32", "vcc", 2 * d + odd, T2), cnd(v(V_SEL + 4 * odd + d), 0, T)]
        p += [valu("v_add_f32", v(V_MU), v(V_MU), v(V_RS2)), valu("v_add_f32", v(V_X0), v(V_X0), v(V_X1))]
        xsum(p, v(V_X0), v(V_X1))
        p += [valu("v_mov_b32", v(V_X1), f32(1e-5)), valu("v_fmac_f32", v(V_X1), f32(1.0 / D), v(V_X0), rmw=True),
              valu("v_rcp_f32", v(V_RS2), v(V_X1))]
        return p

    def e_store(self, dl):
        base = self.OACC[dl & 1]; items = []
        for t in range(4):
            tt = V_TMP + 8 + 4 * t
            for k in range(2):
                c = base + 16 * k + 4 * t
                items.append(valu("v_cvt_pk_bf16_f32", v(tt + 2 * k), v(c), v(c + 1)))
                items.append(valu("v_cvt_pk_bf16_f32", v(tt + 2 * k + 1), v(c + 2), v(c + 3)))
            items.append(salu("s_mov_b32", s(S_OFF2), (18 * t + 2 * dl) * 1024))
            items.append(bstore("buffer_store_dwordx4", v(tt, 4), v(V_LIN), s(S_P, 4), s(S_OFF2), flags=self.stf, tag=("st", dl)))
        return items

    def e_loads(self, dl):
        out = []
        if dl and dl % 2 == 0:
            out.append(valu("v_add_u32", v(V_PL), 4096, v(V_PL)))
        for i in range(4):
            out.append(bload("buffer_load_dwordx4", a(A_PL + 16 * (dl % 7) + 4 * i, 4), v(V_PL), s(S_PA, 4), s(S_C4 + i - 1) if i else "0",
                             off=2048 * (dl & 1), flags=self.ldf))
        return out

    def e_acc(self, dl):
        y = v(V_Y + 4 * (dl >> 1), 4)
        return [mfma16(y, v(V_SEL + 4 * (dl & 1), 4), a(A_PL + 16 * (dl % 7) + 4 * i, 4), "0" if (i == 0 and dl % 2 == 0) else y) for i in range(4)]

    def warm_setup(self):
        T, T2, T3 = "v4", "v5", "v6"
        return [
            valu("v_lshrrev_b32", T, 1, "v0"), salu("s_mul_i32", s(S_T0), s(S_R), 36), valu("v_add_u32", T, s(S_T0), T),
            valu("v_mul_u32_u24", T, 9216, T), salu("s_mul_i32", s(S_T0), s(S_C), 576), salu("s_and_b32", s(S_T1), s(S_C), 1),
            salu("s_lshl_b32", s(S_T2), s(S_T1), 6), salu("s_add_u32", s(S_T0), s(S_T0), s(S_T2)), salu("s_add_u32", s(S_T0), s(S_T0), 384),
            scmp("s_cmp_eq_u32", s(S_T1), 0), salu("s_cselect_b32", s(S_T1), 2, -7), salu("s_mul_i32", s(S_T1), s(S_T1), 64),
            valu("v_and_b32", T2, 1, "v0"), valu("v_mul_lo_u32", T2, T2, s(S_T1)), valu("v_add3_u32", T, T, T2, s(S_T0)),
            valu("v_mov_b32", T3, OOB), vcmp("v_cmp_gt_u32", "vcc", 72, "v0"), cnd(v(V_WARM), T3, T),
            salu("s_lshl_b32", s(S_T0), s(S_C), 4), salu("s_add_u32", s(S_T0), s(S_T0), s(S_R)), salu("s_mul_i32", s(S_T0), s(S_T0), 18 * 1152),
            valu("v_lshl_add_u32", T, "v0", 7, s(S_T0)), vcmp("v_cmp_gt_u32", "vcc", 162, "v0"), cnd(v(V_WARM + 1), T3, T),
            scmp("s_cmp_eq_u32", s(G_LAYER), 0), salu("s_cselect_b32", s(S_T0), 0, OOB),
            valu("v_or_b32", v(V_WARM), s(S_T0), v(V_WARM)), valu("v_or_b32", v(V_WARM + 1), s(S_T0), v(V_WARM + 1))]

    def body(self, p, tail, T=None, stamps=()):
        W, ring, X, NU, P2, AH, isbar = self.W, self.ring, self.X, self.NU, self.P2, self.AH, self.isbar

        def lds3(regs3, off):
            return v(regs3[off >> 16]), off & 65535

        def frag(n, i):
            return V_FR + 4 * (3 * (n % self.sets) + i)

        def reads(n):
            w = W[n]; k = w["k"]; out = []
            for i, u in enumerate(w["src"]):
                for hf in range(2):
                    if w["kind"] == "S":
                        ad, off = lds3(V_RS, u["slot"] * 4096 + 2048 * k + 1024 * hf)
                    else:
                        ad, off = lds3(V_RD[k], u["slot"] * 4096 + 2048 * hf)
                    out.append(dsr("ds_read_b64_tr_b16", v(frag(n, i) + 2 * hf, 2), ad, off, tag=("rd", n, i, hf)))
            return out

        def xreads(sx):
            out = []
            for t in range(4):
                ad, off = lds3(V_LX, X[t >> 1, sx]["slot"] * 4096 + 1024 * (t & 1))
                out.append(dsr("ds_read_b128", xreg(sx, t), ad, off, tag=("xr", sx, t)))
            return out

        def mfmas(n):
            w = W[n]; out = []
            order = [(t, i) for t in range(4) for i in range(3)] if self.chain else [(t, i) for i in range(3) for t in range(4)]
            for t, i in order:
                c = v(w["acc"] + 4 * t, 4)
                out.append(mfma16(c, v(frag(n, i), 4), xreg(w["b0"] + i, t), "0" if w["b0"] + i == 0 else c))
            return out

        NG = NU * G
        gaps = [[] for _ in range(NG)]
        cap = [2] * NG

        def put(g, ins):
            gaps[g].append(ins); cap[g] -= 0 if ins.kind == "label" else ins.cost

        def flow(items, g, per=1, limit=None, note="flow"):
            for it in items:
                while it.kind != "label" and not it.glue and (cap[g] < 1 or sum(1 for x in gaps[g] if x.note == note) >= per):
                    g += 1
                it.note = note
                put(g, it)
            if limit is not None:
                assert g <= limit, (g, limit)
            return g

        wq = [(rho, i) for rho in range(8) for i in range(4)]
        for n in range(NU):
            g = G * n
            if n in isbar:
                cap[g] -= 2; g += 1
            cap[G * n + G - 1] -= 1
            g0 = g
            if n + AH < NU:
                g = flow(reads(n + AH), g, note="rd")
            if n < 20 and n % 4 > 0:
                g = flow(xreads(3 * (n // 4 + 1) + n % 4 - 1), g, note="rd")
            seq = [self.dmas(u) for u in self.issue[n]]
            while wq and self.wq_at[wq[0][0]] <= n and len(seq) < 3:
                seq.append(a1.wq_piece(*wq.pop(0), s(S_WO)))
            gg = g0 if (n < 24 or len(seq) > 2) else g0 + 6
            for q_, sq in enumerate(seq):
                for e, it in enumerate(sq):
                    put(min(gg + 3 * q_ + e, G * n + G - 1), it)
        bars = {}
        minfl = (1e9, 0)
        for bi, n in enumerate(self.bar_units):
            nn = self.bar_units[bi + 1] if bi + 1 < len(self.bar_units) else NU
            need = [u for u in ring if n <= u["first"] < nn]
            for u in need:
                if n > 30: minfl = min(minfl, (n - u["iss"], n))
                assert u["iss"] < n
            bars[n] = dict(vm=[("dma", u["ri"]) for u in need], lg=[], after=[])
        if self.verbose: print("b1: min DMA flight (units of 192 cyc):", minfl)

        TT = V_TMP
        hready = {}
        if self.warm:
            g = flow(self.warm_setup(), G * 21, per=2)
            flow([bload("buffer_load_dword", v(V_WARM + 2), v(V_WARM), s(S_WG, 4)), bload("buffer_load_dword", v(V_WARM + 2), v(V_WARM), s(S_WU, 4))], max(g, G * 34))
            flow([bload("buffer_load_dword", v(V_WARM + 2), v(V_WARM + 1), s(S_WD, 4))], G * 58)
        for j in range(4):
            base = V_ACC[j & 1]; items = []
            for t in range(4):
                tt = TT + 4 * (t & 1)
                for k in range(2):
                    g_, u_ = base + 16 * k + 4 * t, base + 32 + 16 * k + 4 * t
                    for e in range(4):
                        items.append(valu("v_mul_f32", v(g_ + e), v(g_ + e), v(u_ + e)))
                    items.append(valu("v_cvt_pk_bf16_f32", v(tt + 2 * k), v(g_), v(g_ + 1)))
                    items.append(valu("v_cvt_pk_bf16_f32", v(tt + 2 * k + 1), v(g_ + 2), v(g_ + 3)))
                items.append(dsw("ds_write_b128", v(V_HW), v(tt, 4), (8 * j + t) * 1024, tag=("hw", j, t)))
            g = flow(items, G * 24 * (j + 1) + 1, per=2 if j == 3 else 1)
            nbar = self.bar_at(g // G + 1); bars[nbar]["lg"].append(("hw", j, 3))
            hready[2 * j] = hready[2 * j + 1] = nbar
        items = []
        for t in range(4):
            tt = TT + 2 * t
            g_, u_ = V_ACC[0] + 4 * t, V_ACC[0] + 16 + 4 * t
            for e in range(4):
                items.append(valu("v_mul_f32", v(g_ + e), v(g_ + e), v(u_ + e)))
            items.append(valu("v_cvt_pk_bf16_f32", v(tt), v(g_), v(g_ + 1)))
            items.append(valu("v_cvt_pk_bf16_f32", v(tt + 1), v(g_ + 2), v(g_ + 3)))
            items.append(dsw("ds_write_b64", v(V_HS), v(tt, 2), (32 + t) * 1024, tag=("hw", 4, t)))
        g = flow(items, G * P2 + 1, per=2)
        nbar = self.bar_at(g // G + 1); bars[nbar]["lg"].append(("hw", 4, 3)); hready[8] = nbar
        g = 0
        for kp in range(9):
            g = max(g, G * (96 + 2 * (kp // 3) + 2), G * hready[kp] + 1)
            items = [dsr("ds_read_b128", xreg(kp, t), v(V_H), (4 * kp + t) * 1024, tag=("hr", kp, t)) for t in range(4)]
            g = flow(items, g, per=2, limit=G * (P2 + 2 * (kp // 3)) - (4 if kp < 8 else 0))

        late = []
        l_ack, l_fl, l_chk, l_ld = self.lags
        END = NU - 1

        def place(pos, items, per=2, note="red", whole=False):
            if pos >= END:
                late.append((pos, len(late), items)); return pos
            if whole:
                g = G * pos + 1
                for it in items: put(g, it)
                return pos
            return flow(items, G * pos + 1, per=per, note=note) // G
        ends = {dl: place(P2 + 6 * (dl + 1), self.e_store(dl), note="st") for dl in range(9)}
        g_rs = flow(self.red_setup() + a1.wq_setup(enable=True), G * 82, per=1, note="rs", limit=G * 96)
        prev = P2
        posts_late, group1, group2, accs_late = [], [], [], []
        inloop = True
        for dl in range(9):
            n2 = self.bar_at(ends[dl] + l_ack)
            post = sync.post(F_P + dl, self.local, s(S_PO), v(V_ONE))
            if n2 < END:
                bars[n2]["vm"].append(("st", dl)); bars[n2]["after"] += post
            else:
                posts_late.append([wait(vm=[("st", dl)]), barrier()] + post)
                group2.append(dl); continue
            n3 = max(n2 + l_fl, prev)
            if n3 >= END - 1 or not inloop:
                inloop = False
                group1.append(dl); continue
            n3 = place(n3, sync.poll_issue(F_P + dl, s(S_PO), v(GV_T)))
            n4 = place(n3 + l_chk, sync.poll_check(F_P + dl, self.local, s(S_PO), v(GV_T), tail), whole=True)
            n4 = place(n4 + (1 if n4 < END else 0), self.e_loads(dl), per=1)
            prev = n4 + (1 if n4 < END else 0)
            if n4 + l_ld < END:
                n5 = place(n4 + l_ld, self.e_acc(dl), per=1)
            else:
                n5 = END; accs_late += self.e_acc(dl)
            if self.verbose: print("  delta", dl, "store end", ends[dl] - P2, "post", n2 - P2, "poll", n3 - P2, "load", n4 - P2, "acc", n5 - P2)
        if self.verbose: print("  tail groups", group1, group2)
        late.sort(key=lambda x: (x[2][-1].kind != "vst", x[0], x[1]))
        seq = sum((x[2] for x in late), [])
        if group1:
            seq += sync.poll(F_P + group1[-1], self.local, s(S_PO), tail) + sum((self.e_loads(dl) for dl in group1), [])
        seq += posts_late[-1] + sync.poll_issue(F_P + 8, s(S_PO), v(GV_T)) + accs_late + sum((self.e_acc(dl) for dl in group1), [])
        seq += sync.poll_check(F_P + 8, self.local, s(S_PO), v(GV_T), tail) + sum((self.e_loads(dl) for dl in group2), [])
        tail_acc = sum((self.e_acc(dl) for dl in group2), [])
        assert g_rs < G * self.wq_at[0]
        wq_late = sum((a1.wq_piece(rho, i, s(S_WO)) for rho, i in wq), [])
        if self.verbose: print("b1: wq pieces left for the tail:", len(wq))

        for u in self.issue[-1]:
            p += self.dmas(u)
        p.append(wait(vm=[("dma", u["ri"]) for u in ring if u["first"] < 0]))
        p.append(barrier())
        p += reads(0) + xreads(0) + xreads(1) + xreads(2) + (reads(1) if AH == 2 else [])
        for n in range(NU):
            if T and n in stamps: T(p)
            p.append(wait(lgkm=[("rd", n, 2, 1)]))
            for k, m in enumerate(mfmas(n)):
                p.append(m)
                if k == 0 and n in isbar:
                    p += [wait(vm=bars[n]["vm"], lgkm=bars[n]["lg"]), barrier()] + bars[n]["after"]
                p += gaps[G * n + k]
        if T: T(p)
        p += seq + wq_late + tail_acc
        if T: T(p)
        if self.verbose:
            print("b1: gaps over capacity:", sum(1 for c in cap if c < 0), " free slots:", sum(max(c, 0) for c in cap))

    def yreg(self, i):
        dl, e = i >> 1, i & 1
        return v(V_Y + 4 * (dl >> 1) + 2 * (dl & 1) + e)

    def finish(self, p, last):
        Yr = [self.yreg(i) for i in range(18)]
        M, T1, V2, V2b, Q4, DO = v(V_TMP), v(V_TMP + 1), v(V_TMP + 2), v(V_TMP + 3), V_TMP + 4, V_TMP + 8
        lb = (s(G_LB), s(G_LB + 1))
        if last:
            srd(p, S_XA, s(G_OUT), s(G_OUT + 1), ACT)
        else:
            srd_off(p, S_XA, *lb, LSTRIDE + L_XA, ACT)
            srd_off(p, S_RS, *lb, LSTRIDE + L_RSTD, S * 4)
            srd_off(p, S_MU2, *lb, LSTRIDE + L_MU, S * 4)
        for dl in range(9):
            p += [valu("v_lshlrev_b32", v(V_X0), 16, v(V_XB + dl)), valu("v_and_b32", v(V_X1), "0xffff0000", v(V_XB + dl)),
                  valu("v_fma_f32", Yr[2 * dl], Yr[2 * dl], v(V_RS2), v(V_X0)), valu("v_fma_f32", Yr[2 * dl + 1], Yr[2 * dl + 1], v(V_RS2), v(V_X1))]

        def wgsum(x, slot):
            return [dsw("ds_write_b32", v(V_RED), x, 128 * slot, tag=("red", slot)), wait(lgkm=[("red", slot)]), barrier(),
                    dsr("ds_read_b128", v(Q4, 4), v(V_REDR), 128 * slot),
                    valu("v_add_f32", v(Q4), v(Q4), v(Q4 + 1)), valu("v_add_f32", v(Q4 + 2), v(Q4 + 2), v(Q4 + 3)),
                    valu("v_add_f32", x, v(Q4), v(Q4 + 2))]
        if last:
            for y in Yr: p.append(valu("v_add_f32", y, y, v(V_MU)))
        else:
            tree_sum(p, M, Yr, T1)
            xsum(p, M, T1)
            p += wgsum(M, 0)
            p.append(valu("v_mul_f32", M, f32(1.0 / D), M))
            for y in Yr: p.append(valu("v_sub_f32", y, y, M))
        for dl in range(9):
            p.append(valu("v_cvt_pk_bf16_f32", v(DO + dl), Yr[2 * dl], Yr[2 * dl + 1]))
        for g in range(2):
            d = DO + 4 * g
            p += [swap("v_permlane32_swap_b32", v(d), v(d + 2)), swap("v_permlane32_swap_b32", v(d + 1), v(d + 3))]
        for g in range(2):
            d = DO + 4 * g
            p += [swap("v_permlane16_swap_b32", v(d), v(d + 1)), swap("v_permlane16_swap_b32", v(d + 2), v(d + 3))]
        if last:
            for g in range(2):
                p += [bstore("buffer_store_dwordx2", v(DO + 4 * g, 2), v(V_RO), s(S_XA, 4), off=512 * g),
                      bstore("buffer_store_dwordx2", v(DO + 4 * g + 2, 2), v(V_RO), s(S_XA, 4), off=512 * g + 32)]
            p.append(bstore("buffer_store_dword", v(DO + 8), v(V_RO8), s(S_XA, 4), off=1024))
            return
        p += [salu("s_mov_b32", s(S_OFF), 8192), salu("s_mov_b32", s(S_OFF2), 16384),
              bstore("buffer_store_dwordx4", v(DO, 4), v(V_XO4), s(S_XA, 4), flags="sc1"),
              bstore("buffer_store_dwordx4", v(DO + 4, 4), v(V_XO4), s(S_XA, 4), s(S_OFF), flags="sc1"),
              bstore("buffer_store_dword", v(DO + 8), v(V_X8), s(S_XA, 4), s(S_OFF2), flags="sc1")]
        p += [valu("v_mul_f32", V2, Yr[0], Yr[0]), valu("v_mul_f32", V2b, Yr[1], Yr[1])]
        for i in range(2, 18):
            p.append(valu("v_fmac_f32", (V2, V2b)[i & 1], Yr[i], Yr[i], rmw=True))
        p.append(valu("v_add_f32", V2, V2, V2b))
        xsum(p, V2, T1)
        p += wgsum(V2, 1)
        p += [valu("v_mov_b32", T1, f32(1e-5)), valu("v_fmac_f32", T1, f32(1.0 / D), V2, rmw=True), valu("v_rsq_f32", T1, T1),
              valu("v_add_f32", M, M, v(V_MU)),
              vcmp("v_cmp_gt_u32", "vcc", 8, "v0"), cnd(V2b, v(V_OB), v(V_ROW4)),
              bstore("buffer_store_dword", T1, V2b, s(S_RS, 4), flags="sc1"),
              bstore("buffer_store_dword", M, V2b, s(S_MU2, 4), flags="sc1")]
```

```python
S, D, H, DH, F = 2048, 576, 32, 18, 4608
ACT = S * D * 2
MT = 18432
WQ_SLICE = 18 * 7 * 1024
WS_WQ = 0
WS_WO = WS_WQ + 16 * WQ_SLICE
WS_STAMP = WS_WO + 37 * MT + 2048
WS_L0 = WS_STAMP + (1 << 20)
L_XA = 0
L_XB = L_XA + ACT
L_OF = L_XB + ACT
L_RSTD = L_OF + ACT
L_MU = L_RSTD + S * 4
L_DM = L_MU + S * 4
L_SS = L_DM + S * 4
L_FL = L_SS + S * 64
L_P = L_FL + 32768
LSTRIDE = L_P + 16 * ACT
WS_END = WS_L0 + 2 * LSTRIDE
F_A, F_O, F_B, F_X, F_P = 0, 1, 2, 3, 4
K_X, K_WQKV, K_WO, K_BX, K_WG, K_WU, K_WD, K_OUT, K_DBG, K_WS = [8 * i for i in range(10)]
assert WS_L0 % 4096 == 0 and LSTRIDE % 4096 == 0 and L_P % 4096 == 0
OOB = "0x7ffffff0"
G_WG, G_WU, G_WD, G_WS, G_OUT, G_LB = 80, 82, 84, 86, 88, 90
G_W, G_R, G_C, G_LAYER = 92, 93, 94, 95
G_FL = 96
G_SPIN, G_SLOW = 100, 101
GV_POST, GV_POLL, GV_T = 29, 30, 31
```

```python
from asm import *
from layout import *

S_W = 32
S_RO = 33
S_T0, S_T1, S_T2, S_T3 = 36, 37, 38, 39
V_L, V_SEG, V_M8 = 1, 2, 3
V_FO = 4
V_FO8 = 5
V_RO = 6
V_RO8 = 7
V_ROW4 = 8
V_RED = 9
V_REDR = 10
V_OOB = 11
Y = 64
LDS_RED = 0
LDS_S8 = 1024


def common(p):
    T, T2 = "v12", "v13"
    p += [valu("v_lshrrev_b32", T, 6, "v0"), valu("v_and_b32", v(V_L), 63, "v0"),
          valu("v_readfirstlane_b32", s(S_W), T),
          valu("v_lshrrev_b32", v(V_SEG), 3, v(V_L)), valu("v_and_b32", v(V_M8), 7, v(V_L)),
          valu("v_mov_b32", v(V_OOB), OOB),
          salu("s_and_b32", s(S_T0), "s2", 7), salu("s_lshl_b32", s(S_T0), s(S_T0), 5),
          salu("s_lshr_b32", s(S_T1), "s2", 3), salu("s_add_u32", s(S_RO), s(S_T0), s(S_T1)),
          salu("s_lshr_b32", s(S_T0), s(S_RO), 1), salu("s_mul_i32", s(S_T0), s(S_T0), MT),
          salu("s_and_b32", s(S_T1), s(S_RO), 1), salu("s_lshl_b32", s(S_T1), s(S_T1), 7),
          salu("s_add_u32", s(S_T0), s(S_T0), s(S_T1)),
          valu("v_lshlrev_b32", T, 8, v(V_SEG)), valu("v_lshl_add_u32", T, v(V_M8), 4, T),
          salu("s_lshl_b32", s(S_T1), s(S_W), 12), salu("s_add_u32", s(S_T1), s(S_T1), s(S_T0)),
          valu("v_add_u32", v(V_FO), s(S_T1), T),
          salu("s_lshl_b32", s(S_T1), s(S_W), 2), salu("s_add_u32", s(S_T1), s(S_T1), s(S_T0)),
          salu("s_add_u32", s(S_T1), s(S_T1), 16384), valu("v_add_u32", v(V_FO8), s(S_T1), T),
          salu("s_lshl_b32", s(S_T0), s(S_RO), 3), valu("v_add_u32", T2, s(S_T0), v(V_M8)),
          valu("v_lshlrev_b32", v(V_ROW4), 2, T2),
          valu("v_mul_u32_u24", T2, 1152, T2),
          valu("v_lshrrev_b32", T, 2, v(V_SEG)), valu("v_lshl_add_u32", T2, T, 6, T2),
          valu("v_and_b32", T, 3, v(V_SEG)), valu("v_lshl_add_u32", T2, T, 3, T2),
          salu("s_lshl_b32", s(S_T1), s(S_W), 8), valu("v_add_u32", v(V_RO), s(S_T1), T2),
          salu("s_lshr_b32", s(S_T1), s(S_W), 1), salu("s_lshl_b32", s(S_T1), s(S_T1), 5),
          salu("s_and_b32", s(S_T2), s(S_W), 1), salu("s_lshl_b32", s(S_T2), s(S_T2), 2),
          salu("s_add_u32", s(S_T1), s(S_T1), s(S_T2)), salu("s_add_u32", s(S_T1), s(S_T1), 1024),
          valu("v_add_u32", v(V_RO8), s(S_T1), T2),
          valu("v_lshlrev_b32", v(V_REDR), 4, v(V_M8)),
          salu("s_lshl_b32", s(S_T1), s(S_W), 2), valu("v_add_u32", v(V_RED), s(S_T1), v(V_REDR))]


def only_first(p, dst, src):
    p += [vcmp("v_cmp_gt_u32", "vcc", 8, "v0"), cnd(dst, v(V_OOB), src)]


def xsum(p, x, t):
    p += [dpp("v_add_f32", x, x, x, "row_ror:8"),
          valu("v_mov_b32", t, x), swap("v_permlane16_swap_b32", x, t), valu("v_add_f32", x, x, t),
          valu("v_mov_b32", t, x), swap("v_permlane32_swap_b32", x, t), valu("v_add_f32", x, x, t)]


def wgsum(p, x, t4, slot):
    p += [dsw("ds_write_b32", v(V_RED), x, LDS_RED + 128 * slot, tag=("red", slot)), wait(lgkm=[("red", slot)]), barrier(),
          dsr("ds_read_b128", v(t4, 4), v(V_REDR), LDS_RED + 128 * slot),
          valu("v_add_f32", v(t4), v(t4), v(t4 + 1)), valu("v_add_f32", v(t4 + 2), v(t4 + 2), v(t4 + 3)),
          valu("v_add_f32", x, v(t4), v(t4 + 2))]


def tree_sum(p, dst, srcs, tmp):
    p.append(valu("v_add_f32", dst, srcs[0], srcs[1]))
    p.append(valu("v_add_f32", tmp, srcs[2], srcs[3]))
    for i, x in enumerate(srcs[4:]):
        p.append(valu("v_add_f32", (dst, tmp)[i & 1], (dst, tmp)[i & 1], x))
    p.append(valu("v_add_f32", dst, dst, tmp))


def centre_and_store(p, S_XA, S_RS, S_MU, mu_in, flags=""):
    M, T, Q4 = "v14", "v15", 16
    tree_sum(p, M, [v(Y + i) for i in range(18)], T)
    xsum(p, M, T)
    wgsum(p, M, Q4, 0)
    p.append(valu("v_mul_f32", M, f32(1.0 / D), M))
    for i in range(18):
        p.append(valu("v_sub_f32", v(Y + i), v(Y + i), M))
    V2, V2b = "v20", "v21"
    p += [valu("v_mul_f32", V2, v(Y), v(Y)), valu("v_mul_f32", V2b, v(Y + 1), v(Y + 1))]
    for i in range(2, 18):
        p.append(valu("v_fmac_f32", (V2, V2b)[i & 1], v(Y + i), v(Y + i), rmw=True))
    p.append(valu("v_add_f32", V2, V2, V2b))
    for i in range(9):
        p.append(valu("v_cvt_pk_bf16_f32", v(24 + i), v(Y + 2 * i), v(Y + 2 * i + 1)))
    p += [bstore("buffer_store_dwordx4", v(24, 4), v(V_FO), s(S_XA, 4), flags=flags),
          bstore("buffer_store_dwordx4", v(28, 4), v(V_FO), s(S_XA, 4), off=2048, flags=flags),
          bstore("buffer_store_dword", v(32), v(V_FO8), s(S_XA, 4), flags=flags)]
    xsum(p, V2, T)
    wgsum(p, V2, Q4, 1)
    p += [valu("v_mov_b32", T, f32(1e-5)), valu("v_fmac_f32", T, f32(1.0 / D), V2, rmw=True),
          valu("v_rsq_f32", T, T)]
    if mu_in is not None:
        p.append(valu("v_add_f32", M, M, mu_in))
    only_first(p, "v22", v(V_ROW4))
    p += [bstore("buffer_store_dword", T, "v22", s(S_RS, 4), flags=flags),
          bstore("buffer_store_dword", M, "v22", s(S_MU, 4), flags=flags)]


def unpack(p, dst, src):
    p += [valu("v_lshlrev_b32", v(dst), 16, src), valu("v_and_b32", v(dst + 1), "0xffff0000", src)]


def prep(p, warm=True):
    SX, SQ, SO, SXA, SRS, SMU, SWQ, SWO = 4, 8, 12, 16, 20, 24, 28, 40
    p += [sload(44, 4, K_X), sload(48, 2, K_WO), sload(50, 2, K_WS), sload(76, 4, K_WG)]
    common(p)
    p.append(wait(lgkm_all=True))
    srd(p, SX, "s44", "s45", ACT)
    srd(p, SQ, "s46", "s47", D * 3 * D * 2)
    srd(p, SO, "s48", "s49", D * D * 2)
    p += [bload("buffer_load_dwordx2", v(24, 2), v(V_RO), s(SX, 4)),
          bload("buffer_load_dwordx2", v(26, 2), v(V_RO), s(SX, 4), off=32),
          bload("buffer_load_dwordx2", v(28, 2), v(V_RO), s(SX, 4), off=128),
          bload("buffer_load_dwordx2", v(30, 2), v(V_RO), s(SX, 4), off=160),
          bload("buffer_load_dword", v(32), v(V_RO8), s(SX, 4))]
    srd_off(p, SXA, "s50", "s51", WS_L0 + L_XA, ACT)
    srd_off(p, SRS, "s50", "s51", WS_L0 + L_RSTD, S * 4)
    srd_off(p, SMU, "s50", "s51", WS_L0 + L_MU, S * 4)
    srd_off(p, SWQ, "s50", "s51", WS_WQ, 16 * WQ_SLICE)
    srd_off(p, SWO, "s50", "s51", WS_WO, 37 * MT)
    GW, FI, N, SS_, HP = s(52), s(53), s(54), s(55), s(56)
    C, Q, T, T2, T3, E = "v34", "v35", "v36", "v37", "v38", "v39"
    p += [salu("s_lshl_b32", GW, "s2", 2), salu("s_add_u32", GW, GW, s(S_W)),
          valu("v_and_b32", C, 15, v(V_L)), valu("v_lshrrev_b32", Q, 4, v(V_L)),
          salu("s_mov_b32", s(57), 2 * 3456), salu("s_mov_b32", s(58), 16 * 3456), salu("s_mov_b32", s(59), 18 * 3456)]
    for it in range(2):
        vo, dst, vst = v(52 + it), 40 + 4 * it, v(56 + it)
        p += [salu("s_lshl_b32", FI, GW, 1), salu("s_add_u32", FI, FI, it),
              salu("s_mul_hi_u32", s(S_T0), FI, (2 ** 32 + 6) // 7), salu("s_mul_i32", s(S_T1), s(S_T0), 7),
              salu("s_sub_u32", N, FI, s(S_T1)),
              salu("s_mul_hi_u32", HP, s(S_T0), (2 ** 32 + 17) // 18), salu("s_mul_i32", s(S_T1), HP, 18),
              salu("s_sub_u32", SS_, s(S_T0), s(S_T1)),
              salu("s_lshl_b32", s(S_T1), N, 4), valu("v_add_u32", T, s(S_T1), C),
              vcmp("v_cmp_le_u32", "vcc", 40, T), cnd(T2, 0, "1"),
              valu("v_mul_u32_u24", T3, 40, T2), valu("v_sub_u32", E, T, T3),
              valu("v_mul_u32_u24", T2, 18, T2), valu("v_add_u32", T2, T2, E),
              vcmp("v_cmp_le_u32", "vcc", 18, E), cnd(T3, 0, "1"),
              valu("v_mul_u32_u24", T3, 558, T3), valu("v_add_u32", T2, T2, T3), valu("v_add_u32", T2, 576, T2),
              valu("v_subrev_u32", T3, 76, T), vcmp("v_cmp_le_u32", "vcc", 76, T), cnd(T2, T2, T3),
              salu("s_mul_i32", s(S_T1), HP, 36), valu("v_add_u32", T2, s(S_T1), T2),
              salu("s_lshl_b32", s(S_T1), SS_, 5), valu("v_lshl_add_u32", T3, Q, 2, s(S_T1)),
              valu("v_mul_u32_u24", T3, 3456, T3), valu("v_lshl_add_u32", vo, T2, 1, T3),
              valu("v_subrev_u32", T3, 36, T), vcmp("v_cmp_gt_u32", "vcc", 4, T3), cnd(vo, vo, v(V_OOB)),
              salu("s_lshl_b32", s(S_T1), FI, 10), valu("v_lshl_add_u32", vst, v(V_L), 4, s(S_T1)),
              scmp("s_cmp_lt_u32", FI, 2016), salu("s_cselect_b32", s(S_T1), 0, OOB),
              valu("v_or_b32", vo, s(S_T1), vo)]
        for i, so in enumerate(["0", s(57), s(58), s(59)]):
            p += [bload("buffer_load_ushort", v(dst + i), vo, s(SQ, 4), so),
                  bload("buffer_load_ushort", v(dst + 44 + i), vo, s(SQ, 4), so, off=3456)]
    vo, vst = "v54", "v58"
    p += [salu("s_mul_hi_u32", N, GW, (2 ** 32 + 17) // 18), salu("s_mul_i32", s(S_T1), N, 18), salu("s_sub_u32", SS_, GW, s(S_T1))]

    def wo_rows(qsrc, dst):
        return [valu("v_lshrrev_b32", T, 1, qsrc), valu("v_mul_u32_u24", T, 18, T),
                valu("v_and_b32", T2, 1, qsrc), valu("v_lshl_add_u32", T, T2, 3, T),
                salu("s_mul_i32", s(S_T1), SS_, 36), valu("v_add_u32", T, s(S_T1), T),
                valu("v_mul_u32_u24", T2, 72, qsrc), salu("s_mul_i32", s(S_T1), SS_, 288),
                salu("s_sub_u32", s(S_T1), s(S_T1), 16 * 288 - 16), valu("v_add_u32", T2, s(S_T1), T2),
                scmp("s_cmp_lt_u32", SS_, 16), salu("s_cselect_b64", "vcc", -1, 0), cnd(dst, T2, T)]
    p += wo_rows(Q, T3)
    p += [salu("s_cselect_b32", s(60), 2, 18), salu("s_mul_i32", s(60), s(60), 1152), salu("s_mul_i32", s(61), s(60), 2),
          salu("s_mul_i32", s(62), s(60), 3),
          valu("v_mul_u32_u24", T3, 1152, T3), salu("s_lshl_b32", s(S_T1), N, 5),
          valu("v_lshl_add_u32", T, C, 1, s(S_T1)), valu("v_add_u32", vo, T3, T),
          salu("s_lshl_b32", s(S_T1), GW, 10), valu("v_lshl_add_u32", vst, v(V_L), 4, s(S_T1)),
          scmp("s_cmp_lt_u32", GW, 648), salu("s_cselect_b32", s(S_T1), 0, OOB),
          valu("v_or_b32", vo, s(S_T1), vo), valu("v_or_b32", vst, s(S_T1), vst)]
    for i, so in enumerate(["0", s(60), s(61), s(62)]):
        p += [bload("buffer_load_ushort", v(48 + i), vo, s(SO, 4), so),
              bload("buffer_load_ushort", v(92 + i), vo, s(SO, 4), so, off=1152)]
    if warm:
        srd(p, 64, "s76", "s77", D * F * 2); srd(p, 68, "s78", "s79", D * F * 2)
        p += [valu("v_mul_u32_u24", T, 21846, "v0"), valu("v_lshrrev_b32", T, 16, T), valu("v_mul_u32_u24", T2, 3, T),
              valu("v_sub_u32", T2, "v0", T2), salu("s_lshr_b32", s(S_T0), "s2", 4), salu("s_mul_i32", s(S_T0), s(S_T0), 36),
              valu("v_add_u32", T, s(S_T0), T), valu("v_mul_u32_u24", T, 9216, T), valu("v_lshl_add_u32", T, T2, 7, T),
              salu("s_and_b32", s(S_T0), "s2", 15), salu("s_mul_i32", s(S_T0), s(S_T0), 576), salu("s_add_u32", s(S_T0), s(S_T0), 64),
              salu("s_and_b32", s(S_T0), s(S_T0), "0xffffff80"), valu("v_add_u32", T, s(S_T0), T),
              vcmp("v_cmp_gt_u32", "vcc", 108, "v0"), cnd(T, v(V_OOB), T),
              bload("buffer_load_dword", "v60", T, s(64, 4)), bload("buffer_load_dword", "v61", T, s(68, 4))]
    srd_off(p, 72, "s50", "s51", WS_L0 + L_FL, LSTRIDE + 32768)
    p += [salu("s_and_b32", s(S_T0), "s2", 127), salu("s_lshl_b32", s(S_T0), s(S_T0), 8), salu("s_lshr_b32", s(S_T1), "s2", 7),
          salu("s_mul_i32", s(S_T1), s(S_T1), LSTRIDE), salu("s_add_u32", s(S_T0), s(S_T0), s(S_T1)),
          valu("v_lshl_add_u32", T, "v0", 4, s(S_T0)), vcmp("v_cmp_gt_u32", "vcc", 16, "v0"), cnd(T, v(V_OOB), T)]
    for i in range(4):
        p.append(valu("v_mov_b32", v(100 + i), 0))
    p.append(bstore("buffer_store_dwordx4", v(100, 4), T, s(72, 4)))
    for i in range(9):
        unpack(p, Y + 2 * i, v(24 + i))
    centre_and_store(p, SXA, SRS, SMU, None)
    for i in range(12):
        p.append(valu("v_lshl_or_b32", v(40 + i), v(84 + i), 16, v(40 + i)))
    p += [bstore("buffer_store_dwordx4", v(40, 4), "v56", s(SWQ, 4)),
          bstore("buffer_store_dwordx4", v(44, 4), "v57", s(SWQ, 4)),
          bstore("buffer_store_dwordx4", v(48, 4), "v58", s(SWO, 4))]
    p += [wait(vm_all=True, lgkm_all=True), scmp("s_cmp_lt_u32", "s2", 238), raw("s_cbranch_scc1 L_prep_done", "branch"),
          salu("s_sub_u32", SS_, "s2", 238), valu("v_mov_b32", Q, s(S_W))]
    p += wo_rows(Q, T3)
    p += [valu("v_lshrrev_b32", T, 1, v(V_SEG)), valu("v_mul_u32_u24", T, 18, T), valu("v_and_b32", T2, 1, v(V_SEG)),
          valu("v_add_u32", T, T, T2), cnd(T, T, v(V_SEG)), valu("v_add_u32", T3, T3, T),
          valu("v_mul_u32_u24", T3, 1152, T3), valu("v_lshl_add_u32", vo, v(V_M8), 4, T3)]
    for t in range(9):
        p.append(bload("buffer_load_dwordx4", v(64 + 4 * t, 4), vo, s(SO, 4), off=128 * t))
    p += [valu("v_mov_b32", T, 0), valu("v_mov_b32", T2, 0), salu("s_mov_b32", s(S_T1), "0x3f803f80")]
    for t in range(36):
        p.append(valu("v_dot2c_f32_bf16", (T, T2)[t & 1], s(S_T1), v(64 + t), rmw=True))
    p += [valu("v_add_f32", T, T, T2),
          dpp("v_add_f32", T, T, T, "quad_perm:[1,0,3,2]"), dpp("v_add_f32", T, T, T, "quad_perm:[2,3,0,1]"),
          dpp("v_add_f32", T, T, T, "row_half_mirror"),
          valu("v_mul_f32", T, f32(1.0 / D), T),
          valu("v_cvt_pk_bf16_f32", T2, T, T), valu("v_and_b32", T2, "0xffff0000", T2),
          valu("v_sub_f32", T, T, T2), valu("v_cvt_pk_bf16_f32", T, T, T),
          salu("s_add_u32", s(S_T1), SS_, 36 * 18), salu("s_lshl_b32", s(S_T1), s(S_T1), 10),
          salu("s_lshl_b32", s(S_T2), s(S_W), 8), salu("s_add_u32", s(S_T1), s(S_T1), s(S_T2)),
          valu("v_lshl_add_u32", T3, v(V_SEG), 1, s(S_T1)),
          vcmp("v_cmp_eq_u32", "vcc", 0, v(V_M8)), cnd(T3, v(V_OOB), T3),
          bstore("buffer_store_short_d16_hi", T2, T3, s(SWO, 4)),
          bstore("buffer_store_short", T, T3, s(SWO, 4), off=16),
          valu("v_lshl_add_u32", T3, v(V_L), 4, s(S_T1)),
          vcmp("v_cmp_gt_u32", "vcc", 14, v(V_L)), cnd(T3, v(V_OOB), T3)]
    for i in range(4):
        p.append(valu("v_mov_b32", v(40 + i), 0))
    p += [bstore("buffer_store_dwordx4", v(40, 4), T3, s(SWO, 4), off=32), label("L_prep_done")]
```

```python
from asm import *
from layout import *

_n = [0]
SPIN_MAX = 1 << 16


def uid(t):
    _n[0] += 1
    return f"L_{t}_{_n[0]}"


def setup(p):
    p += [salu("s_lshl_b32", "s36", s(G_R), 7), salu("s_lshl_b32", "s37", s(G_C), 2), salu("s_add_u32", "s37", "s37", "s36"),
          valu("v_mov_b32", v(GV_T), OOB), valu("v_mov_b32", v(GV_POST), "s37"),
          vcmp("v_cmp_eq_u32", "vcc", 0, "v0"), cnd(v(GV_POST), v(GV_T), v(GV_POST)),
          valu("v_and_b32", v(GV_POLL), 15, "v0"), valu("v_lshlrev_b32", v(GV_POLL), 2, v(GV_POLL)),
          valu("v_add_u32", v(GV_POLL), "s36", v(GV_POLL))]


def flag_srd(p):
    srd_off(p, G_FL, s(G_LB), s(G_LB + 1), L_FL, LSTRIDE + 32768)


def post(phase, local, soff_reg, one, nxt=False, val=None):
    off = 2048 * phase + (LSTRIDE if nxt else 0)
    out = [salu("s_mov_b32", soff_reg, off)]
    if val is None:
        out.append(valu("v_mov_b32", one, 1))
    else:
        one = val
    if not local:
        out.append(bstore("buffer_store_dword", one, v(GV_POST), s(G_FL, 4), soff_reg, flags="sc1"))
        return out
    fast, done = uid("pf"), uid("pd")
    out += [scmp("s_cmp_eq_u32", s(G_SLOW), 0), raw(f"s_cbranch_scc1 {fast}", "branch"),
            raw("buffer_wbl2 sc1"), raw("s_waitcnt vmcnt(0)"),
            raw(f"buffer_store_dword {one}, {v(GV_POST)}, {s(G_FL, 4)}, {soff_reg} offen sc1"),
            raw(f"s_branch {done}", "branch"), label(fast),
            bstore("buffer_store_dword", one, v(GV_POST), s(G_FL, 4), soff_reg), label(done)]
    return out


def poll_issue(phase, soff_reg, dst, addr=None):
    ld = bload("buffer_load_dword", dst, addr or v(GV_POLL), s(G_FL, 4), soff_reg, flags="sc1")
    ld.glue = True
    return [salu("s_mov_b32", soff_reg, 2048 * phase), ld]


def poll_check(phase, local, soff_reg, dst, tail, addr=None):
    spin, back, inv = uid("sp"), uid("bk"), uid("iv")
    ad = addr or v(GV_POLL)
    out = [vcmp("v_cmp_eq_u32", "vcc", 0, dst), raw(f"s_cbranch_vccnz {spin}", "branch"), label(back)]
    tail += [label(spin), raw(f"s_mov_b32 {s(G_SPIN)}, 0"), raw(f"s_mov_b32 {soff_reg}, {2048 * phase}"), label(spin + "_l"),
             raw(f"buffer_load_dword {dst}, {ad}, {s(G_FL, 4)}, {soff_reg} offen sc1"),
             raw(f"s_add_u32 {s(G_SPIN)}, {s(G_SPIN)}, 1"), raw(f"s_cmp_gt_u32 {s(G_SPIN)}, {SPIN_MAX}"), raw(f"s_cbranch_scc1 {back}"),
             raw("s_waitcnt vmcnt(0)"), raw(f"v_cmp_eq_u32 vcc, 0, {dst}"), raw(f"s_cbranch_vccnz {spin}_l"), raw(f"s_branch {back}")]
    if local:
        out += [scmp("s_cmp_lg_u32", s(G_SLOW), 0), raw(f"s_cbranch_scc1 {inv}", "branch"), label(inv + "_b")]
        tail += [label(inv), raw("buffer_inv sc1"), raw("s_waitcnt vmcnt(0)"), raw(f"s_branch {inv}_b")]
    return out


def poll(phase, local, soff_reg, tail, addr=None):
    return poll_issue(phase, soff_reg, v(GV_T), addr) + poll_check(phase, local, soff_reg, v(GV_T), tail, addr)
```

```python
import sys, os
sys.path.insert(0, os.path.dirname(os.path.abspath(__file__)))
from asm import *
from layout import *
import rows, a1, a2, b1, sync

NAME = "interleave_layers__sliding_local_dilated__glu_gated_bilinear__prompt"
out = sys.argv[1]
kw = dict(x.split("=") for x in sys.argv[2:])
I = lambda k, d: int(kw.get(k, d))
TUP = lambda k, d: tuple(int(x) for x in kw.get(k, d).split(","))
nc = I("nc", 4)
local = I("local", 0)
stamps = I("stamps", 0)
verbose = I("v", 0)
nstamp = [0]


def T(p, real=False):
    if not stamps: return
    k = nstamp[0]; nstamp[0] += 1
    assert k < 32
    p += [Ins(("s_memrealtime" if real else "s_memtime") + " s[42:43]", "smem", wr="s[42:43]"), wait(lgkm_all=True),
          raw(f"s_lshl_b32 s43, s{G_LAYER}, 5"), raw(f"s_or_b32 m0, s43, {k}"), raw("s_nop 0"),
          raw("v_writelane_b32 v95, s42, m0")]


def prep_kernel():
    name = NAME + "_kernel"
    p = [scmp("s_cmp_ge_u32", "s2", 256), raw(f"s_cbranch_scc1 L_prep_end", "branch")]
    if stamps:
        p += [Ins("s_memrealtime s[96:97]", "smem", wr="s[96:97]"), wait(lgkm_all=True)]
    rows.prep(p, warm=I("warm", 1))
    if stamps:
        p += [wait(vm_all=True, lgkm_all=True), Ins("s_memrealtime s[92:93]", "smem", wr="s[92:93]"), sload(90, 2, K_WS), wait(lgkm_all=True),
              salu("s_add_u32", "s90", "s90", WS_STAMP + 262144), salu("s_addc_u32", "s91", "s91", 0),
              valu("v_lshrrev_b32", "v1", 6, "v0"), salu("s_lshl_b32", "s89", "s2", 2), valu("v_add_u32", "v1", "s89", "v1"), valu("v_lshlrev_b32", "v1", 3, "v1"),
              valu("v_mov_b32", "v4", "s96"), valu("v_mov_b32", "v5", "s92"),
              Ins("global_store_dwordx2 v1, v[4:5], s[90:91]", "vst", rd=["v1", "v[4:5]", "s[90:91]"])]
    p += [label("L_prep_end"), raw("s_endpgm")]
    return name, kernel_header(name) + "\n" + text(finalize(p, verbose=verbose)), kernel_desc(name, vgpr=128, accum=128), 9216


def main_kernel():
    name = "main_kernel"
    tail = []
    B = b1.B1(nb=I("nb", 4), nb0=I("nb0", 2), nb2=I("nb2", 3), lau=I("lau", 9), pro=I("pro", 3), npre=TUP("npre", "12,6"), local=local,
              lags=TUP("lags", "3,2,3,3" if local else "5,4,4,4"), wqd=TUP("wqd", "24,27,30,33,36,39,99,99"), verbose=verbose, warm=I("warm", 1))
    fl = "" if local else "sc1"
    p = [scmp("s_cmp_ge_u32", "s2", 256), raw("s_cbranch_scc1 L_main_end", "branch"),
         sload(G_WG, 4, K_WG), sload(G_WD, 2, K_WD), sload(G_WS, 2, K_WS), sload(G_OUT, 2, K_OUT),
         valu("v_lshrrev_b32", "v1", 6, "v0"), salu("s_mov_b32", s(G_LAYER), 0), salu("s_mov_b32", s(G_SLOW), 0),
         valu("v_readfirstlane_b32", s(G_W), "v1")]
    lg = nc.bit_length() - 1
    p += [salu("s_and_b32", "s36", "s2", 7), salu("s_lshr_b32", "s37", "s2", 3),
          salu("s_and_b32", s(G_C), "s36", 16 // nc - 1), salu("s_lshl_b32", s(G_C), s(G_C), lg),
          salu("s_and_b32", "s38", "s37", nc - 1), salu("s_add_u32", s(G_C), s(G_C), "s38"),
          salu("s_lshr_b32", s(G_R), "s36", 4 - lg), salu("s_lshl_b32", s(G_R), s(G_R), 5 - lg),
          salu("s_lshr_b32", "s38", "s37", lg), salu("s_add_u32", s(G_R), s(G_R), "s38"),
          wait(lgkm_all=True)]
    T(p, True); T(p)
    p += a1.wq_setup()
    for rho in range(8):
        p += a1.wq_round(rho, "s38")
    p += [salu("s_add_u32", s(G_LB), s(G_WS), WS_L0), salu("s_addc_u32", s(G_LB + 1), s(G_WS + 1), 0)]
    sync.setup(p)
    sync.flag_srd(p)
    if local:
        p += [raw("s_getreg_b32 s36, hwreg(HW_REG_XCC_ID, 0, 4)", "salu", wr=["s36"]), salu("s_add_u32", "s36", "s36", 1), valu("v_mov_b32", "v26", "s36")]
        p += sync.post(F_X, False, "s37", None, val="v26")
    pre = finalize(p, verbose=verbose)

    p = [label("L_layer")]
    late = a1.setup(p)
    T(p)
    rest = a1.body(p, late, tail, la=I("a1la", 5), st_flags=fl, wo_early=I("woe", 8), T=T)
    if local:
        skip = sync.uid("xc")
        q = sync.poll(F_X, False, "s36", tail) + [
            raw("s_getreg_b32 s36, hwreg(HW_REG_XCC_ID, 0, 4)", "salu", wr=["s36"]), salu("s_add_u32", "s36", "s36", 1),
            vcmp("v_cmp_ne_u32", "vcc", "s36", v(GV_T)), raw("s_nop 4"), scmp("s_cmp_lg_u64", "vcc", 0), salu("s_cselect_b32", s(G_SLOW), 1, I("slow", 0))]
        p += [scmp("s_cmp_lg_u32", s(G_LAYER), 0), raw(f"s_cbranch_scc1 {skip}", "branch")]
        p += [raw(i.text, "branch" if i.kind == "branch" else "raw") if i.kind != "label" else i for i in finalize(q)]
        p.append(label(skip))
    p += [wait(vm_all=True), barrier()] + sync.post(F_O, local, "s36", "v26")
    T(p)
    p += rest
    a2.setup(p)
    p += a2.residual_loads()
    b1.setup(p)
    T(p)
    p += sync.poll(F_O, local, "s36", tail)
    T(p)
    a2.body(p, B.prefetch(0), st_flags=fl, ld_flags=fl, T=T)
    T(p)
    p += [wait(vm_all=True), barrier()] + sync.post(F_B, local, "s36", "v1")
    T(p)
    p += sum(B.prefetch(1), [])
    p += sync.poll(F_B, local, "s36", tail)
    T(p)
    B.body(p, tail, T=T, stamps=(0, 12, 24, 48, 72, 96, 108, 126, 144))
    p += [scmp("s_cmp_lg_u32", s(G_LAYER), 0), raw("s_cbranch_scc1 L_last", "branch")]
    st = finalize(p, verbose=verbose, keep=True)
    body, state = st
    q = []
    B.finish(q, False)
    q += [wait(vm_all=True), barrier()] + sync.post(F_A, False, "s36", "v1", nxt=True)
    T(q); T(q, True)
    q += [salu("s_mov_b32", s(G_LAYER), 1), salu("s_add_u32", s(G_LB), s(G_LB), LSTRIDE), salu("s_addc_u32", s(G_LB + 1), s(G_LB + 1), 0)]
    sync.flag_srd(q)
    q.append(raw("s_branch L_layer", "branch"))
    r = []
    B.finish(r, True)
    if stamps:
        nstamp[0] -= 2
        r.append(wait(vm_all=True))
        T(r); T(r, True)
        r += [salu("s_add_u32", "s36", s(G_WS), WS_STAMP), salu("s_addc_u32", "s37", s(G_WS + 1), 0), salu("s_lshl_b32", "s38", "s2", 10),
              valu("v_lshl_add_u32", "v1", "v0", 2, "s38"), Ins("global_store_dword v1, v95, s[36:37]", "vst", rd=["v1", "v95", "s[36:37]"])]
    prog = pre + body + finalize(q, state=state) + [label("L_last")] + finalize(r, state=state) + [label("L_main_end"), raw("s_endpgm")] + tail
    return name, kernel_header(name) + "\n" + text(prog), kernel_desc(name), b1.LDS_BYTES


K = [prep_kernel(), main_kernel()]
head = open(os.path.join(os.path.dirname(os.path.abspath(__file__)), "..", NAME + ".s.ref")).read().split("; Override")[0]
src = head + "; Generated by gen/build.py (hand-scheduled generator scripts in gen/).\n"
for name, _, _, lds in K:
    src += f"; @launch kernel={name} grid=(256,1,1) block=(256,1,1) lds={lds}\n"
src += '.amdgcn_target "amdgcn-amd-amdhsa--gfx950"\n.text\n' + "".join(k[1] + "\n" for k in K)
src += '.section .rodata,"a"\n' + "".join(".p2align 6\n" + k[2] + "\n" for k in K)
open(out, "w").write(src)
if stamps: print("stamps per layer:", nstamp[0])
```

```python
import math
from asm import *
from layout import *

import sync
SXA, SRS, SOF = 4, 8, 12
SWQ, SWO = 44, 60
S_HP = G_C
S_W, S_R = G_W, G_R
S_MH = 35
S_W4K = 66
S_T0, S_T1, S_T2 = 36, 37, 38
S_K = 48
S_MASK = 64
S_PLO, S_PHI, S_ONE = 32, 33, 34
STG = WQ_SLICE
PITCH = 240
LDS_BYTES = STG + 144 * PITCH
V_LIN, V_LIN2, V_LH, V_LH2, V_LX = 1, 2, 3, 4, 19
V_XH, V_XO, V_DW = 5, 6, 7
V_RS = 8
V_SH, V_SH4, V_SO = 11, 12, 13
V_KV, V_Q, V_O, V_O8 = 14, 15, 16, 17
V_NEG = 18
V_PA = 25
V_FR = 176
V_HF = 32
V_ACC = 112
V_WP, V_W3 = 250, 251


def xa(i, sx):
    return a(72 * i + 4 * sx, 4)


def wq_setup(enable=None):
    p = []
    srd_off(p, SWQ, s(G_WS), s(G_WS + 1), WS_WQ, 16 * WQ_SLICE)
    if enable is not None:
        p += [scmp("s_cmp_eq_u32", s(G_LAYER), 0), salu("s_cselect_b32", s(SWQ + 2), s(SWQ + 2), 0)]
    p += [salu("s_mul_i32", s(S_T0), s(S_HP), WQ_SLICE), salu("s_lshl_b32", s(S_W4K), s(S_W), 12), salu("s_add_u32", s(S_T0), s(S_T0), s(S_W4K)),
          valu("v_and_b32", v(V_DW), 63, "v0"), valu("v_lshlrev_b32", v(V_DW), 4, v(V_DW)), valu("v_add_u32", v(V_DW), s(S_T0), v(V_DW))]
    return p


def wq_round(rho, sreg):
    out = [salu("s_add_u32", "m0", s(S_W4K), 16384 * rho), salu("s_mov_b32", sreg, 16384 * rho)]
    out += [dma(v(V_DW), s(SWQ, 4), sreg, off=1024 * i, tag=("wq", rho)) for i in range(4)]
    return out


def wq_piece(rho, i, sreg):
    r = wq_round(rho, sreg)
    return r[:2] + [r[2 + i]]


def setup(p):
    L, M, Q, T, T2 = "v20", "v21", "v22", "v23", "v24"
    p += [valu("v_and_b32", L, 63, "v0"), valu("v_and_b32", M, 15, L), valu("v_lshrrev_b32", Q, 4, L),
          valu("v_lshlrev_b32", v(V_LIN), 4, L), valu("v_add_u32", v(V_LIN2), 65536, v(V_LIN)),
          valu("v_add_u32", v(V_LX), STG + 2048, v(V_LIN)),
          salu("s_lshl_b32", s(S_T0), s(S_W), 10), valu("v_add_u32", v(V_LH), s(S_T0), v(V_LIN)),
          valu("v_add_u32", v(V_LH2), 65536, v(V_LH)),
          salu("s_lshl_b32", s(S_T0), s(S_R), 3), salu("s_max_u32", s(S_T1), s(S_T0), 1), salu("s_sub_u32", s(S_T1), s(S_T1), 1),
          salu("s_lshl_b32", s(S_T2), s(S_W), 1), salu("s_add_u32", s(S_T0), s(S_T0), s(S_T2)),
          valu("v_lshrrev_b32", T, 3, M), valu("v_lshlrev_b32", T, 7, T), valu("v_and_b32", T2, 7, M), valu("v_lshl_add_u32", T, T2, 2, T),
          salu("s_lshl_b32", s(S_T2), s(S_T1), 8), valu("v_add_u32", v(V_RS), s(S_T2), T),
          salu("s_lshl_b32", s(S_T2), s(S_T0), 8), valu("v_add_u32", v(V_RS + 1), s(S_T2), T),
          salu("s_mul_i32", s(S_T1), s(S_T1), MT), salu("s_mul_i32", s(S_MH), s(S_W), 5120), salu("s_add_u32", s(S_T1), s(S_T1), s(S_MH)),
          valu("v_add_u32", v(V_XH), s(S_T1), v(V_LIN)), salu("s_add_u32", s(S_MH), s(S_MH), STG + 2048),
          salu("s_mul_i32", s(S_T0), s(S_T0), MT), valu("v_add_u32", v(V_XO), s(S_T0), v(V_LIN)),
          salu("s_max_u32", s(S_T0), s(S_R), 1), salu("s_sub_u32", s(S_T0), s(S_T0), 1), salu("s_lshl_b32", s(S_T0), s(S_T0), 11),
          salu("s_add_u32", s(S_T0), s(S_T0), 14 * 128), valu("v_and_b32", T, 1, L), valu("v_lshl_add_u32", T, T, 7, s(S_T0)),
          vcmp("v_cmp_gt_u32", "vcc", 16, L), cnd(v(V_PA), T, v(GV_POLL))]
    for i in range(5):
        p += [salu("s_mov_b32", s(S_K + i), 4096 * i), salu("s_mov_b32", s(S_K + 5 + i), MT + 4096 * i)]
    srd_off(p, SXA, s(G_LB), s(G_LB + 1), L_XA, ACT)
    srd_off(p, SRS, s(G_LB), s(G_LB + 1), L_ST, 32768)
    late = []
    srd_off(late, SOF, s(G_LB), s(G_LB + 1), L_OF, ACT)
    late += [valu("v_mul_u32_u24", T, PITCH, M), valu("v_lshl_add_u32", T, Q, 3, T),
             valu("v_add_u32", v(V_SH4), STG + 32 * 4, T),
             salu("s_lshl_b32", s(S_T0), s(S_W), 5), salu("s_add_u32", s(S_T1), s(S_T0), STG), valu("v_add_u32", v(V_SH), s(S_T1), T),
             salu("s_mul_i32", s(S_T0), s(S_T0), PITCH), salu("s_add_u32", s(S_T0), s(S_T0), STG + 16 * PITCH),
             valu("v_add_u32", v(V_SO), s(S_T0), T)]
    HH = "v26"
    late += [valu("v_lshrrev_b32", HH, 5, L), valu("v_and_b32", T, 31, L), salu("s_lshl_b32", s(S_T0), s(S_W), 5),
             valu("v_add_u32", T, s(S_T0), T),
             valu("v_mul_u32_u24", T2, PITCH, T),
             valu("v_mul_u32_u24", v(V_KV), 80, HH), valu("v_add_u32", v(V_KV), v(V_KV), T2), valu("v_add_u32", v(V_KV), STG + 2 * PITCH, v(V_KV)),
             valu("v_mul_u32_u24", v(V_Q), 36, HH), valu("v_add_u32", v(V_Q), v(V_Q), T2), valu("v_add_u32", v(V_Q), STG + 16 * PITCH + 152, v(V_Q)),
             salu("s_lshl_b32", s(S_T1), s(S_R), 7), valu("v_add_u32", T, s(S_T1), T)]
    for w in range(1, 8):
        late.append(vcmp("v_cmp_le_u32", s(S_MASK + 2 * (w - 1), 2), 2 * w, T))
    late += [valu("v_lshrrev_b32", T2, 4, T), valu("v_mul_u32_u24", T2, MT, T2),
             valu("v_lshl_add_u32", v(V_O), M, 4, T2), valu("v_lshl_add_u32", v(V_O), HH, 9, v(V_O)),
             salu("s_lshl_b32", s(S_T1), s(S_HP), 10), valu("v_add_u32", v(V_O), s(S_T1), v(V_O)),
             valu("v_lshl_add_u32", v(V_O8), M, 2, T2), valu("v_lshl_add_u32", v(V_O8), HH, 6, v(V_O8)),
             salu("s_lshl_b32", s(S_T1), s(S_HP), 7), salu("s_add_u32", s(S_T1), s(S_T1), 16384), valu("v_add_u32", v(V_O8), s(S_T1), v(V_O8)),
             valu("v_mov_b32", v(V_NEG), f32(-1e9 * math.log2(math.e))),
             salu("s_mov_b32", s(S_PLO), "0x05040100"), salu("s_mov_b32", s(S_PHI), "0x07060302"), salu("s_mov_b32", s(S_ONE), "0x3f803f80")]
    srd_off(late, SWO, s(G_WS), s(G_WS + 1), WS_WO, 37 * MT)
    late += [salu("s_and_b32", s(S_T0), s(G_C), 3), salu("s_and_b32", s(S_T1), s(S_T0), 1), salu("s_mul_i32", s(S_T0), s(S_T0), 9),
             salu("s_add_u32", s(S_T2), s(S_T0), s(S_T1)), salu("s_xor_b32", s(S_T1), s(S_T1), 1), salu("s_lshl_b32", s(S_T1), s(S_T1), 3),
             salu("s_add_u32", s(S_T0), s(S_T0), s(S_T1)),
             salu("s_lshl_b32", s(S_T1), s(S_W), 1), salu("s_add_u32", s(S_T2), s(S_T2), s(S_T1)),
             salu("s_mul_i32", s(S_T2), s(S_T2), MT), valu("v_add_u32", v(V_WP), s(S_T2), v(V_LIN)),
             scmp("s_cmp_lt_u32", s(S_W), 2), salu("s_cselect_b32", s(S_T0), s(S_T0), 36),
             salu("s_mul_i32", s(S_T0), s(S_T0), MT), valu("v_add_u32", v(V_W3), s(S_T0), v(V_LIN))]
    return late


def wo_load(i, sx):
    k, o = sx >> 2, 1024 * (sx & 3)
    return bload("buffer_load_dwordx4", xa(i, sx), v(V_W3 if i == 2 else V_WP), s(SWO, 4), s(S_K + k + (5 if i == 1 else 0)), off=o)


def body(p, late, tail, la=4, st_flags="", ld_flags="sc1", wo_keep=0, T=None, HD=3):
    p += late
    skip = sync.uid("a1np")
    p += [scmp("s_cmp_eq_u32", s(G_LAYER), 0), raw(f"s_cbranch_scc1 {skip}", "branch")]
    q = sync.poll(F_A, False, s(S_T0), tail, addr=v(V_PA))
    p += [raw(i.text, "branch" if i.kind == "branch" else "raw") if i.kind != "label" else i for i in finalize(q)]
    p.append(label(skip))
    if T: T(p)

    def xl(sx):
        k, o = sx >> 2, 1024 * (sx & 3)
        return [bload("buffer_load_dwordx4", xa(0, sx), v(V_XO), s(SXA, 4), s(S_K + k), off=o, flags=ld_flags),
                bload("buffer_load_dwordx4", xa(1, sx), v(V_XO), s(SXA, 4), s(S_K + 5 + k), off=o, flags=ld_flags, tag=("x", sx))]

    def fr(sx, n):
        return V_FR + 28 * (sx & 1) + 4 * n

    def hfr(sx, i):
        return V_HF + 12 * (sx & 1) + 4 * i

    def reads(sx):
        out = []
        for n in range(7):
            off = (7 * sx + n) * 1024
            out.append(dsr("ds_read_b128", v(fr(sx, n), 4), v((V_LIN, V_LIN2)[off >> 16]), off & 65535, tag=("fr", sx)))
        return out

    def hreads(sx):
        off, off4 = 7 * sx * 1024, (7 * sx + 4) * 1024
        return [dsr("ds_read_b128", v(hfr(sx, 0), 4), v((V_LH, V_LH2)[off >> 16]), off & 65535),
                dsr("ds_read_b128", v(hfr(sx, 1), 4), v((V_LIN, V_LIN2)[off4 >> 16]), off4 & 65535),
                dsr("ds_read_b128", v(hfr(sx, 2), 4), v(V_LX), 1024 * sx, tag=("hf", sx))]

    acc = lambda t, n: V_ACC + 28 * t + 4 * n
    HA, HB_ = V_ACC + 56, V_ACC + 60

    def hmf(sx):
        return [mfma16(v(c, 4), v(hfr(sx, i), 4), v(hfr(sx, 2), 4), "0" if sx == 0 else v(c, 4)) for i, c in enumerate((HA, HB_))]
    p += xl(0) + xl(1)
    p.append(salu("s_mov_b32", "m0", s(S_MH)))
    p += [dma(v(V_XH), s(SXA, 4), "0", off=1024 * i, flags=ld_flags, tag="xh") for i in range(4)]
    p += [salu("s_add_u32", "m0", s(S_MH), 4096), dma(v(V_XH), s(SXA, 4), s(S_K + 1), flags=ld_flags, tag="xh")]
    for sx in range(2, la):
        p += xl(sx)
    p += [wait(vm=[("x", 0)]), barrier()]
    p += reads(0)
    if T: T(p)
    rs = [bload("buffer_load_dword", v(V_RS + 2), v(V_RS + 1), s(SRS, 4), off=256, flags=ld_flags),
          bload("buffer_load_dword", v(V_RS), v(V_RS), s(SRS, 4), flags=ld_flags),
          bload("buffer_load_dword", v(V_RS + 1), v(V_RS + 1), s(SRS, 4), flags=ld_flags)]
    w3 = [wo_load(2, sx) for sx in range(18)]
    pairs = [wo_load(i, sx) for sx in range(18) for i in range(2)]
    for sx in range(18 + HD):
        fill = reads(sx + 1) if sx + 1 < 18 else []
        if 0 <= sx + 1 - HD < 18: fill += hreads(sx + 1 - HD)
        ld = []
        if sx < 18:
            ld = xl(sx + la) if sx + la < 18 else (rs if sx + la == 18 else [pairs.pop(0), pairs.pop(0)])
            ld = ld + [w3.pop(0)]
        ms = []
        if sx < 18:
            for n in range(7):
                for t in range(2):
                    c = v(acc(t, n), 4)
                    ms.append(mfma16(c, v(fr(sx, n), 4), xa(t, sx), "0" if sx == 0 else c))
        if sx >= HD: ms += hmf(sx - HD)
        p.append(wait(lgkm=[("fr", sx), ("hf", sx - HD)], vm=[("x", sx)]))
        for k, m in enumerate(ms):
            p.append(m)
            if k == 0 and sx == HD - 1:
                p += [wait(vm=["xh"]), barrier()]
            elif fill:
                p.append(fill.pop(0))
            elif ld:
                p.append(ld.pop(0))
        p += fill + ld
    p.append(barrier())
    if T: T(p)
    n_early = len(pairs) - wo_keep
    early, rest = pairs[:n_early], pairs[n_early:]
    start = len(p)
    tiles = [(HA, V_RS, V_SH, 0), (HB_, V_RS, V_SH4, 0)] + \
            [(acc(t, n), V_RS + 1 + t, V_SO, 16 * PITCH * t + 32 * n) for n in range(7) for t in range(2)]
    tiles = tiles[2:] + tiles[:2]
    for k, (c, rs, ad, off) in enumerate(tiles):
        tt = V_FR + 2 * (k & 3)
        for e in range(4):
            p.append(valu("v_mul_f32", v(c + e), v(c + e), v(rs)))
        p += [valu("v_cvt_pk_bf16_f32", v(tt), v(c), v(c + 1)), valu("v_cvt_pk_bf16_f32", v(tt + 1), v(c + 2), v(c + 3)),
              dsw("ds_write_b64", v(ad), v(tt, 2), off)]
    p += [wait(lgkm_all=True), barrier()]
    if T: T(p)
    KV, Qr, LG, PP, O, TM = 36, 196, 208, 216, 220, 238
    for i in range(4):
        p.append(Ins(f"ds_read2_b32 {v(Qr + 2 * i, 2)}, {v(V_Q)} offset0:{2 * i} offset1:{2 * i + 1}", "dsr", rd=[v(V_Q)], wr=[v(Qr + 2 * i, 2)]))
    p.append(dsr("ds_read_b32", v(Qr + 8), v(V_Q), 32))

    def kvread(w, pc):
        off = 2 * PITCH * (7 - w) + 16 * pc
        if pc < 4:
            return dsr("ds_read_b128", v(KV + 20 * w + 4 * pc, 4), v(V_KV), off)
        return dsr("ds_read_b64", v(KV + 20 * w + 16, 2), v(V_KV), off)
    for w in range(8):
        p += [kvread(w, pc) for pc in range(3)]
    vreads = [kvread(w, pc) for w in range(8) for pc in (3, 4)]
    for half in range(2):
        for i in range(9):
            for w in range(4 * half, 4 * half + 4):
                if i == 0:
                    p.append(valu("v_dot2_f32_bf16", v(LG + w), v(Qr), v(KV + 20 * w), 0))
                else:
                    p.append(valu("v_dot2_f32_bf16", v(LG + w), v(Qr + i), v(KV + 20 * w + i), v(LG + w)))
            if half == 0 and vreads:
                p += [vreads.pop(0), vreads.pop(0)]
    assert not vreads
    cs = f32(DH ** -0.5 * math.log2(math.e))
    for w in range(8):
        p.append(valu("v_mul_f32", v(LG + w), cs, v(LG + w)))
    for w in range(1, 8):
        p.append(cnd(v(LG + w), v(V_NEG), v(LG + w), s(S_MASK + 2 * (w - 1), 2)))
    MX = v(TM + 8)
    p += [valu("v_max3_f32", MX, v(LG), v(LG + 1), v(LG + 2)), valu("v_max3_f32", v(TM + 9), v(LG + 3), v(LG + 4), v(LG + 5)),
          valu("v_max3_f32", MX, MX, v(LG + 6), v(LG + 7)), valu("v_max_f32", MX, MX, v(TM + 9))]
    for w in range(8):
        p.append(valu("v_sub_f32", v(LG + w), v(LG + w), MX))
    for w in range(8):
        p.append(valu("v_exp_f32", v(LG + w), v(LG + w)))
    for j in range(4):
        p.append(valu("v_cvt_pk_bf16_f32", v(PP + j), v(LG + 2 * j), v(LG + 2 * j + 1)))
    SUM = v(TM + 10)
    p.append(valu("v_dot2_f32_bf16", SUM, v(PP), s(S_ONE), 0))
    for j in range(1, 4):
        p.append(valu("v_dot2_f32_bf16", SUM, v(PP + j), s(S_ONE), SUM))
    k = 0
    pend = []
    for j in range(4):
        for i in range(9):
            x0, x1 = v(KV + 20 * (2 * j) + 9 + i), v(KV + 20 * (2 * j + 1) + 9 + i)
            t = TM + 2 * (k & 3); k += 1
            p += [valu("v_perm_b32", v(t), x1, x0, s(S_PLO)), valu("v_perm_b32", v(t + 1), x1, x0, s(S_PHI))]
            p += pend
            pend = [valu("v_dot2_f32_bf16", v(O + 2 * i + e), v(PP + j), v(t + e), 0 if j == 0 else v(O + 2 * i + e)) for e in range(2)]
            if j == 1 and i == 0:
                p.append(valu("v_rcp_f32", SUM, SUM))
    p += pend
    for d in range(18):
        p.append(valu("v_mul_f32", v(O + d), v(O + d), SUM))
    for i in range(9):
        p.append(valu("v_cvt_pk_bf16_f32", v(Qr + i), v(O + 2 * i), v(O + 2 * i + 1)))
    seg = p[start:]; del p[start:]
    step = max(1, int(len(seg) * 0.8) // max(1, len(early)))
    for i, ins in enumerate(seg):
        p.append(ins)
        if i % step == step - 1 and early: p.append(early.pop(0))
    p += early
    p += [bstore("buffer_store_dwordx4", v(Qr, 4), v(V_O), s(SOF, 4), flags=st_flags),
          bstore("buffer_store_dwordx4", v(Qr + 4, 4), v(V_O), s(SOF, 4), off=256, flags=st_flags),
          bstore("buffer_store_dword", v(Qr + 8), v(V_O8), s(SOF, 4), flags=st_flags)]
    if T: T(p)
    return rest
```

```python
from asm import *
from layout import *

import sync
from a1 import S_K, xa as wa
SOF, SXA, SXB, SSS, SDM = 64, 68, 72, 60, 44
S_W = G_W
S_M0, S_F0, S_F1, S_LO = 3, 58, 59, 78
S_T0, S_T1, S_T2, S_T3 = 36, 37, 38, 39
DMB = 2 * MT
LDS_BYTES = DMB + 1280
V_LIN, V_L3 = 160, 161
V_DO = 162
V_XP, V_X3, V_X3S, V_LQ, V_LQ3 = 163, 164, 180, 181, 182
V_DMW, V_DMR, V_DMR3, V_DMG, V_SSG = 165, 166, 167, 168, 169
V_BF = 96
V_ACC = 64
V_RES = 84


def setup(p):
    L, M, T, T2, OB = "v170", "v171", "v173", "v174", "v175"
    PB, ST, W1, RB, CB = s(32), s(33), s(34), s(35), s(40)
    p += [valu("v_and_b32", L, 63, "v0"),
          valu("v_and_b32", M, 15, L), valu("v_lshlrev_b32", v(V_LIN), 4, L), valu("v_mov_b32", OB, OOB),
          salu("s_lshl_b32", RB, s(G_R), 2), salu("s_lshr_b32", s(S_T0), s(G_C), 2), salu("s_add_u32", RB, RB, s(S_T0)),
          salu("s_and_b32", CB, s(G_C), 3),
          salu("s_mul_i32", s(S_M0), s(S_W), 9216), salu("s_and_b32", W1, s(S_W), 1),
          salu("s_mul_i32", s(S_T3), RB, 2 * MT),
          salu("s_add_u32", s(S_T0), s(S_T3), s(S_M0)), valu("v_add_u32", v(V_DO), s(S_T0), v(V_LIN))]
    srd_off(p, SOF, s(G_LB), s(G_LB + 1), L_OF, ACT)
    p = []
    p += [salu("s_mul_i32", s(S_T0), CB, 9), salu("s_and_b32", s(S_T1), CB, 1),
          salu("s_add_u32", PB, s(S_T0), s(S_T1)), salu("s_xor_b32", s(S_T1), s(S_T1), 1), salu("s_lshl_b32", s(S_T1), s(S_T1), 3),
          salu("s_add_u32", ST, s(S_T0), s(S_T1)),
          salu("s_lshl_b32", s(S_T0), s(S_W), 1), salu("s_add_u32", PB, PB, s(S_T0)),
          scmp("s_cmp_lt_u32", s(S_W), 2), salu("s_cselect_b32", s(S_T2), 0, OOB),
          salu("s_lshl_b32", s(S_T0), PB, 9), salu("s_add_u32", s(S_T0), s(S_T0), s(S_T3)), valu("v_add_u32", v(V_XP), s(S_T0), v(V_LIN)),
          salu("s_lshr_b32", s(S_T0), ST, 1), salu("s_lshl_b32", s(S_T0), s(S_T0), 10), salu("s_and_b32", s(S_T1), ST, 1),
          salu("s_lshl_b32", s(S_T1), s(S_T1), 3), salu("s_add_u32", s(S_T0), s(S_T0), s(S_T1)),
          salu("s_mul_i32", s(S_T1), W1, MT), valu("v_add_u32", v(V_L3), s(S_T1), v(V_LIN)),
          salu("s_add_u32", s(S_T0), s(S_T0), s(S_T3)), valu("v_add_u32", v(V_X3), s(S_T0), v(V_L3)),
          valu("v_or_b32", v(V_X3), s(S_T2), v(V_X3)),
          salu("s_lshl_b32", s(S_T0), ST, 9), salu("s_add_u32", s(S_T0), s(S_T0), s(S_T3)), salu("s_add_u32", s(S_T0), s(S_T0), s(S_T1)),
          valu("v_lshl_add_u32", v(V_X3S), L, 3, s(S_T0)), valu("v_or_b32", v(V_X3S), s(S_T2), v(V_X3S)),
          valu("v_lshrrev_b32", T, 4, L), valu("v_lshlrev_b32", T, 8, T), valu("v_lshl_add_u32", v(V_LQ), M, 2, T),
          valu("v_add_u32", v(V_LQ), 16384, v(V_LQ)), valu("v_add_u32", v(V_LQ3), s(S_T1), v(V_LQ))]
    srd_off(p, SXA, s(G_LB), s(G_LB + 1), L_XA, ACT)
    p += residual_loads()
    srd_off(p, SXB, s(G_LB), s(G_LB + 1), L_XB, ACT)
    srd_off(p, SSS, s(G_LB), s(G_LB + 1), L_SS, S * 64)
    srd_off(p, SDM, s(G_LB), s(G_LB + 1), L_DM, S * 4)
    p += [valu("v_lshlrev_b32", T, 2, M), valu("v_add_u32", v(V_DMR), DMB, T),
          salu("s_lshl_b32", s(S_T0), W1, 6), valu("v_add_u32", v(V_DMR3), s(S_T0), v(V_DMR)),
          valu("v_lshlrev_b32", T2, 2, "v0"), valu("v_add_u32", T2, DMB + 128, T2),
          valu("v_and_b32", T, 0xb0, "v0"), vcmp("v_cmp_eq_u32", "vcc", 0x80, T), cnd(v(V_DMW), T2, v(V_DMR3)),
          valu("v_lshrrev_b32", T, 5, L), valu("v_lshl_add_u32", T, T, 4, M), valu("v_lshlrev_b32", T, 2, T),
          salu("s_lshl_b32", s(S_T0), RB, 7), valu("v_add_u32", T, s(S_T0), T),
          salu("s_lshl_b32", s(S_T1), CB, 2), salu("s_add_u32", s(S_T1), s(S_T1), s(S_W)), salu("s_lshl_b32", s(S_T2), s(S_T1), 13),
          valu("v_add_u32", T2, s(S_T2), T), valu("v_and_b32", v(V_SSG), 16, L), vcmp("v_cmp_eq_u32", "vcc", 0, v(V_SSG)),
          cnd(v(V_SSG), OB, T2), cnd(v(V_DMG), OB, T),
          scmp("s_cmp_eq_u32", s(S_T1), 0), salu("s_cselect_b32", s(S_T1), 0, OOB), valu("v_or_b32", v(V_DMG), s(S_T1), v(V_DMG)),
          vcmp("v_cmp_gt_u32", s(S_LO, 2), 32, L),
          scmp("s_cmp_eq_u32", s(S_W), 0), salu("s_cselect_b32", s(S_F0), "1.0", 0),
          scmp("s_cmp_eq_u32", s(S_W), 1), salu("s_cselect_b32", s(S_F1), "1.0", 0)]
    return p


def residual_loads():
    return [bload("buffer_load_dwordx4", v(V_RES, 4), v(V_XP), s(SXA, 4), flags="sc1"),
            bload("buffer_load_dwordx4", v(V_RES + 4, 4), v(V_XP), s(SXA, 4), s(S_K + 5), flags="sc1"),
            bload("buffer_load_dwordx2", v(V_RES + 8, 2), v(V_X3), s(SXA, 4), flags="sc1")]


def body(p, shadow, extra, st_flags="", ld_flags="", T=None):
    for g in range(3):
        p += [salu("s_add_u32", "m0", s(S_M0), 4096 * g)]
        p += [dma(v(V_DO), s(SOF, 4), s(S_K + g), off=1024 * i, tag="o", flags=ld_flags) for i in range(4 if g < 2 else 1)]

    def bf(sx, i):
        return v(V_BF + 12 * (sx % 3) + 4 * i, 4)

    def reads(sx):
        if sx < 16:
            return [dsr("ds_read_b128", bf(sx, 0), v(V_LIN), 1024 * sx), dsr("ds_read_b128", bf(sx, 1), v(V_LIN), MT + 1024 * sx),
                    dsr("ds_read_b128", bf(sx, 2), v(V_L3), 1024 * sx)]
        out = []
        for i, (ad, off) in enumerate(((V_LQ, 0), (V_LQ, MT), (V_LQ3, 0))):
            b = V_BF + 12 * (sx % 3) + 4 * i
            out += [dsr("ds_read_b32", v(b + d), v(ad), off + 1024 * (sx - 16) + 64 * d) for d in range(4)]
        return out
    p += shadow
    p += [wait(vm=["o"]), barrier()]
    if T: T(p)
    p += reads(0) + reads(1)
    acc = [v(V_ACC + 4 * i, 4) for i in range(5)]
    for sx in range(18):
        fill = (reads(sx + 2) if sx + 2 < 18 else [])
        ld = extra.pop(0) if extra else []
        ms = [(4, 2, 2), (0, 0, 0), (1, 0, 1), (2, 1, 0), (3, 1, 1)]
        for k, (c, wi, bi) in enumerate(ms):
            p.append(mfma16(acc[c], wa(wi, sx), bf(sx, bi), "0" if sx == 0 else acc[c]))
            for _ in range(1 if sx < 14 else 3):
                if fill: p.append(fill.pop(0))
            if ld and k >= 2: p.append(ld.pop(0))
        p += ld
    if T: T(p)
    T = "v176"
    p += [valu("v_add_f32", T, v(V_ACC + 16), v(V_ACC + 17)), dsw("ds_write_b32", v(V_DMW), T, tag="dm")]
    U = 32
    src = {0: V_RES, 2: V_RES + 2, 1: V_RES + 4, 3: V_RES + 6, 4: V_RES + 8}
    p += [wait(lgkm=["dm"]), barrier(),
          dsr("ds_read_b32", "v177", v(V_DMR)), dsr("ds_read_b32", "v178", v(V_DMR), 64), dsr("ds_read_b32", "v179", v(V_DMR3))]
    for c in range(5):
        for d in range(2):
            r = v(src[c] + d); e = V_ACC + 4 * c + 2 * d
            p += [valu("v_lshlrev_b32", v(U), 16, r), valu("v_and_b32", v(U + 1), "0xffff0000", r),
                  valu("v_add_f32", v(e), v(e), v(U)), valu("v_add_f32", v(e + 1), v(e + 1), v(U + 1))]
    p += [cnd(T, "v178", "v177", s(S_LO, 2)), bstore("buffer_store_dword", T, v(V_DMG), s(SDM, 4), flags=st_flags)]
    dm = {0: "v177", 2: "v177", 1: "v178", 3: "v178", 4: "v179"}
    for c in range(5):
        for e in range(4):
            p.append(valu("v_sub_f32", v(V_ACC + 4 * c + e), v(V_ACC + 4 * c + e), dm[c]))
    dst = {0: 36, 2: 38, 1: 40, 3: 42, 4: 44}
    for c in (0, 2, 1, 3, 4):
        for d in range(2):
            e = V_ACC + 4 * c + 2 * d
            p.append(valu("v_cvt_pk_bf16_f32", v(dst[c] + d), v(e), v(e + 1)))
    p += [bstore("buffer_store_dwordx4", v(36, 4), v(V_XP), s(SXB, 4), flags=st_flags),
          bstore("buffer_store_dwordx4", v(40, 4), v(V_XP), s(SXB, 4), s(S_K + 5), flags=st_flags),
          bstore("buffer_store_dwordx2", v(44, 2), v(V_X3S), s(SXB, 4), flags=st_flags)]
    ss = {0: "v48", 2: "v48", 1: "v49", 3: "v49", 4: "v50"}
    seen = set()
    for e in range(4):
        for c in (0, 1, 4, 2, 3):
            x = v(V_ACC + 4 * c + e)
            if ss[c] not in seen:
                seen.add(ss[c]); p.append(valu("v_mul_f32", ss[c], x, x))
            else:
                p.append(valu("v_fmac_f32", ss[c], x, x, rmw=True))
    p += [valu("v_fmac_f32", "v48", s(S_F0), "v50", rmw=True), valu("v_fmac_f32", "v49", s(S_F1), "v50", rmw=True),
          swap("v_permlane32_swap_b32", "v48", "v49"), valu("v_add_f32", "v48", "v48", "v49"),
          valu("v_mov_b32", "v49", "v48"), swap("v_permlane16_swap_b32", "v48", "v49"), valu("v_add_f32", "v48", "v48", "v49"),
          bstore("buffer_store_dword", "v48", v(V_SSG), s(SSS, 4), flags=st_flags)]
```

```python
from asm import *
from layout import *
import sync, a1
from rows import xsum, tree_sum

S_WG, S_WU, S_WD, S_XF, S_P, S_WS, S_HX = 4, 8, 12, 16, 20, 24, 28
S_W1K, S_OFF, S_OFF2, S_T0, S_T1, S_T2 = 33, 34, 35, 36, 37, 38
S_W, S_C, S_R = G_W, G_C, G_R
V_RD = [[8, 9, 10], [11, 12, 13]]
V_RS = [14, 15, 25]
V_LX = [26, 27, 28]
V_H, V_HW, V_HS = 16, 17, 18
V_DD, V_DS, V_DWL, V_LX8, V_DX = 19, 20, 21, 22, 23
V_LIN = 24
V_TMP = 32
V_FR = 56
V_XV = 96
V_ACC = [128, 192]


def xreg(sidx, t):
    if sidx < 16:
        return a(16 * sidx + 4 * t, 4)
    return v(V_XV + 16 * (sidx - 16) + 4 * t, 4)


def setup(p):
    L, I, Q, T, T2, T3 = "v1", "v2", "v3", "v4", "v5", "v6"
    p += [valu("v_and_b32", L, 63, "v0"), valu("v_and_b32", I, 15, L), valu("v_lshrrev_b32", Q, 4, L),
          valu("v_lshlrev_b32", v(V_LIN), 4, L), salu("s_lshl_b32", s(S_W1K), s(S_W), 10)]
    FG, MG, ODD = s(41), s(42), s(43)
    p += [salu("s_and_b32", FG, s(S_W), 1), salu("s_lshr_b32", MG, s(S_W), 1), salu("s_and_b32", ODD, s(S_C), 1)]
    p += [valu("v_lshrrev_b32", T, 2, I), valu("v_lshl_add_u32", T, Q, 2, T),
          valu("v_and_b32", T2, 3, I), valu("v_lshlrev_b32", T2, 3, T2),
          valu("v_lshrrev_b32", T3, 1, T), valu("v_and_b32", T3, 3, T3),
          salu("s_lshl_b32", s(S_T0), FG, 1)]
    for k in range(2):
        p += [salu("s_add_u32", s(S_T1), s(S_T0), k),
              valu("v_xor_b32", v(V_RD[k][0]), s(S_T1), T3), valu("v_lshlrev_b32", v(V_RD[k][0]), 5, v(V_RD[k][0])),
              valu("v_lshl_add_u32", v(V_RD[k][0]), T, 7, v(V_RD[k][0])), valu("v_add_u32", v(V_RD[k][0]), v(V_RD[k][0]), T2),
              valu("v_add_u32", v(V_RD[k][1]), 65536, v(V_RD[k][0])), valu("v_add_u32", v(V_RD[k][2]), 131072, v(V_RD[k][0]))]
    p += [valu("v_and_b32", T3, 1, Q), valu("v_xor_b32", T3, FG, T3), valu("v_lshlrev_b32", T3, 5, T3),
          valu("v_lshl_add_u32", v(V_RS[0]), T, 6, T3), valu("v_add_u32", v(V_RS[0]), v(V_RS[0]), T2),
          valu("v_add_u32", v(V_RS[1]), 65536, v(V_RS[0])), valu("v_add_u32", v(V_RS[2]), 131072, v(V_RS[0]))]
    p += [salu("s_lshl_b32", s(S_T0), MG, 11), valu("v_add_u32", v(V_LX[0]), s(S_T0), v(V_LIN)),
          valu("v_add_u32", v(V_LX[1]), 65536, v(V_LX[0])), valu("v_add_u32", v(V_LX[2]), 131072, v(V_LX[0])),
          salu("s_mul_i32", s(S_T0), MG, 36864), salu("s_add_u32", s(S_T0), s(S_T0), HB),
          valu("v_add_u32", v(V_H), s(S_T0), v(V_LIN)),
          salu("s_lshl_b32", s(S_T1), FG, 12), valu("v_add_u32", v(V_HW), s(S_T1), v(V_H)),
          salu("s_lshl_b32", s(S_T1), FG, 3), valu("v_add_u32", v(V_HS), s(S_T1), v(V_H))]
    p += [valu("v_bfe_u32", T, L, 1, 2), valu("v_xor_b32", T, T, Q), valu("v_lshlrev_b32", T, 5, T),
          valu("v_and_b32", T2, 1, L), valu("v_lshl_add_u32", T, T2, 4, T),
          valu("v_lshrrev_b32", T2, 3, L), salu("s_lshl_b32", s(S_T0), s(S_W), 3),
          valu("v_add_u32", T2, s(S_T0), T2),
          salu("s_mul_i32", s(S_T0), s(S_C), 576), salu("s_lshl_b32", s(S_T1), ODD, 6),
          salu("s_add_u32", s(S_T1), s(S_T0), s(S_T1)),
          valu("v_mul_u32_u24", T3, 9216, T2), valu("v_add3_u32", v(V_DD), T3, T, s(S_T1)),
          valu("v_mul_u32_u24", T3, 1152, T2), valu("v_add_u32", v(V_DWL), T3, T),
          valu("v_lshlrev_b32", T3, 3, L), salu("s_lshl_b32", s(S_T1), MG, 11), valu("v_add_u32", v(V_LX8), s(S_T1), T3)]
    p += [valu("v_bfe_u32", T, L, 1, 1), valu("v_and_b32", T2, 1, Q), valu("v_xor_b32", T, T, T2),
          valu("v_lshlrev_b32", T, 5, T), valu("v_and_b32", T2, 1, L), valu("v_lshl_add_u32", T, T2, 4, T),
          valu("v_lshrrev_b32", T2, 2, L), salu("s_lshl_b32", s(S_T1), FG, 4), valu("v_add_u32", T2, s(S_T1), T2),
          valu("v_mul_u32_u24", T2, 9216, T2),
          salu("s_xor_b32", s(S_T2), ODD, 1), salu("s_lshl_b32", s(S_T2), s(S_T2), 9),
          salu("s_add_u32", s(S_T2), s(S_T2), s(S_T0)), valu("v_add3_u32", v(V_DS), T2, T, s(S_T2))]
    p += [salu("s_lshl_b32", s(S_T1), s(S_R), 1), salu("s_add_u32", s(S_T1), s(S_T1), MG), salu("s_lshl_b32", s(S_T1), s(S_T1), 2),
          salu("s_add_u32", s(S_T1), s(S_T1), FG),
          salu("s_mul_i32", s(S_T1), s(S_T1), 18432), valu("v_add_u32", v(V_DX), s(S_T1), v(V_LIN))]
    srd(p, S_WG, s(G_WG), s(G_WG + 1), D * F * 2)
    srd(p, S_WU, s(G_WU), s(G_WU + 1), D * F * 2)
    srd(p, S_WD, s(G_WD), s(G_WD + 1), D * F * 2)
    p += [scmp("s_cmp_eq_u32", MG, 0), salu("s_cselect_b32", s(S_WS), s(G_WG), s(G_WU)),
          salu("s_cselect_b32", s(S_WS + 1), s(S_WG + 1), s(S_WU + 1)),
          salu("s_mov_b32", s(S_WS + 2), D * F * 2), salu("s_mov_b32", s(S_WS + 3), "0x20000")]
    srd_off(p, S_XF, s(G_LB), s(G_LB + 1), L_XB, ACT)
    p += [salu("s_lshr_b32", s(S_T0), s(S_C), 1), salu("s_mul_i32", s(S_T0), s(S_T0), ACT), salu("s_lshl_b32", s(S_T1), s(S_R), 1),
          salu("s_add_u32", s(S_T1), s(S_T1), MG), salu("s_mul_i32", s(S_T1), s(S_T1), 4 * MT),
          salu("s_add_u32", s(S_T0), s(S_T0), s(S_T1)), salu("s_add_u32", s(S_T0), s(S_T0), L_P)]
    srd_off(p, S_P, s(G_LB), s(G_LB + 1), s(S_T0), 4 * MT)
    p += [salu("s_lshl_b32", s(S_T0), s(S_R), 4), salu("s_add_u32", s(S_T0), s(S_T0), s(S_C)), salu("s_lshl_b32", s(S_T0), s(S_T0), 1),
          salu("s_add_u32", s(S_T0), s(S_T0), MG), salu("s_mul_i32", s(S_T0), s(S_T0), 36864), salu("s_add_u32", s(S_T0), s(S_T0), L_HX)]
    srd_off(p, S_HX, s(G_LB), s(G_LB + 1), s(S_T0), 36864)


NSLOT = 40
HSLOT = 22
HB = HSLOT * 4096
LDS_BYTES = NSLOT * 4096
G = 12
A2_SLOTS = 10
S_HP, S_PA = 68, 72
S_SS, S_MU, S_DM, S_XA, S_ST = 48, 52, 56, 48, 52
S_C4, S_PO, S_WO, S_RO, S_HO = 60, 63, 64, 65, 61
V_HG, V_HG8, V_DW, V_DW8, V_DP, V_DP8, V_DT, V_DT8, V_DH, V_HD, V_HD8, V_PH = range(80, 92)
V_WARM = 92
V_Y = 160
V_SEL = 180
V_PL, V_PL8, V_ONE, V_PD, V_PT = 188, 189, 190, 191, 3
V_X8, V_XO4, V_RO, V_RO8, V_ROW4, V_SSA, V_RED, V_REDR, V_OB, V_STA, V_X2, V_X6 = range(8, 20)
V_XB = 56
V_RS2, V_MU, V_X0, V_X1 = 66, 67, 68, 69
RED = LDS_BYTES - 512
YQ = {0: (0, 0), 5: (0, 1), 1: (1, 0), 6: (1, 1), 2: (2, 0), 7: (2, 1), 3: (3, 0), 8: (3, 1), 4: (4, 0)}


class B1:
    def __init__(self, nb=4, nb0=2, nb2=3, lau=9, pro=3, npre=(12, 6), local=False, lags=(5, 4, 4, 4), hl=(5, 3, 4),
                 wqd=(24, 27, 30, 33, 36, 39, 99, 99), verbose=False, warm=True, nc=4, exp=0, hlocal=False, early=10, lau2=9, sp=0, lp=0, hdir=0):
        self.__dict__.update(locals())
        self.stf = "" if local else "sc1"
        self.ldf = "" if local else "sc1"
        self.hloc = local or hlocal
        self.hf = "" if self.hloc else "sc1"
        self.plan()

    def plan(self):
        W, ring, X, Hh = [], [], {}, {}

        def pair(kind, tr, b0s, accs, firsts):
            n0 = len(W)
            for u in tr:
                u["first"], u["done"] = n0 - 1, n0 + 1
            ring.extend(tr)
            for k in range(2):
                W.append(dict(kind=kind, src=tr, k=k, b0=b0s[k], acc=accs[k], zero=firsts[k]))
        for j in range(4):
            for tau in range(6):
                n0 = len(W)
                if j == 0:
                    for i in range(3):
                        for ab in range(2):
                            u = dict(kind="X", ab=ab, s=3 * tau + i, first=n0 - 3 + i, done=n0 - 1 + i)
                            if tau == 0: u["first"], u["done"] = -1, 0
                            X[ab, 3 * tau + i] = u; ring.append(u)
                for m in range(2):
                    b = V_ACC[j & 1] + 32 * m
                    pair("D", [dict(kind="D", j=j, s=3 * tau + i, m=m) for i in range(3)], [3 * tau] * 2, [b, b + 16], [tau == 0] * 2)
        hfirst = {0: 104, 1: 105, 2: 106, 3: 107, 4: 109, 5: 110}
        for tau in range(6):
            for kp, n in hfirst.items():
                if n - 1 in (len(W), len(W) + 1) and n < 108 and not self.hdir:
                    for ab in range(2):
                        Hh[ab, kp] = dict(kind="H", ab=ab, kp=kp, first=n, done=n + 2); ring.append(Hh[ab, kp])
            pair("S", [dict(kind="S", s=3 * tau + i) for i in range(3)], [3 * tau] * 2, [V_ACC[0], V_ACC[0] + 16], [tau == 0] * 2)
        P2 = self.P2 = len(W)
        for kp in (4, 5) if not self.hdir else ():
            for ab in range(2):
                Hh[ab, kp] = dict(kind="H", ab=ab, kp=kp, first=hfirst[kp], done=hfirst[kp] + 2); ring.append(Hh[ab, kp])
        e1 = (self.early - 10) // 2
        self.OACC = [192, 224, 128, 192] if e1 == 5 else [192, 224, 192, 224]
        self.TACC = 224 if e1 == 5 else 192
        order = [(0, t) for t in ((0, 1, 3, 4, 2) if self.hdir < 2 else (0, 1, 2, 3, 4))] + [(1, t) for t in range(e1)] + [(0, 5)] + [(1, t) for t in range(e1, 6)] + \
                [(d, t) for d in (2, 3) for t in range(6)]
        self.oend = {}
        for dl, tau in order:
            b = self.OACC[dl]
            pair("O", [dict(kind="O", dl=dl, kp=3 * tau + i) for i in range(3)], [3 * tau] * 2, [b, b + 16], [tau == 0] * 2)
            self.oend[dl] = len(W)
        for tau in range(3):
            pair("T", [dict(kind="T", kp=3 * tau + i) for i in range(3)], [3 * tau, 9 + 3 * tau], [self.TACC] * 2, [tau == 0, False])
        for i, u in enumerate(ring):
            u["ri"] = i
        NU = self.NU = len(W)
        self.W, self.ring, self.X, self.Hh, self.hfirst = W, ring, X, Hh, hfirst
        self.bar_units = sorted(set(list(range(0, 24, self.nb0)) + list(range(24, 96, self.nb)) + list(range(96, P2 + 3, 3)) +
                                    list(range(P2 + 3, NU - 1, self.nb2))))
        self.isbar = set(self.bar_units)
        self.h0 = self.bar_at(82 + self.hl[0])
        self.h0_ok = self.h0 + self.hl[1] + self.hl[2]
        self.own_rd = {0: 98, 1: 99, 2: 100, 3: 101, 4: 102, 5: 103, 6: 108, 7: 111, 8: 112} if not self.hdir else \
                      {0: 98, 1: 99, 2: 100, 3: 101, 4: 102, 5: 103, 6: 104, 7: 105, 8: 111}
        reserve, release = {}, {}
        for kp in range(9):
            for mg in range(2):
                reserve[HSLOT + 9 * mg + kp] = 24 * (kp // 2 + 1) if kp < 8 else P2
                release[HSLOT + 9 * mg + kp] = self.bar_at(self.own_rd[kp] + 2)
        self.wq_at = [self.bar_at(P2 + d) for d in self.wqd]
        final = {4 * rho + i: n for rho, n in enumerate(self.wq_at) for i in range(4)}
        free = list(range(A2_SLOTS, NSLOT)) + list(range(A2_SLOTS))
        busy = []

        def take(u, n, lo=0, hi=NSLOT):
            fb = self.bar_at(max(u["done"], 0))
            if u["kind"] == "X" and u["s"] in (4, 13): hi = 16
            for sl in free:
                if not lo <= sl < hi: continue
                if sl in reserve and n < release[sl] and fb > reserve[sl]: continue
                if sl in final and fb > final[sl]: continue
                free.remove(sl); u["slot"] = sl; busy.append(u); u["iss"] = n
                return True
            return False
        wunits = [u for u in ring if u["kind"] == "D"]
        self.pre = [wunits[:self.npre[0]], wunits[self.npre[0]:sum(self.npre)]]
        for u in self.pre[0]: assert take(u, -3, 16) or take(u, -3, A2_SLOTS)
        for u in self.pre[1]: assert take(u, -2, 16) or take(u, -2)
        pend = [u for u in ring if "slot" not in u]
        issue = self.issue = {n: [] for n in range(-1, NU)}
        while pend[0]["first"] <= self.pro and take(pend[0], -1):
            issue[-1].append(pend.pop(0))
        for n in range(NU):
            if n in self.isbar:
                for u in list(busy):
                    if u["done"] <= n:
                        busy.remove(u); free.append(u["slot"])
            cnt = 0
            lau = self.lau2 if n >= P2 + 6 else (self.lau if not (24 <= n < 72) else self.lau + 6)
            kmax = 3 if (n < 24 or 92 <= n < 112) else 2
            while pend and cnt < kmax:
                u = next((x for x in pend[:8] if x["kind"] != "H" or n > self.h0_ok), None)
                if u is None or u["first"] - n > lau or not take(u, n): break
                pend.remove(u); issue[n].append(u); cnt += 1
        assert not pend

    def bar_at(self, n):
        while n not in self.isbar:
            n += 1
            if n > self.NU: return 10 ** 6
        return n

    def dmas(self, u):
        k = u["kind"]; fl = ""
        if k == "X":
            vo, sr, so, fl = V_DX, S_XF, u["ab"] * 2 * MT + 1024 * u["s"], self.ldf
        elif k == "H":
            vo, sr, so, fl = V_DH, S_HP, u["kp"] * 4096 + u["ab"] * 2048, self.hf
        elif k == "D":
            vo, sr, so = V_DD, (S_WG, S_WU)[u["m"]], 32 * u["s"] * 9216 + 128 * u["j"]
        elif k == "S":
            vo, sr, so = V_DS, S_WS, 32 * u["s"] * 9216
        elif k == "T":
            vo, sr, so = (V_DT, S_WD, 32 * u["kp"] * 1152) if u["kp"] < 8 else (V_DT8, S_WD, 0)
        else:
            kp, own = u["kp"] % 9, u["kp"] < 9
            vo = ((V_DW, V_DW8) if own else (V_DP, V_DP8))[kp == 8]
            sr, so = S_WD, (32 * kp * 1152 if kp < 8 else 0) + 128 * u["dl"]
        return [salu("s_add_u32", "m0", s(S_W1K), u["slot"] * 4096), salu("s_mov_b32", s(S_OFF), so),
                dma(v(vo), s(sr, 4), s(S_OFF), tag=("dma", u["ri"]), flags=fl)]

    def prefetch(self, part):
        return [self.dmas(u) for u in self.pre[part]]

    def hx_setup(self):
        return [salu("s_and_b32", s(S_T0), s(S_W), 1), salu("s_lshl_b32", s(S_T1), s(S_T0), 12), valu("v_add_u32", v(V_HG), s(S_T1), v(V_LIN)),
                salu("s_lshl_b32", s(S_T1), s(S_T0), 9), valu("v_lshrrev_b32", v(V_HG8), 1, v(V_LIN)),
                valu("v_add_u32", v(V_HG8), s(S_T1), v(V_HG8))]

    def warm_setup(self):
        T, T2, T3 = "v4", "v5", "v6"
        nr = 32 // self.nc if self.warm == 2 else 16
        rows = 288 // nr
        return [
            valu("v_lshrrev_b32", T, 1, "v0"), salu("s_mul_i32", s(S_T0), s(S_R), 36), valu("v_add_u32", T, s(S_T0), T),
            valu("v_mul_u32_u24", T, 9216, T), salu("s_mul_i32", s(S_T0), s(S_C), 576), salu("s_and_b32", s(S_T1), s(S_C), 1),
            salu("s_lshl_b32", s(S_T2), s(S_T1), 6), salu("s_add_u32", s(S_T0), s(S_T0), s(S_T2)), salu("s_add_u32", s(S_T0), s(S_T0), 384),
            scmp("s_cmp_eq_u32", s(S_T1), 0), salu("s_cselect_b32", s(S_T1), 2, -7), salu("s_mul_i32", s(S_T1), s(S_T1), 64),
            valu("v_and_b32", T2, 1, "v0"), valu("v_mul_lo_u32", T2, T2, s(S_T1)), valu("v_add3_u32", T, T, T2, s(S_T0)),
            valu("v_mov_b32", T3, OOB), vcmp("v_cmp_gt_u32", "vcc", 72, "v0"), cnd(v(V_WARM), T3, T),
            scmp("s_cmp_eq_u32", s(G_LAYER), 0), salu("s_cselect_b32", s(S_T0), 0, OOB), valu("v_or_b32", v(V_WARM), s(S_T0), v(V_WARM)),
            salu("s_mul_i32", s(S_T0), s(S_C), nr), salu("s_and_b32", s(S_T1), s(S_R), nr - 1), salu("s_add_u32", s(S_T0), s(S_T0), s(S_T1)),
            salu("s_mul_i32", s(S_T0), s(S_T0), rows * 1152), valu("v_lshl_add_u32", v(V_WARM + 1), "v0", 7, s(S_T0))] + \
            ([] if self.warm == 2 else [scmp("s_cmp_eq_u32", s(G_LAYER), 0), salu("s_cselect_b32", s(S_T0), 0, OOB),
                                        valu("v_or_b32", v(V_WARM + 1), s(S_T0), v(V_WARM + 1))]), rows * 9

    def p2_setup(self):
        p = []
        L, T, T2, T3 = "v1", "v4", "v5", "v6"
        ODD, F0, MG, FG = s(S_T0), s(S_T1), s(39), s(40)
        p += [salu("s_and_b32", ODD, s(S_C), 1), salu("s_lshr_b32", F0, s(S_C), 1), salu("s_mul_i32", F0, F0, 576 * 1152),
              salu("s_lshr_b32", MG, s(S_W), 1), salu("s_and_b32", FG, s(S_W), 1),
              salu("s_mul_i32", s(S_T2), ODD, 640), salu("s_add_u32", s(S_T2), s(S_T2), F0), valu("v_add_u32", T, s(S_T2), v(V_DWL))]
        for dst, ev, od in ((V_DW, 0, 320), (V_DW8, 256, 288), (V_DP, 320, 0), (V_DP8, 288, 256)):
            p += [salu("s_mul_i32", s(S_T2), ODD, (od - ev) * 1152), valu("v_add_u32", v(dst), s(S_T2), T), valu("v_add_u32", v(dst), ev * 1152, v(dst))]
        p += [valu("v_and_b32", L, 63, "v0"), valu("v_bfe_u32", T, L, 1, 1), valu("v_bfe_u32", T2, L, 4, 1), valu("v_xor_b32", T, T, T2),
              valu("v_lshlrev_b32", T, 5, T), valu("v_and_b32", T2, 1, L), valu("v_lshl_add_u32", T, T2, 4, T),
              valu("v_lshrrev_b32", T2, 2, L), salu("s_lshl_b32", s(S_T2), FG, 4), valu("v_add_u32", T2, s(S_T2), T2),
              valu("v_mul_u32_u24", T2, 1152, T2), salu("s_lshl_b32", s(S_T2), ODD, 6), salu("s_add_u32", s(S_T2), s(S_T2), F0),
              salu("s_add_u32", s(S_T2), s(S_T2), 512), valu("v_add3_u32", T, T, T2, s(S_T2)),
              salu("s_xor_b32", s(S_T2), ODD, MG), salu("s_mul_i32", s(41), s(S_T2), 320 * 1152), valu("v_add_u32", v(V_DT), s(41), T),
              salu("s_mul_i32", s(41), s(S_T2), 32 * 1152), salu("s_add_u32", s(41), s(41), 256 * 1152), valu("v_add_u32", v(V_DT8), s(41), T),
              salu("s_mul_i32", s(S_T2), MG, 36864), valu("v_add_u32", v(V_HD), s(S_T2), v(V_LIN)),
              valu("v_lshlrev_b32", T, 3, L), valu("v_add_u32", v(V_HD8), s(S_T2), T),
              salu("s_lshl_b32", s(41), FG, 10), valu("v_add_u32", v(V_DH), s(41), v(V_HD)),
              salu("s_xor_b32", s(S_T2), s(S_C), 1), salu("s_lshl_b32", s(41), s(S_R), 4), salu("s_add_u32", s(41), s(41), s(S_T2)),
              salu("s_lshl_b32", s(39), s(S_R), 11), salu("s_lshl_b32", s(S_T2), s(S_T2), 7), salu("s_add_u32", s(S_T2), s(S_T2), s(39)),
              valu("v_mov_b32", v(V_PH), s(S_T2)),
              salu("s_mul_i32", s(41), s(41), 73728), salu("s_add_u32", s(41), s(41), L_HX)]
        srd_off(p, S_HP, s(G_LB), s(G_LB + 1), s(41), 73728)
        return p

    def frag_base(self, T, T3):
        return [salu("s_lshl_b32", s(S_T0), s(S_R), 4), salu("s_add_u32", s(S_T0), s(S_T0), s(S_C)),
                salu("s_lshr_b32", s(S_T1), s(S_T0), 1), salu("s_mul_i32", s(S_T1), s(S_T1), MT), salu("s_and_b32", s(S_T2), s(S_T0), 1),
                salu("s_lshl_b32", s(S_T2), s(S_T2), 7), salu("s_add_u32", s(39), s(S_T1), s(S_T2)),
                salu("s_lshl_b32", s(S_T2), s(S_W), 9), salu("s_add_u32", s(39), s(39), s(S_T2)),
                valu("v_and_b32", T, 7, "v0"), valu("v_bfe_u32", T3, "v0", 3, 1),
                valu("v_lshlrev_b32", T, 4, T), valu("v_lshl_add_u32", T, T3, 8, T), valu("v_add_u32", T, s(39), T)]

    def split_base(self, dst, T):
        return [valu("v_subrev_u32", dst, s(S_T1), T), valu("v_and_b32", dst, 1023, dst), valu("v_lshrrev_b32", dst, 1, dst),
                salu("s_lshr_b32", s(S_T2), s(S_W), 1), salu("s_lshl_b32", s(S_T2), s(S_T2), 10), salu("s_add_u32", s(S_T2), s(S_T2), s(S_T1)),
                valu("v_add_u32", dst, s(S_T2), dst)]

    def red_setup(self):
        p = []
        RHO, T, T2, T3 = "v2", "v4", "v5", "v6"
        srd_off(p, S_PA, s(G_LB), s(G_LB + 1), L_P, 8 * ACT)
        p += [salu("s_and_b32", s(S_T0), s(S_C), 1), salu("s_and_b32", s(S_T1), s(S_W), 1),
              salu("s_mul_i32", s(S_T2), s(S_T0), 10), salu("s_add_u32", s(S_T2), s(S_T2), s(S_T1)), salu("s_lshl_b32", s(S_T2), s(S_T2), 10),
              valu("v_add_u32", v(V_PD), s(S_T2), v(V_LIN)),
              salu("s_lshl_b32", s(S_T0), s(S_T0), 1), salu("s_add_u32", s(S_T0), s(S_T0), s(S_T1)), salu("s_add_u32", s(S_T0), s(S_T0), 16),
              salu("s_lshl_b32", s(S_T0), s(S_T0), 9), valu("v_lshrrev_b32", T, 1, v(V_LIN)), valu("v_add_u32", v(V_PT), s(S_T0), T)]
        p += self.frag_base(T, T3) + self.split_base(v(V_PL8), T)
        p += [valu("v_bfe_u32", RHO, "v0", 4, 2), salu("s_mov_b32", s(S_T2), ACT), valu("v_mul_lo_u32", T2, RHO, s(S_T2)),
              valu("v_add_u32", v(V_PL), T, T2), valu("v_add_u32", v(V_PL8), v(V_PL8), T2),
              valu("v_and_b32", T, 1, "v0"), valu("v_lshlrev_b32", T, 4, T), valu("v_mov_b32", T2, "0x3f80"), valu("v_lshlrev_b32", T, T, T2),
              valu("v_bfe_u32", T2, "v0", 1, 3)]
        for odd in range(2):
            for d in range(4):
                p += [vcmp("v_cmp_eq_u32", "vcc", 2 * d + odd, T2), cnd(v(V_SEL + 4 * odd + d), 0, T)]
        return p

    def tail_setup(self):
        p = []
        RHO, T, T2, T3 = "v2", "v4", "v5", "v6"
        lb = (s(G_LB), s(G_LB + 1))
        srd_off(p, S_SS, *lb, L_SS, S * 64)
        srd_off(p, S_MU, *lb, L_ST, 32768)
        srd_off(p, S_DM, *lb, L_DM, S * 4)
        p += self.frag_base(T, T3) + self.split_base(v(V_X2), T)
        p += [valu("v_bfe_u32", RHO, "v0", 4, 2),
              valu("v_lshl_add_u32", v(V_X8), RHO, 2, T), valu("v_lshl_add_u32", v(V_XO4), RHO, 11, T),
              valu("v_lshrrev_b32", T2, 1, RHO), valu("v_lshl_add_u32", v(V_X2), T2, 9, v(V_X2)),
              valu("v_and_b32", T, 1, RHO), valu("v_lshl_add_u32", v(V_X2), T, 2, v(V_X2)),
              scmp("s_cmp_lt_u32", s(S_W), 2), salu("s_cselect_b64", "vcc", -1, 0),
              cnd(v(V_X6), v(V_X2), v(V_X8)), cnd(v(V_X2), v(V_X8), v(V_X2))]
        for e in range(9):
            if e % 2 == 0: p.append(salu("s_mov_b32", s(S_RO), 2048 * e))
            ad = {2: V_X2, 6: V_X6}.get(e, V_X8)
            p.append(bload("buffer_load_dword", v(V_XB + e), v(ad), s(S_XF, 4), s(S_RO), off=2048 * (e & 1), flags=self.ldf))
        p += [salu("s_lshl_b32", s(S_T1), s(S_T0), 3), valu("v_and_b32", v(V_REDR), 7, "v0"), valu("v_add_u32", v(V_RO), s(S_T1), v(V_REDR)),
              valu("v_lshlrev_b32", v(V_ROW4), 2, v(V_RO)),
              valu("v_bfe_u32", v(V_SSA), "v0", 3, 3), valu("v_lshl_add_u32", v(V_SSA), v(V_SSA), 14, v(V_ROW4)),
              salu("s_mov_b32", s(S_RO), 8192),
              bload("buffer_load_dword", v(V_X0), v(V_SSA), s(S_SS, 4), flags=self.ldf),
              bload("buffer_load_dword", v(V_X1), v(V_SSA), s(S_SS, 4), s(S_RO), flags=self.ldf),
              salu("s_lshl_b32", s(S_T1), s(S_T0), 7), valu("v_lshl_add_u32", v(V_STA), v(V_REDR), 2, s(S_T1)),
              bload("buffer_load_dword", v(V_MU), v(V_STA), s(S_MU, 4), off=32, flags="sc1"),
              bload("buffer_load_dword", v(V_RS2), v(V_ROW4), s(S_DM, 4), flags=self.ldf),
              valu("v_lshl_add_u32", v(V_STA), "v0", 2, s(S_T1)), valu("v_mov_b32", v(V_OB), OOB),
              vcmp("v_cmp_gt_u32", "vcc", 32, "v0"), cnd(v(V_STA), v(V_OB), v(V_STA)),
              valu("v_lshlrev_b32", v(V_REDR), 4, v(V_REDR)), valu("v_add_u32", v(V_REDR), RED, v(V_REDR)),
              salu("s_lshl_b32", s(S_T1), s(S_W), 2), valu("v_add_u32", v(V_RED), s(S_T1), v(V_REDR)),
              valu("v_mul_u32_u24", v(V_RO), 1152, v(V_RO)), valu("v_lshl_add_u32", v(V_RO), T3, 3, v(V_RO)),
              salu("s_lshr_b32", s(S_T1), s(S_W), 1), salu("s_lshl_b32", s(S_T1), s(S_T1), 6), salu("s_and_b32", s(S_T2), s(S_W), 1),
              salu("s_lshl_b32", s(S_T2), s(S_T2), 4), salu("s_add_u32", s(S_T1), s(S_T1), s(S_T2)), valu("v_add_u32", v(V_RO), s(S_T1), v(V_RO)),
              valu("v_lshl_add_u32", v(V_RO8), T2, 5, v(V_RO)), valu("v_lshl_add_u32", v(V_RO8), T, 2, v(V_RO8)),
              valu("v_lshl_add_u32", v(V_RO), RHO, 7, v(V_RO))]
        q = [valu("v_add_f32", v(V_MU), v(V_MU), v(V_RS2)), valu("v_add_f32", v(V_X0), v(V_X0), v(V_X1))]
        xsum(q, v(V_X0), v(V_X1))
        q += [valu("v_mov_b32", v(V_X1), f32(1e-5)), valu("v_fmac_f32", v(V_X1), f32(1.0 / D), v(V_X0), rmw=True),
              valu("v_rcp_f32", v(V_RS2), v(V_X1))]
        return p, q

    def e_store(self, dl, step):
        items = []
        for t in range(4):
            tt = V_TMP + 8 + 4 * t
            for k in range(2 if dl < 4 else 1):
                c = (self.OACC[dl] + 16 * k if dl < 4 else self.TACC) + 4 * t
                items.append(valu("v_cvt_pk_bf16_f32", v(tt + 2 * k), v(c), v(c + 1)))
                items.append(valu("v_cvt_pk_bf16_f32", v(tt + 2 * k + 1), v(c + 2), v(c + 3)))
            items.append(salu("s_mov_b32", s(S_OFF2), (18 * t + (2 * dl if dl < 4 else 0)) * 1024))
            if dl < 4:
                items.append(bstore("buffer_store_dwordx4", v(tt, 4), v(V_PD), s(S_P, 4), s(S_OFF2), flags=self.stf, tag=("st", step)))
            else:
                items.append(bstore("buffer_store_dwordx2", v(tt, 2), v(V_PT), s(S_P, 4), s(S_OFF2), flags=self.stf, tag=("st", step)))
        return items

    def e_loads(self, es, dst):
        out = []
        for n, e in enumerate(es):
            for i in range(2):
                d = dst + 8 * n + 4 * i
                out.append(salu("s_mov_b32", s(S_RO), 2048 * e + 4 * ACT * i))
                if e != 4:
                    out.append(bload("buffer_load_dwordx4", v(d, 4), v(V_PL), s(S_PA, 4), s(S_RO), flags=self.ldf))
                else:
                    out += [bload("buffer_load_dwordx2", v(d + 2 * h, 2), v(V_PL8), s(S_PA, 4), s(S_RO), off=512 * h, flags=self.ldf) for h in range(2)]
        return out

    def e_acc(self, es, dst):
        out = []
        for n, e in enumerate(es):
            qd, odd = YQ[e]
            y = v(V_Y + 4 * qd, 4)
            out += [mfma16(y, v(V_SEL + 4 * odd, 4), v(dst + 8 * n + 4 * i, 4), "0" if (i == 0 and not odd) else y) for i in range(2)]
        return out

    def body(self, p, tail, T=None, stamps=()):
        W, ring, X, Hh, NU, P2, isbar = self.W, self.ring, self.X, self.Hh, self.NU, self.P2, self.isbar
        loc = self.local

        def lds3(regs3, off):
            return v(regs3[off >> 16]), off & 65535

        def frag(n, i):
            return V_FR + 4 * (3 * (n & 1) + i)

        def reads(n):
            w = W[n]; k = w["k"]; out = []
            for i, u in enumerate(w["src"]):
                for hf in range(2):
                    if w["kind"] in "ST":
                        ad, off = lds3(V_RS, u["slot"] * 4096 + 2048 * k + 1024 * hf)
                    else:
                        ad, off = lds3(V_RD[k], u["slot"] * 4096 + 2048 * hf)
                    if self.exp == 1:
                        if hf == 1:
                            ad, off = lds3(V_LX, u["slot"] * 4096 + 1024 * k)
                            out.append(dsr("ds_read_b128", v(frag(n, i), 4), ad, off, tag=("rd", n, i, hf)))
                        continue
                    if self.exp == 2:
                        if hf == 0: continue
                    out.append(dsr("ds_read_b64_tr_b16", v(frag(n, i) + 2 * hf, 2), ad, off, tag=("rd", n, i, hf)))
            return out

        def half(reg, h):
            f, lo = reg[0], int(reg[2:].split(":")[0])
            return R(f, lo + 2 * h, 2)

        def xreads(tab, sx, dst):
            out = []
            for t in range(4):
                off = tab[t >> 1, sx]["slot"] * 4096 + 1024 * (t & 1)
                if tab is X and sx in (4, 13):
                    out += [dsr("ds_read_b64", half(xreg(dst, t), h), v(V_LX8), off + 512 * h) for h in range(2)]
                else:
                    ad, off = lds3(V_LX, off)
                    out.append(dsr("ds_read_b128", xreg(dst, t), ad, off))
            return out

        def mfmas(n):
            w = W[n]; out = []
            for t, i in ([(t, i) for t in range(4) for i in range(3)] if self.exp != 3 else [(t, i) for i in range(3) for t in range(4)]):
                if True:
                    c = v(w["acc"] + 4 * t, 4)
                    out.append(mfma16(c, v(frag(n, i), 4), xreg(w["b0"] + i, t), "0" if (w["zero"] and i == 0) else c))
            return out

        NG = NU * G
        gaps = [[] for _ in range(NG)]
        cap = [2] * NG

        def put(g, ins):
            gaps[g].append(ins); cap[g] -= 0 if ins.kind == "label" else ins.cost

        def flow(items, g, per=1, limit=None, note="flow", over=0):
            for it in items:
                while it.kind != "label" and not it.glue and (cap[g] < 1 - over or sum(1 for x in gaps[g] if x.note == note) >= per):
                    g += 1
                it.note = note
                put(g, it)
            if limit is not None:
                assert g <= limit, (g / G, limit / G, note)
            return g

        def whole(items, n):
            for it in items: put(G * n + 1, it)

        wq = [(rho, i) for rho in range(8) for i in range(4)]
        hread = {n: kp for kp, n in self.hfirst.items()}
        oread = {n: kp for kp, n in self.own_rd.items()}
        for n in range(NU):
            g = G * n
            if n in isbar:
                cap[g] -= 2; g += 1
            cap[G * n + G - 1] -= 1
            g0 = g
            if n + 1 < NU:
                g = flow(reads(n + 1), g, note="rd")
            if n < 20 and n % 4 > 0:
                sx = 3 * (n // 4 + 1) + n % 4 - 1
                g = flow(xreads(X, sx, sx), g, note="rd", per=2 if sx in (4, 13) else 1, limit=G * n + G - 1)
            if n in hread and not self.hdir:
                g = flow(xreads(Hh, hread[n], 9 + hread[n]), g, note="rd", limit=G * n + G - 1)
            if n in oread:
                kp = oread[n]
                g = flow([dsr("ds_read_b128", xreg(kp, t), v(V_H), (4 * kp + t) * 1024) for t in range(4)], g, note="rd", limit=G * n + G - 1)
            seq = [self.dmas(u) for u in self.issue[n]]
            while wq and self.wq_at[wq[0][0]] <= n and len(seq) < 3:
                seq.append(a1.wq_piece(*wq.pop(0), s(S_WO)))
            gg = g0 if (n < 24 or len(seq) > 2) else g0 + 6
            for q_, sq in enumerate(seq):
                for e, it in enumerate(sq):
                    put(min(gg + 3 * q_ + e, G * n + G - 1), it)
        bars = {}
        minfl = (1e9, 0)
        for bi, n in enumerate(self.bar_units):
            nn = self.bar_units[bi + 1] if bi + 1 < len(self.bar_units) else NU
            need = [u for u in ring if n <= u["first"] < nn]
            for u in need:
                if n > 30: minfl = min(minfl, (n - u["iss"], n))
                assert u["iss"] < n, (u, n)
            bars[n] = dict(vm=[("dma", u["ri"]) for u in need], lg=[], after=[])
        if self.verbose: print("b1: min DMA flight (units of 192 cyc):", minfl)

        def bar_for(n, slack=1):
            for k in range(n, n + slack + 1):
                if k in bars: return k
            if n >= NU - 1: return 10 ** 6
            bars[n] = dict(vm=[], lg=[], after=[]); cap[G * n] -= 2
            return n

        g = flow(self.hx_setup(), G * 12, per=2, note="su")
        if self.warm:
            ws, nl = self.warm_setup()
            g = flow(ws, max(g, G * 20), per=2, note="su")
            flow([bload("buffer_load_dword", v(V_WARM + 2), v(V_WARM), s(S_WG, 4)), bload("buffer_load_dword", v(V_WARM + 2), v(V_WARM), s(S_WU, 4))], max(g, G * 34))
            wl = []
            for i in range(-(-nl // 256)):
                if nl - 256 * i < 256:
                    wl += [valu("v_mov_b32", "v6", OOB), vcmp("v_cmp_gt_u32", "vcc", nl - 256 * i, "v0"), cnd(v(V_WARM + 1), "v6", v(V_WARM + 1))]
                wl += [salu("s_mov_b32", s(S_RO), 32768 * i), bload("buffer_load_dword", v(V_WARM + 2), v(V_WARM + 1), s(S_WD, 4), s(S_RO))]
            g = flow(wl, G * 58, note="su")
        g = flow(self.p2_setup(), max(g, G * 60), per=1, note="su", limit=G * 72)
        TT = V_TMP
        hready, hend = {}, {}
        for j in range(4):
            base = V_ACC[j & 1]; items = []
            for t in range(4):
                tt = TT + 4 * (t & 1)
                for k in range(2):
                    g_, u_ = base + 16 * k + 4 * t, base + 32 + 16 * k + 4 * t
                    for e in range(4):
                        items.append(valu("v_mul_f32", v(g_ + e), v(g_ + e), v(u_ + e)))
                    items.append(valu("v_cvt_pk_bf16_f32", v(tt + 2 * k), v(g_), v(g_ + 1)))
                    items.append(valu("v_cvt_pk_bf16_f32", v(tt + 2 * k + 1), v(g_ + 2), v(g_ + 3)))
                items += [dsw("ds_write_b128", v(V_HW), v(tt, 4), (8 * j + t) * 1024, tag=("hw", j, t)),
                          salu("s_mov_b32", s(S_HO), (8 * j + t) * 1024),
                          bstore("buffer_store_dwordx4", v(tt, 4), v(V_HG), s(S_HX, 4), s(S_HO), flags=self.hf, tag=("hs", j))]
            g = flow(items, G * 24 * (j + 1) + 1, per=2 if j == 3 else 1, over=1 if j == 3 else 0)
            hend[j] = g // G
            nbar = self.bar_at(g // G + 1); bars[nbar]["lg"].append(("hw", j, 3))
            hready[2 * j] = hready[2 * j + 1] = nbar
        items = []
        for t in range(4):
            tt = TT + 2 * t
            g_, u_ = V_ACC[0] + 4 * t, V_ACC[0] + 16 + 4 * t
            for e in range(4):
                items.append(valu("v_mul_f32", v(g_ + e), v(g_ + e), v(u_ + e)))
            items += [valu("v_cvt_pk_bf16_f32", v(tt), v(g_), v(g_ + 1)), valu("v_cvt_pk_bf16_f32", v(tt + 1), v(g_ + 2), v(g_ + 3)),
                      dsw("ds_write_b64", v(V_HS), v(tt, 2), (32 + t) * 1024, tag=("hw", 4, t)),
                      salu("s_mov_b32", s(S_HO), (32 + t) * 1024),
                      bstore("buffer_store_dwordx2", v(tt, 2), v(V_HG8), s(S_HX, 4), s(S_HO), flags=self.hf, tag=("hs", 4))]
        g = flow(items, G * P2 + 1, per=2, over=1)
        hend[4] = g // G
        nbar = self.bar_at(g // G + 1); bars[nbar]["lg"].append(("hw", 4, 3)); hready[8] = nbar
        for kp in range(9):
            assert hready[kp] <= self.own_rd[kp], (kp, hready[kp])
        g_rs = flow(self.red_setup() + a1.wq_setup(enable=True), G * (hend[2] + 1), per=1, note="su", limit=G * 96)
        l_ack, l_fl, l_chk = self.hl
        assert hend[2] + l_ack <= self.h0 + 1, (hend[2], self.h0)
        prev = g_rs // G + 1
        for i, j in enumerate((2, 3, 4)):
            n2 = self.h0 if j == 2 else bar_for(hend[j] + l_ack, 1 if j == 3 else 0)
            bars[n2]["vm"].append(("hs", j)); bars[n2]["after"] += sync.post(F_H + i, self.hloc, s(S_PO), v(V_ONE))
            n3 = flow(sync.poll_issue(F_H + i, s(S_PO), v(GV_T), v(V_PH)), G * max(n2 + l_fl, prev) + 1, per=2, note="po") // G
            n4 = n3 + l_chk
            whole(sync.poll_check(F_H + i, self.hloc, s(S_PO), v(GV_T), tail, v(V_PH)), n4)
            prev = n4 + 1
            if j == 2:
                assert n4 <= self.h0_ok, (n4, self.h0_ok)
                if self.hdir:
                    gl = 0
                    for kp in range(6):
                        ld = [salu("s_mov_b32", s(S_RO), 4096 * kp)] + \
                             [bload("buffer_load_dwordx4", xreg(9 + kp, t), v(V_HD), s(S_HP, 4), s(S_RO), off=1024 * t, flags=self.hf) for t in range(4)]
                        gl = flow(ld, max(gl, G * (104 + 2 * (kp // 3))), per=1, note="hl", over=1)
                    prev = max(prev, gl // G + 1)
                    if self.verbose: print("  direct partner loads end", gl // G - P2)
                continue
            ld = []
            for kp in ((6, 7) if j == 3 else (8,)):
                ld.append(salu("s_mov_b32", s(S_RO), 4096 * kp))
                for t in range(4):
                    if kp < 8:
                        ld.append(bload("buffer_load_dwordx4", xreg(9 + kp, t), v(V_HD), s(S_HP, 4), s(S_RO), off=1024 * t, flags=self.hf))
                    else:
                        ld += [bload("buffer_load_dwordx2", half(xreg(17, t), h), v(V_HD8), s(S_HP, 4), s(S_RO), off=1024 * t + 512 * h, flags=self.hf) for h in range(2)]
            n5 = flow(ld, G * max(n4, P2) + 2, per=2, note="hl") // G
            prev = max(prev, n5)
            if self.verbose: print("  hidden", j, "stores end", hend[j] - P2, "post", n2 - P2, "poll", n3 - P2, "check", n4 - P2, "loads end", n5 - P2, "needed at", self.early)

        l_ack, l_fl, l_chk, l_ld = self.lags
        END = NU - 1
        if self.early == 20:
            steps = [((0, 1), (0, 5, 1, 6), 224), ((2,), (2, 7), 128), ((3,), (3, 8), 144), ((4,), (4,), 192)]
        else:
            steps = [((0,), (0, 5), 128), ((1,), (1, 6), 144), ((2,), (2, 7), 128), ((3,), (3, 8), 144), ((4,), (4,), 224)]
        LS = len(steps) - 1
        t_pre, t_acc, t_es, g = [], [], [], 0
        inloop = True
        acc_end = {}
        for st, (dls, es, dst) in enumerate(steps[:LS]):
            for dl in dls:
                g = max(g, G * self.oend[dl] + 1)
                its = self.e_store(dl, st)
                if self.sp and dl < 3:
                    g = flow(its[:6] + [x for x in its[6:] if x.kind == "valu"], g, per=2, note="st")
                    gc = g
                    for t in range(1, 4):
                        g = flow(its[6 * t + 4:6 * t + 6], g + self.sp, per=2, note="st")
                else:
                    gc = g = flow(its, g, per=2, note="st")
                if self.early < 20 and dl < 3: assert gc < G * self.oend[dl + 1], (dl, gc / G)
            n2 = bar_for(g // G + l_ack)
            if n2 >= END or not inloop:
                inloop = False; t_es.append((es, dst)); continue
            bars[n2]["vm"].append(("st", st)); bars[n2]["after"] += sync.post(F_P + st, loc, s(S_PO), v(V_ONE))
            n3 = max(n2 + l_fl, prev)
            issue_, check_ = sync.poll_issue(F_P + st, s(S_PO), v(GV_T)), sync.poll_check(F_P + st, loc, s(S_PO), v(GV_T), tail)
            if n3 >= END:
                t_pre += issue_ + check_ + self.e_loads(es, dst); t_acc += self.e_acc(es, dst); inloop = False; continue
            n3 = flow(issue_, G * n3 + 1, per=2, note="po") // G
            n4 = n3 + l_chk
            if n4 >= END - 1:
                t_pre += check_ + self.e_loads(es, dst); t_acc += self.e_acc(es, dst); inloop = False; continue
            whole(check_, n4)
            assert st < 2 or self.early == 20 or acc_end[st - 2] < n4
            its, gl = self.e_loads(es, dst), G * n4 + 2
            for q_ in range(0, len(its), 2):
                gl = flow(its[q_:q_ + 2], gl, per=2, note="pl") + (self.lp if q_ + 2 < len(its) else 0)
            n4 = gl // G
            prev = n4 + 1
            if n4 + l_ld < END:
                n5 = flow(self.e_acc(es, dst), G * (n4 + l_ld), note="ac") // G
                if self.early == 20 and st == 0: assert n5 < P2 + 48, n5 - P2
                acc_end[st] = n5
            else:
                n5 = END; t_acc += self.e_acc(es, dst)
            if self.verbose: print("  step", st, "store end", g // G - P2, "post", n2 - P2, "poll", n3 - P2, "loads end", n4 - P2, "acc", n5 - P2)
        t_es.append(steps[LS][1:])
        assert g_rs < G * self.wq_at[0]
        wq_late = sum((a1.wq_piece(rho, i, s(S_WO)) for rho, i in wq), [])
        ts1, ts2 = self.tail_setup()
        seq = self.e_store(4, LS) + t_pre + ts1 + [wait(vm=[("st", LS)]), barrier()] + sync.post(F_P + LS, loc, s(S_PO), v(V_ONE))
        seq += sync.poll_issue(F_P + LS, s(S_PO), v(GV_T)) + t_acc + ts2 + sync.poll_check(F_P + LS, loc, s(S_PO), v(GV_T), tail)
        for es, dst in t_es: seq += self.e_loads(es, dst)
        seq += wq_late
        for es, dst in t_es: seq += self.e_acc(es, dst)
        if self.verbose: print("  tail steps", t_es, "wq pieces left", len(wq))

        for u in self.issue[-1]:
            p += self.dmas(u)
        p.append(wait(vm=[("dma", u["ri"]) for u in ring if u["first"] < 0]))
        p.append(barrier())
        p += reads(0) + xreads(X, 0, 0) + xreads(X, 1, 1) + xreads(X, 2, 2)
        for n in range(NU):
            if T and n in stamps: T(p)
            p.append(wait(lgkm=[("rd", n, 2, 1)]))
            for k, m in enumerate(mfmas(n)):
                p.append(m)
                if k == 0 and n in bars:
                    p += [wait(vm=bars[n]["vm"], lgkm=bars[n]["lg"]), barrier()] + bars[n]["after"]
                p += gaps[G * n + k]
        if T: T(p)
        p += seq
        if T: T(p)
        if self.verbose:
            print("b1: gaps over capacity:", sum(1 for c in cap if c < 0), " free slots:", sum(max(c, 0) for c in cap))

    def finish(self, p, last):
        Yr = [v(V_Y + 4 * YQ[i >> 1][0] + 2 * YQ[i >> 1][1] + (i & 1)) for i in range(18)]
        M, T1, V2, V2b, Q4, DO = v(V_TMP), v(V_TMP + 1), v(V_TMP + 2), v(V_TMP + 3), V_TMP + 4, V_TMP + 8
        lb = (s(G_LB), s(G_LB + 1))
        if last:
            srd(p, S_XA, s(G_OUT), s(G_OUT + 1), ACT)
        else:
            srd_off(p, S_XA, *lb, LSTRIDE + L_XA, ACT)
            srd_off(p, S_ST, *lb, LSTRIDE + L_ST, 32768)
        for e in range(9):
            p += [valu("v_lshlrev_b32", v(V_X0), 16, v(V_XB + e)), valu("v_and_b32", v(V_X1), "0xffff0000", v(V_XB + e)),
                  valu("v_fma_f32", Yr[2 * e], Yr[2 * e], v(V_RS2), v(V_X0)), valu("v_fma_f32", Yr[2 * e + 1], Yr[2 * e + 1], v(V_RS2), v(V_X1))]

        def wgsum(x, slot):
            return [dsw("ds_write_b32", v(V_RED), x, 128 * slot, tag=("red", slot)), wait(lgkm=[("red", slot)]), barrier(),
                    dsr("ds_read_b128", v(Q4, 4), v(V_REDR), 128 * slot),
                    valu("v_add_f32", v(Q4), v(Q4), v(Q4 + 1)), valu("v_add_f32", v(Q4 + 2), v(Q4 + 2), v(Q4 + 3)),
                    valu("v_add_f32", x, v(Q4), v(Q4 + 2))]
        if last:
            for y in Yr: p.append(valu("v_add_f32", y, y, v(V_MU)))
        else:
            tree_sum(p, M, Yr, T1)
            xsum(p, M, T1)
            p += wgsum(M, 0)
            p.append(valu("v_mul_f32", M, f32(1.0 / D), M))
            for y in Yr: p.append(valu("v_sub_f32", y, y, M))
        for e in range(9):
            p.append(valu("v_cvt_pk_bf16_f32", v(DO + e), Yr[2 * e], Yr[2 * e + 1]))
        for g in range(2):
            d = DO + 4 * g
            p += [swap("v_permlane32_swap_b32", v(d), v(d + 2)), swap("v_permlane32_swap_b32", v(d + 1), v(d + 3))]
        for g in range(2):
            d = DO + 4 * g
            p += [swap("v_permlane16_swap_b32", v(d), v(d + 1)), swap("v_permlane16_swap_b32", v(d + 2), v(d + 3))]
        if last:
            for g in range(2):
                p += [bstore("buffer_store_dwordx2", v(DO + 4 * g, 2), v(V_RO), s(S_XA, 4), off=512 * g),
                      bstore("buffer_store_dwordx2", v(DO + 4 * g + 2, 2), v(V_RO), s(S_XA, 4), off=512 * g + 32)]
            p.append(bstore("buffer_store_dword", v(DO + 8), v(V_RO8), s(S_XA, 4), off=1024))
            return
        p += [salu("s_mov_b32", s(S_OFF), 8192), salu("s_mov_b32", s(S_OFF2), 16384),
              bstore("buffer_store_dwordx4", v(DO, 4), v(V_XO4), s(S_XA, 4), flags="sc1"),
              bstore("buffer_store_dwordx4", v(DO + 4, 4), v(V_XO4), s(S_XA, 4), s(S_OFF), flags="sc1"),
              bstore("buffer_store_dword", v(DO + 8), v(V_X8), s(S_XA, 4), s(S_OFF2), flags="sc1")]
        p += [valu("v_mul_f32", V2, Yr[0], Yr[0]), valu("v_mul_f32", V2b, Yr[1], Yr[1])]
        for i in range(2, 18):
            p.append(valu("v_fmac_f32", (V2, V2b)[i & 1], Yr[i], Yr[i], rmw=True))
        p.append(valu("v_add_f32", V2, V2, V2b))
        xsum(p, V2, T1)
        p += wgsum(V2, 1)
        p += [valu("v_mov_b32", T1, f32(1e-5)), valu("v_fmac_f32", T1, f32(1.0 / D), V2, rmw=True), valu("v_rsq_f32", T1, T1),
              valu("v_add_f32", M, M, v(V_MU)),
              valu("v_and_b32", V2b, 8, "v0"), vcmp("v_cmp_eq_u32", "vcc", 0, V2b), cnd(M, M, T1),
              bstore("buffer_store_dword", M, v(V_STA), s(S_ST, 4), flags="sc1")]
```

```python
S, D, H, DH, F = 2048, 576, 32, 18, 4608
ACT = S * D * 2
MT = 18432
WQ_SLICE = 18 * 7 * 1024
WS_WQ = 0
WS_WO = WS_WQ + 16 * WQ_SLICE
WS_STAMP = WS_WO + 37 * MT + 2048
WS_L0 = WS_STAMP + (1 << 20)
L_XA = 0
L_XB = L_XA + ACT
L_OF = L_XB + ACT
L_ST = L_OF + ACT
L_DM = L_ST + 32768
L_SS = L_DM + S * 4
L_FL = L_SS + S * 64
FL_PH, FL_BYTES = 32768, 16 * 32768
L_HX = L_FL + FL_BYTES
L_P = L_HX + 8 * ACT
LSTRIDE = L_P + 8 * ACT
WS_END = WS_L0 + 2 * LSTRIDE
F_A, F_O, F_B, F_W, F_H, F_X, F_P, F_A2 = 0, 1, 2, 3, 4, 7, 8, 13
K_X, K_WQKV, K_WO, K_BX, K_WG, K_WU, K_WD, K_OUT, K_DBG, K_WS = [8 * i for i in range(10)]
assert WS_L0 % 4096 == 0 and LSTRIDE % 4096 == 0 and L_P % 4096 == 0
OOB = "0x7ffffff0"
G_WG, G_WU, G_WD, G_WS, G_OUT, G_LB = 80, 82, 84, 86, 88, 90
G_W, G_R, G_C, G_LAYER = 92, 93, 94, 95
G_FL = 96
G_SPIN = 100
GV_POST, GV_POLL, GV_T, GV_TAG = 29, 30, 31, 7
```

```python
from asm import *
from layout import *

S_W = 32
S_RO = 33
S_T0, S_T1, S_T2, S_T3 = 36, 37, 38, 39
V_L, V_SEG, V_M8 = 1, 2, 3
V_FO = 4
V_FO8 = 5
V_RO = 6
V_RO8 = 7
V_ROW4 = 8
V_RED = 9
V_REDR = 10
V_OOB = 11
Y = 64
LDS_RED = 0
LDS_S8 = 1024


def common(p):
    T, T2 = "v12", "v13"
    p += [valu("v_lshrrev_b32", T, 6, "v0"), valu("v_and_b32", v(V_L), 63, "v0"),
          valu("v_readfirstlane_b32", s(S_W), T),
          valu("v_lshrrev_b32", v(V_SEG), 3, v(V_L)), valu("v_and_b32", v(V_M8), 7, v(V_L)),
          valu("v_mov_b32", v(V_OOB), OOB),
          salu("s_and_b32", s(S_T0), "s2", 7), salu("s_lshl_b32", s(S_T0), s(S_T0), 5),
          salu("s_lshr_b32", s(S_T1), "s2", 3), salu("s_add_u32", s(S_RO), s(S_T0), s(S_T1)),
          salu("s_lshr_b32", s(S_T0), s(S_RO), 1), salu("s_mul_i32", s(S_T0), s(S_T0), MT),
          salu("s_and_b32", s(S_T1), s(S_RO), 1), salu("s_lshl_b32", s(S_T1), s(S_T1), 7),
          salu("s_add_u32", s(S_T0), s(S_T0), s(S_T1)),
          valu("v_lshlrev_b32", T, 8, v(V_SEG)), valu("v_lshl_add_u32", T, v(V_M8), 4, T),
          salu("s_lshl_b32", s(S_T1), s(S_W), 12), salu("s_add_u32", s(S_T1), s(S_T1), s(S_T0)),
          valu("v_add_u32", v(V_FO), s(S_T1), T),
          salu("s_lshl_b32", s(S_T1), s(S_W), 2), salu("s_add_u32", s(S_T1), s(S_T1), s(S_T0)),
          salu("s_add_u32", s(S_T1), s(S_T1), 16384), valu("v_add_u32", v(V_FO8), s(S_T1), T),
          salu("s_lshl_b32", s(S_T0), s(S_RO), 3), valu("v_add_u32", T2, s(S_T0), v(V_M8)),
          valu("v_lshlrev_b32", v(V_ROW4), 2, T2),
          valu("v_mul_u32_u24", T2, 1152, T2),
          valu("v_lshrrev_b32", T, 2, v(V_SEG)), valu("v_lshl_add_u32", T2, T, 6, T2),
          valu("v_and_b32", T, 3, v(V_SEG)), valu("v_lshl_add_u32", T2, T, 3, T2),
          salu("s_lshl_b32", s(S_T1), s(S_W), 8), valu("v_add_u32", v(V_RO), s(S_T1), T2),
          salu("s_lshr_b32", s(S_T1), s(S_W), 1), salu("s_lshl_b32", s(S_T1), s(S_T1), 5),
          salu("s_and_b32", s(S_T2), s(S_W), 1), salu("s_lshl_b32", s(S_T2), s(S_T2), 2),
          salu("s_add_u32", s(S_T1), s(S_T1), s(S_T2)), salu("s_add_u32", s(S_T1), s(S_T1), 1024),
          valu("v_add_u32", v(V_RO8), s(S_T1), T2),
          valu("v_lshlrev_b32", v(V_REDR), 4, v(V_M8)),
          salu("s_lshl_b32", s(S_T1), s(S_W), 2), valu("v_add_u32", v(V_RED), s(S_T1), v(V_REDR))]


def only_first(p, dst, src):
    p += [vcmp("v_cmp_gt_u32", "vcc", 8, "v0"), cnd(dst, v(V_OOB), src)]


def xsum(p, x, t):
    p += [dpp("v_add_f32", x, x, x, "row_ror:8"),
          valu("v_mov_b32", t, x), swap("v_permlane16_swap_b32", x, t), valu("v_add_f32", x, x, t),
          valu("v_mov_b32", t, x), swap("v_permlane32_swap_b32", x, t), valu("v_add_f32", x, x, t)]


def wgsum(p, x, t4, slot):
    p += [dsw("ds_write_b32", v(V_RED), x, LDS_RED + 128 * slot, tag=("red", slot)), wait(lgkm=[("red", slot)]), barrier(),
          dsr("ds_read_b128", v(t4, 4), v(V_REDR), LDS_RED + 128 * slot),
          valu("v_add_f32", v(t4), v(t4), v(t4 + 1)), valu("v_add_f32", v(t4 + 2), v(t4 + 2), v(t4 + 3)),
          valu("v_add_f32", x, v(t4), v(t4 + 2))]


def tree_sum(p, dst, srcs, tmp):
    p.append(valu("v_add_f32", dst, srcs[0], srcs[1]))
    p.append(valu("v_add_f32", tmp, srcs[2], srcs[3]))
    for i, x in enumerate(srcs[4:]):
        p.append(valu("v_add_f32", (dst, tmp)[i & 1], (dst, tmp)[i & 1], x))
    p.append(valu("v_add_f32", dst, dst, tmp))


def centre_and_store(p, S_XA, S_ST, flags=""):
    M, T, Q4 = "v14", "v15", 16
    tree_sum(p, M, [v(Y + i) for i in range(18)], T)
    xsum(p, M, T)
    wgsum(p, M, Q4, 0)
    p.append(valu("v_mul_f32", M, f32(1.0 / D), M))
    for i in range(18):
        p.append(valu("v_sub_f32", v(Y + i), v(Y + i), M))
    V2, V2b = "v20", "v21"
    p += [valu("v_mul_f32", V2, v(Y), v(Y)), valu("v_mul_f32", V2b, v(Y + 1), v(Y + 1))]
    for i in range(2, 18):
        p.append(valu("v_fmac_f32", (V2, V2b)[i & 1], v(Y + i), v(Y + i), rmw=True))
    p.append(valu("v_add_f32", V2, V2, V2b))
    for i in range(9):
        p.append(valu("v_cvt_pk_bf16_f32", v(24 + i), v(Y + 2 * i), v(Y + 2 * i + 1)))
    p += [bstore("buffer_store_dwordx4", v(24, 4), v(V_FO), s(S_XA, 4), flags=flags),
          bstore("buffer_store_dwordx4", v(28, 4), v(V_FO), s(S_XA, 4), off=2048, flags=flags),
          bstore("buffer_store_dword", v(32), v(V_FO8), s(S_XA, 4), flags=flags)]
    xsum(p, V2, T)
    wgsum(p, V2, Q4, 1)
    p += [valu("v_mov_b32", T, f32(1e-5)), valu("v_fmac_f32", T, f32(1.0 / D), V2, rmw=True),
          valu("v_rsq_f32", T, T)]
    p += [valu("v_and_b32", "v22", 8, "v0"), vcmp("v_cmp_eq_u32", "vcc", 0, "v22"), cnd(M, M, T),
          salu("s_lshl_b32", s(S_T0), s(S_RO), 7), valu("v_lshl_add_u32", "v22", "v0", 2, s(S_T0)),
          vcmp("v_cmp_gt_u32", "vcc", 32, "v0"), cnd("v22", v(V_OOB), "v22"),
          bstore("buffer_store_dword", M, "v22", s(S_ST, 4), flags=flags)]


def unpack(p, dst, src):
    p += [valu("v_lshlrev_b32", v(dst), 16, src), valu("v_and_b32", v(dst + 1), "0xffff0000", src)]


def prep(p, warm=True, code=True, touch=False):
    SX, SQ, SO, SXA, SRS, SMU, SWQ, SWO = 4, 8, 12, 16, 20, 24, 28, 40
    p += [sload(44, 4, K_X), sload(48, 2, K_WO), sload(50, 2, K_WS), sload(76, 4, K_WG)]
    common(p)
    p.append(wait(lgkm_all=True))
    srd(p, SX, "s44", "s45", ACT)
    srd(p, SQ, "s46", "s47", D * 3 * D * 2)
    srd(p, SO, "s48", "s49", D * D * 2)
    p += [bload("buffer_load_dwordx2", v(24, 2), v(V_RO), s(SX, 4)),
          bload("buffer_load_dwordx2", v(26, 2), v(V_RO), s(SX, 4), off=32),
          bload("buffer_load_dwordx2", v(28, 2), v(V_RO), s(SX, 4), off=128),
          bload("buffer_load_dwordx2", v(30, 2), v(V_RO), s(SX, 4), off=160),
          bload("buffer_load_dword", v(32), v(V_RO8), s(SX, 4))]
    srd_off(p, SXA, "s50", "s51", WS_L0 + L_XA, ACT)
    srd_off(p, SRS, "s50", "s51", WS_L0 + L_ST, 32768)
    srd_off(p, SWQ, "s50", "s51", WS_WQ, 16 * WQ_SLICE)
    srd_off(p, SWO, "s50", "s51", WS_WO, 37 * MT)
    GW, FI, N, SS_, HP = s(52), s(53), s(54), s(55), s(56)
    C, Q, T, T2, T3, E = "v34", "v35", "v36", "v37", "v38", "v39"
    p += [salu("s_lshl_b32", GW, "s2", 2), salu("s_add_u32", GW, GW, s(S_W)),
          valu("v_and_b32", C, 15, v(V_L)), valu("v_lshrrev_b32", Q, 4, v(V_L)),
          salu("s_mov_b32", s(57), 2 * 3456), salu("s_mov_b32", s(58), 16 * 3456), salu("s_mov_b32", s(59), 18 * 3456)]
    for it in range(2):
        vo, dst, vst = v(52 + it), 40 + 4 * it, v(56 + it)
        p += [salu("s_lshl_b32", FI, GW, 1), salu("s_add_u32", FI, FI, it),
              salu("s_mul_hi_u32", s(S_T0), FI, (2 ** 32 + 6) // 7), salu("s_mul_i32", s(S_T1), s(S_T0), 7),
              salu("s_sub_u32", N, FI, s(S_T1)),
              salu("s_mul_hi_u32", HP, s(S_T0), (2 ** 32 + 17) // 18), salu("s_mul_i32", s(S_T1), HP, 18),
              salu("s_sub_u32", SS_, s(S_T0), s(S_T1)),
              salu("s_lshl_b32", s(S_T1), N, 4), valu("v_add_u32", T, s(S_T1), C),
              vcmp("v_cmp_le_u32", "vcc", 40, T), cnd(T2, 0, "1"),
              valu("v_mul_u32_u24", T3, 40, T2), valu("v_sub_u32", E, T, T3),
              valu("v_mul_u32_u24", T2, 18, T2), valu("v_add_u32", T2, T2, E),
              vcmp("v_cmp_le_u32", "vcc", 18, E), cnd(T3, 0, "1"),
              valu("v_mul_u32_u24", T3, 558, T3), valu("v_add_u32", T2, T2, T3), valu("v_add_u32", T2, 576, T2),
              valu("v_subrev_u32", T3, 76, T), vcmp("v_cmp_le_u32", "vcc", 76, T), cnd(T2, T2, T3),
              salu("s_mul_i32", s(S_T1), HP, 36), valu("v_add_u32", T2, s(S_T1), T2),
              salu("s_lshl_b32", s(S_T1), SS_, 5), valu("v_lshl_add_u32", T3, Q, 2, s(S_T1)),
              valu("v_mul_u32_u24", T3, 3456, T3), valu("v_lshl_add_u32", vo, T2, 1, T3),
              valu("v_subrev_u32", T3, 36, T), vcmp("v_cmp_gt_u32", "vcc", 4, T3), cnd(vo, vo, v(V_OOB)),
              salu("s_lshl_b32", s(S_T1), FI, 10), valu("v_lshl_add_u32", vst, v(V_L), 4, s(S_T1)),
              scmp("s_cmp_lt_u32", FI, 2016), salu("s_cselect_b32", s(S_T1), 0, OOB),
              valu("v_or_b32", vo, s(S_T1), vo)]
        for i, so in enumerate(["0", s(57), s(58), s(59)]):
            p += [bload("buffer_load_ushort", v(dst + i), vo, s(SQ, 4), so),
                  bload("buffer_load_ushort", v(dst + 44 + i), vo, s(SQ, 4), so, off=3456)]
    vo, vst = "v54", "v58"
    p += [salu("s_mul_hi_u32", N, GW, (2 ** 32 + 17) // 18), salu("s_mul_i32", s(S_T1), N, 18), salu("s_sub_u32", SS_, GW, s(S_T1))]

    def wo_rows(qsrc, dst):
        return [valu("v_lshrrev_b32", T, 1, qsrc), valu("v_mul_u32_u24", T, 18, T),
                valu("v_and_b32", T2, 1, qsrc), valu("v_lshl_add_u32", T, T2, 3, T),
                salu("s_mul_i32", s(S_T1), SS_, 36), valu("v_add_u32", T, s(S_T1), T),
                valu("v_mul_u32_u24", T2, 72, qsrc), salu("s_mul_i32", s(S_T1), SS_, 288),
                salu("s_sub_u32", s(S_T1), s(S_T1), 16 * 288 - 16), valu("v_add_u32", T2, s(S_T1), T2),
                scmp("s_cmp_lt_u32", SS_, 16), salu("s_cselect_b64", "vcc", -1, 0), cnd(dst, T2, T)]
    p += wo_rows(Q, T3)
    p += [salu("s_cselect_b32", s(60), 2, 18), salu("s_mul_i32", s(60), s(60), 1152), salu("s_mul_i32", s(61), s(60), 2),
          salu("s_mul_i32", s(62), s(60), 3),
          valu("v_mul_u32_u24", T3, 1152, T3), salu("s_lshl_b32", s(S_T1), N, 5),
          valu("v_lshl_add_u32", T, C, 1, s(S_T1)), valu("v_add_u32", vo, T3, T),
          salu("s_lshl_b32", s(S_T1), GW, 10), valu("v_lshl_add_u32", vst, v(V_L), 4, s(S_T1)),
          scmp("s_cmp_lt_u32", GW, 648), salu("s_cselect_b32", s(S_T1), 0, OOB),
          valu("v_or_b32", vo, s(S_T1), vo), valu("v_or_b32", vst, s(S_T1), vst)]
    for i, so in enumerate(["0", s(60), s(61), s(62)]):
        p += [bload("buffer_load_ushort", v(48 + i), vo, s(SO, 4), so),
              bload("buffer_load_ushort", v(92 + i), vo, s(SO, 4), so, off=1152)]
    if warm:
        srd(p, 64, "s76", "s77", D * F * 2); srd(p, 68, "s78", "s79", D * F * 2)
        p += [valu("v_mul_u32_u24", T, 21846, "v0"), valu("v_lshrrev_b32", T, 16, T), valu("v_mul_u32_u24", T2, 3, T),
              valu("v_sub_u32", T2, "v0", T2), salu("s_lshr_b32", s(S_T0), "s2", 4), salu("s_mul_i32", s(S_T0), s(S_T0), 36),
              valu("v_add_u32", T, s(S_T0), T), valu("v_mul_u32_u24", T, 9216, T), valu("v_lshl_add_u32", T, T2, 7, T),
              salu("s_and_b32", s(S_T0), "s2", 15), salu("s_mul_i32", s(S_T0), s(S_T0), 576), salu("s_add_u32", s(S_T0), s(S_T0), 64),
              salu("s_and_b32", s(S_T0), s(S_T0), "0xffffff80"), valu("v_add_u32", T, s(S_T0), T),
              vcmp("v_cmp_gt_u32", "vcc", 108, "v0"), cnd(T, v(V_OOB), T),
              bload("buffer_load_dword", "v60", T, s(64, 4)), bload("buffer_load_dword", "v61", T, s(68, 4))]
    if code:
        p += [raw("s_getpc_b64 s[80:81]", "salu", wr=["s[80:81]"]), label("L_pc"),
              raw("s_add_u32 s80, s80, main_kernel-L_pc", "salu", rd=["s80"], wr=["s80", "scc"]), salu("s_addc_u32", "s81", "s81", 0),
              salu("s_lshr_b32", s(S_T0), "s2", 3), salu("s_lshl_b32", s(S_T0), s(S_T0), 11),
              valu("v_and_b32", T, 15, "v0"), valu("v_lshl_add_u32", T, T, 7, s(S_T0)), raw("v_min_u32 v36, L_code_end-main_kernel-4, v36", "valu", rd=["v36"], wr=["v36"]),
              Ins("global_load_dword v62, v36, s[80:81]", "vld", rd=["v36", "s[80:81]"], wr=["v62"])]
    srd_off(p, 72, "s50", "s51", WS_L0 + L_FL, LSTRIDE + FL_BYTES)
    p += [salu("s_and_b32", s(S_T0), "s2", 127), salu("s_lshl_b32", s(S_T0), s(S_T0), 12), salu("s_lshr_b32", s(S_T1), "s2", 7),
          salu("s_mul_i32", s(S_T1), s(S_T1), LSTRIDE), salu("s_add_u32", s(S_T0), s(S_T0), s(S_T1)),
          valu("v_lshl_add_u32", T, "v0", 4, s(S_T0))]
    for i in range(4):
        p.append(valu("v_mov_b32", v(100 + i), 0))
    p.append(bstore("buffer_store_dwordx4", v(100, 4), T, s(72, 4)))
    if touch:
        srd_off(p, 72, "s50", "s51", WS_L0 + L_XB, 2 * LSTRIDE)
        p += [salu("s_mul_i32", s(S_T0), "s2", 2 * 9216), valu("v_lshl_add_u32", T, "v0", 4, s(S_T0))]
        for i in range(5):
            p += [salu("s_mov_b32", s(S_T0), 4096 * i), bstore("buffer_store_dwordx4", v(100, 4), T, s(72, 4), s(S_T0))]
        p += [salu("s_mul_i32", s(S_T0), "s2", 3 * 9216), valu("v_lshl_add_u32", T, "v0", 4, s(S_T0))]
        for i in range(7):
            p += [salu("s_mov_b32", s(S_T0), LSTRIDE - ACT + 4096 * i), bstore("buffer_store_dwordx4", v(100, 4), T, s(72, 4), s(S_T0))]
    for i in range(9):
        unpack(p, Y + 2 * i, v(24 + i))
    centre_and_store(p, SXA, SRS)
    for i in range(12):
        p.append(valu("v_lshl_or_b32", v(40 + i), v(84 + i), 16, v(40 + i)))
    p += [bstore("buffer_store_dwordx4", v(40, 4), "v56", s(SWQ, 4)),
          bstore("buffer_store_dwordx4", v(44, 4), "v57", s(SWQ, 4)),
          bstore("buffer_store_dwordx4", v(48, 4), "v58", s(SWO, 4))]
    p += [wait(vm_all=True, lgkm_all=True), scmp("s_cmp_lt_u32", "s2", 238), raw("s_cbranch_scc1 L_prep_done", "branch"),
          salu("s_sub_u32", SS_, "s2", 238), valu("v_mov_b32", Q, s(S_W))]
    p += wo_rows(Q, T3)
    p += [valu("v_lshrrev_b32", T, 1, v(V_SEG)), valu("v_mul_u32_u24", T, 18, T), valu("v_and_b32", T2, 1, v(V_SEG)),
          valu("v_add_u32", T, T, T2), cnd(T, T, v(V_SEG)), valu("v_add_u32", T3, T3, T),
          valu("v_mul_u32_u24", T3, 1152, T3), valu("v_lshl_add_u32", vo, v(V_M8), 4, T3)]
    for t in range(9):
        p.append(bload("buffer_load_dwordx4", v(64 + 4 * t, 4), vo, s(SO, 4), off=128 * t))
    p += [valu("v_mov_b32", T, 0), valu("v_mov_b32", T2, 0), salu("s_mov_b32", s(S_T1), "0x3f803f80")]
    for t in range(36):
        p.append(valu("v_dot2c_f32_bf16", (T, T2)[t & 1], s(S_T1), v(64 + t), rmw=True))
    p += [valu("v_add_f32", T, T, T2),
          dpp("v_add_f32", T, T, T, "quad_perm:[1,0,3,2]"), dpp("v_add_f32", T, T, T, "quad_perm:[2,3,0,1]"),
          dpp("v_add_f32", T, T, T, "row_half_mirror"),
          valu("v_mul_f32", T, f32(1.0 / D), T),
          valu("v_cvt_pk_bf16_f32", T2, T, T), valu("v_and_b32", T2, "0xffff0000", T2),
          valu("v_sub_f32", T, T, T2), valu("v_cvt_pk_bf16_f32", T, T, T),
          salu("s_add_u32", s(S_T1), SS_, 36 * 18), salu("s_lshl_b32", s(S_T1), s(S_T1), 10),
          salu("s_lshl_b32", s(S_T2), s(S_W), 8), salu("s_add_u32", s(S_T1), s(S_T1), s(S_T2)),
          valu("v_lshl_add_u32", T3, v(V_SEG), 1, s(S_T1)),
          vcmp("v_cmp_eq_u32", "vcc", 0, v(V_M8)), cnd(T3, v(V_OOB), T3),
          bstore("buffer_store_short_d16_hi", T2, T3, s(SWO, 4)),
          bstore("buffer_store_short", T, T3, s(SWO, 4), off=16),
          valu("v_lshl_add_u32", T3, v(V_L), 4, s(S_T1)),
          vcmp("v_cmp_gt_u32", "vcc", 14, v(V_L)), cnd(T3, v(V_OOB), T3)]
    for i in range(4):
        p.append(valu("v_mov_b32", v(40 + i), 0))
    p += [bstore("buffer_store_dwordx4", v(40, 4), T3, s(SWO, 4), off=32), label("L_prep_done")]
```

```python
from asm import *
from layout import *

_n = [0]
SPIN_MAX = 1 << 16


def uid(t):
    _n[0] += 1
    return f"L_{t}_{_n[0]}"


def setup(p):
    p += [salu("s_lshl_b32", "s36", s(G_R), 11), salu("s_lshl_b32", "s37", s(G_C), 7), salu("s_add_u32", "s37", "s37", "s36"),
          valu("v_mov_b32", v(GV_T), OOB), valu("v_mov_b32", v(GV_POST), "s37"),
          vcmp("v_cmp_eq_u32", "vcc", 0, "v0"), cnd(v(GV_POST), v(GV_T), v(GV_POST)),
          valu("v_and_b32", v(GV_POLL), 15, "v0"), valu("v_lshlrev_b32", v(GV_POLL), 7, v(GV_POLL)),
          valu("v_add_u32", v(GV_POLL), "s36", v(GV_POLL))]


def flag_srd(p):
    srd_off(p, G_FL, s(G_LB), s(G_LB + 1), L_FL, LSTRIDE + FL_BYTES)


def post(phase, local, soff_reg, one, nxt=False, val=None):
    off = FL_PH * phase + (LSTRIDE if nxt else 0)
    out = [salu("s_mov_b32", soff_reg, off)]
    if val is None:
        out.append(valu("v_mov_b32", one, 1))
    else:
        one = val
    if not local:
        out.append(bstore("buffer_store_dword", one, v(GV_POST), s(G_FL, 4), soff_reg, flags="sc1"))
        return out
    fast, done = uid("pf"), uid("pd")
    out += [scmp("s_cmp_eq_u32", s(G_SLOW), 0), raw(f"s_cbranch_scc1 {fast}", "branch"),
            raw("buffer_wbl2 sc1"), raw("s_waitcnt vmcnt(0)"),
            raw(f"buffer_store_dword {one}, {v(GV_POST)}, {s(G_FL, 4)}, {soff_reg} offen sc1"),
            raw(f"s_branch {done}", "branch"), label(fast),
            bstore("buffer_store_dword", one, v(GV_POST), s(G_FL, 4), soff_reg), label(done)]
    return out


def poll_issue(phase, soff_reg, dst, addr=None):
    ld = bload("buffer_load_dword", dst, addr or v(GV_POLL), s(G_FL, 4), soff_reg, flags="sc1")
    ld.glue = True
    return [salu("s_mov_b32", soff_reg, FL_PH * phase), ld]


def poll_check(phase, local, soff_reg, dst, tail, addr=None):
    spin, back, inv = uid("sp"), uid("bk"), uid("iv")
    ad = addr or v(GV_POLL)
    out = [vcmp("v_cmp_eq_u32", "vcc", 0, dst), raw(f"s_cbranch_vccnz {spin}", "branch"), label(back)]
    tail += [label(spin), raw(f"s_mov_b32 {s(G_SPIN)}, 0"), raw(f"s_mov_b32 {soff_reg}, {FL_PH * phase}"), label(spin + "_l"),
             raw(f"buffer_load_dword {dst}, {ad}, {s(G_FL, 4)}, {soff_reg} offen sc1"),
             raw(f"s_add_u32 {s(G_SPIN)}, {s(G_SPIN)}, 1"), raw(f"s_cmp_gt_u32 {s(G_SPIN)}, {SPIN_MAX}"), raw(f"s_cbranch_scc1 {back}"),
             raw("s_waitcnt vmcnt(0)"), raw(f"v_cmp_eq_u32 vcc, 0, {dst}"), raw(f"s_cbranch_vccnz {spin}_l"), raw(f"s_branch {back}")]
    if local:
        out += [scmp("s_cmp_lg_u32", s(G_SLOW), 0), raw(f"s_cbranch_scc1 {inv}", "branch"), label(inv + "_b")]
        tail += [label(inv), raw("buffer_inv sc1"), raw("s_waitcnt vmcnt(0)"), raw(f"s_branch {inv}_b")]
    return out


def poll(phase, local, soff_reg, tail, addr=None):
    return poll_issue(phase, soff_reg, v(GV_T), addr) + poll_check(phase, local, soff_reg, v(GV_T), tail, addr)
```

```python
import sys, os
sys.path.insert(0, os.path.dirname(os.path.abspath(__file__)))
from asm import *
from layout import *
import rows, a1, a2, b1, sync

NAME = "interleave_layers__sliding_local_dilated__glu_gated_bilinear__prompt"
out = sys.argv[1]
kw = dict(x.split("=") for x in sys.argv[2:])
I = lambda k, d: int(kw.get(k, d))
TUP = lambda k, d: tuple(int(x) for x in kw.get(k, d).split(","))
nc = I("nc", 4)
local = I("local", 0)
hlocal = I("hlocal", 0)
stamps = I("stamps", 0)
verbose = I("v", 0)
nstamp = [0]


def T(p, real=False):
    if not stamps: return
    k = nstamp[0]; nstamp[0] += 1
    assert k < 32
    p += [Ins(("s_memrealtime" if (real or stamps == 2) else "s_memtime") + " s[42:43]", "smem", wr="s[42:43]"), wait(lgkm_all=True),
          raw(f"s_lshl_b32 s43, s{G_LAYER}, 5"), raw(f"s_or_b32 m0, s43, {k}"), raw("s_nop 0"),
          raw("v_writelane_b32 v95, s42, m0")]


def prep_kernel():
    name = NAME + "_kernel"
    p = [scmp("s_cmp_ge_u32", "s2", 256), raw(f"s_cbranch_scc1 L_prep_end", "branch")]
    if stamps:
        p += [Ins("s_memrealtime s[96:97]", "smem", wr="s[96:97]"), wait(lgkm_all=True)]
    rows.prep(p, warm=I("warm", 1), code=I("code", 1), touch=I("touch", 0))
    if stamps:
        p += [wait(vm_all=True, lgkm_all=True), Ins("s_memrealtime s[92:93]", "smem", wr="s[92:93]"), sload(90, 2, K_WS), wait(lgkm_all=True),
              salu("s_add_u32", "s90", "s90", WS_STAMP + 262144), salu("s_addc_u32", "s91", "s91", 0),
              valu("v_lshrrev_b32", "v1", 6, "v0"), salu("s_lshl_b32", "s89", "s2", 2), valu("v_add_u32", "v1", "s89", "v1"), valu("v_lshlrev_b32", "v1", 3, "v1"),
              valu("v_mov_b32", "v4", "s96"), valu("v_mov_b32", "v5", "s92"),
              Ins("global_store_dwordx2 v1, v[4:5], s[90:91]", "vst", rd=["v1", "v[4:5]", "s[90:91]"])]
    p += [label("L_prep_end"), raw("s_endpgm")]
    return name, kernel_header(name) + "\n" + text(finalize(p, verbose=verbose)), kernel_desc(name, vgpr=128, accum=128), 9216


def main_kernel():
    name = "main_kernel"
    tail = []
    B = b1.B1(nb=I("nb", 4), nb0=I("nb0", 2), nb2=I("nb2", 3), lau=I("lau", 9), pro=I("pro", 3), npre=TUP("npre", "12,6"), local=local,
              lags=TUP("lags", "3,2,3,3" if local else "5,4,4,4"), wqd=TUP("wqd", "39,42,45,48,99,99,99,99"), verbose=verbose, warm=I("warm", 1), nc=nc, exp=I("exp", 0), hl=TUP("hl", "3,1,2" if (local or hlocal) else "4,2,3"), hlocal=hlocal, lau2=I("lau2", 14), sp=I("sp", 12), lp=I("lp", 6), hdir=I("hdir", 0), early=I("early", 14))
    fl = "" if local else "sc1"
    p = [scmp("s_cmp_ge_u32", "s2", 256), raw("s_cbranch_scc1 L_main_end", "branch"),
         sload(G_WG, 4, K_WG), sload(G_WD, 2, K_WD), sload(G_WS, 2, K_WS), sload(G_OUT, 2, K_OUT),
         valu("v_lshrrev_b32", "v1", 6, "v0"), salu("s_mov_b32", s(G_LAYER), 0), salu("s_mov_b32", s(G_SLOW), 0),
         valu("v_readfirstlane_b32", s(G_W), "v1")]
    lg = nc.bit_length() - 1
    p += [salu("s_and_b32", "s36", "s2", 7), salu("s_lshr_b32", "s37", "s2", 3),
          salu("s_and_b32", s(G_C), "s36", 16 // nc - 1), salu("s_lshl_b32", s(G_C), s(G_C), lg),
          salu("s_and_b32", "s38", "s37", nc - 1), salu("s_add_u32", s(G_C), s(G_C), "s38"),
          salu("s_lshr_b32", s(G_R), "s36", 4 - lg), salu("s_lshl_b32", s(G_R), s(G_R), 5 - lg),
          salu("s_lshr_b32", "s38", "s37", lg), salu("s_add_u32", s(G_R), s(G_R), "s38"),
          wait(lgkm_all=True)]
    T(p, True); T(p)
    p += a1.wq_setup()
    for rho in range(8):
        p += a1.wq_round(rho, "s38")
    p += [salu("s_add_u32", s(G_LB), s(G_WS), WS_L0), salu("s_addc_u32", s(G_LB + 1), s(G_WS + 1), 0)]
    sync.setup(p)
    sync.flag_srd(p)
    if local or hlocal:
        p += [raw("s_getreg_b32 s36, hwreg(HW_REG_XCC_ID, 0, 4)", "salu", wr=["s36"]), salu("s_add_u32", "s36", "s36", 1), valu("v_mov_b32", "v26", "s36")]
        p += sync.post(F_X, False, "s37", None, val="v26")
    pre = finalize(p, verbose=verbose)

    p = [label("L_layer")]
    late = a1.setup(p)
    T(p)
    rest = a1.body(p, late, tail, la=I("a1la", 4), st_flags=fl, wo_keep=I("wok", 0), T=T, HD=I("hd", 3))
    if local or hlocal:
        skip = sync.uid("xc")
        q = [] if local else [salu("s_xor_b32", "s37", s(G_C), 1), salu("s_lshl_b32", "s37", "s37", 7), salu("s_lshl_b32", "s38", s(G_R), 11),
                              salu("s_add_u32", "s37", "s37", "s38"), valu("v_mov_b32", "v27", "s37")]
        q += sync.poll(F_X, False, "s36", tail, addr=None if local else "v27") + [
            raw("s_getreg_b32 s36, hwreg(HW_REG_XCC_ID, 0, 4)", "salu", wr=["s36"]), salu("s_add_u32", "s36", "s36", 1),
            vcmp("v_cmp_ne_u32", "vcc", "s36", v(GV_T)), raw("s_nop 4"), scmp("s_cmp_lg_u64", "vcc", 0), salu("s_cselect_b32", s(G_SLOW), 1, I("slow", 0))]
        p += [scmp("s_cmp_lg_u32", s(G_LAYER), 0), raw(f"s_cbranch_scc1 {skip}", "branch")]
        p += [raw(i.text, "branch" if i.kind == "branch" else "raw") if i.kind != "label" else i for i in finalize(q)]
        p.append(label(skip))
    p += [wait(vm_all=True), barrier()] + sync.post(F_O, local, "s36", "v26")
    T(p)
    p += rest
    shadow = a2.setup(p)
    b1.setup(shadow)
    p += sync.poll(F_O, local, "s36", tail)
    T(p)
    a2.body(p, shadow, B.prefetch(0), st_flags=fl, ld_flags=fl, T=T)
    T(p)
    p += [wait(vm_all=True), barrier()] + sync.post(F_B, local, "s36", "v1")
    T(p)
    p += sum(B.prefetch(1), [])
    p += sync.poll(F_B, local, "s36", tail)
    T(p)
    B.body(p, tail, T=T, stamps=(0, 12, 24, 48, 72, 96, 108, 128, 144))
    p += [scmp("s_cmp_lg_u32", s(G_LAYER), 0), raw("s_cbranch_scc1 L_last", "branch")]
    st = finalize(p, verbose=verbose, keep=True)
    body, state = st
    q = []
    B.finish(q, False)
    q += [wait(vm_all=True), barrier()] + sync.post(F_A, False, "s36", "v1", nxt=True)
    T(q); T(q, True)
    q += [salu("s_mov_b32", s(G_LAYER), 1), salu("s_add_u32", s(G_LB), s(G_LB), LSTRIDE), salu("s_addc_u32", s(G_LB + 1), s(G_LB + 1), 0)]
    sync.flag_srd(q)
    q.append(raw("s_branch L_layer", "branch"))
    r = []
    B.finish(r, True)
    if stamps:
        nstamp[0] -= 2
        r.append(wait(vm_all=True))
        T(r); T(r, True)
        r += [salu("s_add_u32", "s36", s(G_WS), WS_STAMP), salu("s_addc_u32", "s37", s(G_WS + 1), 0), salu("s_lshl_b32", "s38", "s2", 10),
              valu("v_lshl_add_u32", "v1", "v0", 2, "s38"), Ins("global_store_dword v1, v95, s[36:37]", "vst", rd=["v1", "v95", "s[36:37]"])]
    prog = pre + body + finalize(q, state=state) + [label("L_last")] + finalize(r, state=state) + [label("L_main_end"), raw("s_endpgm")] + tail + [label("L_code_end")]
    return name, kernel_header(name) + "\n" + text(prog), kernel_desc(name), b1.LDS_BYTES


K = [prep_kernel(), main_kernel()]
head = open(os.path.join(os.path.dirname(os.path.abspath(__file__)), "..", NAME + ".s.ref")).read().split("; Override")[0]
src = head + "; Generated by gen/build.py (hand-scheduled generator scripts in gen/).\n"
for name, _, _, lds in K:
    src += f"; @launch kernel={name} grid=(256,1,1) block=(256,1,1) lds={lds}\n"
src += '.amdgcn_target "amdgcn-amd-amdhsa--gfx950"\n.text\n' + "".join(k[1] + "\n" for k in K)
src += '.section .rodata,"a"\n' + "".join(".p2align 6\n" + k[2] + "\n" for k in K)
open(out, "w").write(src)
if stamps: print("stamps per layer:", nstamp[0])
```

```python
import math
from asm import *
from layout import *

import sync
SXA, SRS, SOF = 4, 8, 12
SWQ, SWO = 44, 60
S_HP = G_C
S_W, S_R = G_W, G_R
S_MH = 35
S_W4K = 101
S_T0, S_T1, S_T2 = 36, 37, 38
S_K = 48
S_MASK = 64
S_PLO, S_PHI, S_ONE = 32, 33, 34
STG = WQ_SLICE
PITCH = 240
LDS_BYTES = STG + 144 * PITCH
V_LIN, V_LIN2, V_LH, V_LH2, V_LX = 1, 2, 3, 4, 19
V_XH, V_XO, V_DW = 5, 6, 94
V_RS = 8
V_SH, V_SH4, V_SO = 11, 12, 13
V_KV, V_Q, V_O, V_O8 = 14, 15, 16, 17
V_NEG = 18
V_PA = 25
V_FR = 176
V_HF = 32
V_ACC = 112
V_WP, V_W3 = 250, 251


def xa(i, sx):
    return a(72 * i + 4 * sx, 4)


def wq_setup(enable=None):
    p = []
    srd_off(p, SWQ, s(G_WS), s(G_WS + 1), WS_WQ, 16 * WQ_SLICE)
    if enable is not None:
        p += [scmp("s_cmp_eq_u32", s(G_LAYER), 0), salu("s_cselect_b32", s(SWQ + 2), s(SWQ + 2), 0)]
    p += [salu("s_mul_i32", s(S_T0), s(S_HP), WQ_SLICE), salu("s_lshl_b32", s(S_W4K), s(S_W), 12), salu("s_add_u32", s(S_T0), s(S_T0), s(S_W4K)),
          valu("v_and_b32", v(V_DW), 63, "v0"), valu("v_lshlrev_b32", v(V_DW), 4, v(V_DW)), valu("v_add_u32", v(V_DW), s(S_T0), v(V_DW))]
    return p


def wq_round(rho, sreg):
    out = [salu("s_add_u32", "m0", s(S_W4K), 16384 * rho), salu("s_mov_b32", sreg, 16384 * rho)]
    out += [dma(v(V_DW), s(SWQ, 4), sreg, off=1024 * i, tag=("wq", rho)) for i in range(4)]
    return out


def wq_piece(rho, i, sreg):
    r = wq_round(rho, sreg)
    return r[:2] + [r[2 + i]]


def setup(p):
    L, M, Q, T, T2 = "v20", "v21", "v22", "v23", "v24"
    p += [valu("v_and_b32", L, 63, "v0"), valu("v_and_b32", M, 15, L), valu("v_lshrrev_b32", Q, 4, L),
          valu("v_lshlrev_b32", v(V_LIN), 4, L), valu("v_add_u32", v(V_LIN2), 65536, v(V_LIN)),
          valu("v_add_u32", v(V_LX), STG + 2048, v(V_LIN)),
          salu("s_lshl_b32", s(S_T0), s(S_W), 10), valu("v_add_u32", v(V_LH), s(S_T0), v(V_LIN)),
          valu("v_add_u32", v(V_LH2), 65536, v(V_LH)),
          salu("s_lshl_b32", s(S_T0), s(S_R), 3), salu("s_max_u32", s(S_T1), s(S_T0), 1), salu("s_sub_u32", s(S_T1), s(S_T1), 1),
          salu("s_lshl_b32", s(S_T2), s(S_W), 1), salu("s_add_u32", s(S_T0), s(S_T0), s(S_T2)),
          valu("v_lshrrev_b32", T, 3, M), valu("v_lshlrev_b32", T, 7, T), valu("v_and_b32", T2, 7, M), valu("v_lshl_add_u32", T, T2, 2, T),
          salu("s_lshl_b32", s(S_T2), s(S_T1), 8), valu("v_add_u32", v(V_RS), s(S_T2), T),
          salu("s_lshl_b32", s(S_T2), s(S_T0), 8), valu("v_add_u32", v(V_RS + 1), s(S_T2), T),
          salu("s_mul_i32", s(S_T1), s(S_T1), MT), salu("s_mul_i32", s(S_MH), s(S_W), 5120), salu("s_add_u32", s(S_T1), s(S_T1), s(S_MH)),
          valu("v_add_u32", v(V_XH), s(S_T1), v(V_LIN)), salu("s_add_u32", s(S_MH), s(S_MH), STG + 2048),
          salu("s_mul_i32", s(S_T0), s(S_T0), MT), valu("v_add_u32", v(V_XO), s(S_T0), v(V_LIN)),
          salu("s_max_u32", s(S_T0), s(S_R), 1), salu("s_sub_u32", s(S_T0), s(S_T0), 1), salu("s_lshl_b32", s(S_T0), s(S_T0), 11),
          salu("s_add_u32", s(S_T0), s(S_T0), 14 * 128), valu("v_and_b32", T, 0x87, v(GV_POLL)), valu("v_add_u32", T, s(S_T0), T),
          vcmp("v_cmp_gt_u32", "vcc", 32, L), cnd(v(V_PA), T, v(GV_POLL))]
    for i in range(5):
        p += [salu("s_mov_b32", s(S_K + i), 4096 * i), salu("s_mov_b32", s(S_K + 5 + i), MT + 4096 * i)]
    srd_off(p, SXA, s(G_LB), s(G_LB + 1), L_XA, ACT)
    srd_off(p, SRS, s(G_LB), s(G_LB + 1), L_ST, 32768)
    late = []
    srd_off(late, SOF, s(G_LB), s(G_LB + 1), L_OF, ACT)
    late += [valu("v_mul_u32_u24", T, PITCH, M), valu("v_lshl_add_u32", T, Q, 3, T),
             valu("v_add_u32", v(V_SH4), STG + 32 * 4, T),
             salu("s_lshl_b32", s(S_T0), s(S_W), 5), salu("s_add_u32", s(S_T1), s(S_T0), STG), valu("v_add_u32", v(V_SH), s(S_T1), T),
             salu("s_mul_i32", s(S_T0), s(S_T0), PITCH), salu("s_add_u32", s(S_T0), s(S_T0), STG + 16 * PITCH),
             valu("v_add_u32", v(V_SO), s(S_T0), T)]
    HH = "v26"
    late += [valu("v_lshrrev_b32", HH, 5, L), valu("v_and_b32", T, 31, L), salu("s_lshl_b32", s(S_T0), s(S_W), 5),
             valu("v_add_u32", T, s(S_T0), T),
             valu("v_mul_u32_u24", T2, PITCH, T),
             valu("v_mul_u32_u24", v(V_KV), 80, HH), valu("v_add_u32", v(V_KV), v(V_KV), T2), valu("v_add_u32", v(V_KV), STG + 2 * PITCH, v(V_KV)),
             valu("v_mul_u32_u24", v(V_Q), 36, HH), valu("v_add_u32", v(V_Q), v(V_Q), T2), valu("v_add_u32", v(V_Q), STG + 16 * PITCH + 152, v(V_Q)),
             salu("s_lshl_b32", s(S_T1), s(S_R), 7), valu("v_add_u32", T, s(S_T1), T)]
    for w in range(1, 8):
        late.append(vcmp("v_cmp_le_u32", s(S_MASK + 2 * (w - 1), 2), 2 * w, T))
    late += [valu("v_lshrrev_b32", T2, 4, T), valu("v_mul_u32_u24", T2, MT, T2),
             valu("v_lshl_add_u32", v(V_O), M, 4, T2), valu("v_lshl_add_u32", v(V_O), HH, 9, v(V_O)),
             salu("s_lshl_b32", s(S_T1), s(S_HP), 10), valu("v_add_u32", v(V_O), s(S_T1), v(V_O)),
             valu("v_lshl_add_u32", v(V_O8), M, 2, T2), valu("v_lshl_add_u32", v(V_O8), HH, 6, v(V_O8)),
             salu("s_lshl_b32", s(S_T1), s(S_HP), 7), salu("s_add_u32", s(S_T1), s(S_T1), 16384), valu("v_add_u32", v(V_O8), s(S_T1), v(V_O8)),
             valu("v_mov_b32", v(V_NEG), f32(-1e9 * math.log2(math.e))),
             salu("s_mov_b32", s(S_PLO), "0x05040100"), salu("s_mov_b32", s(S_PHI), "0x07060302"), salu("s_mov_b32", s(S_ONE), "0x3f803f80")]
    srd_off(late, SWO, s(G_WS), s(G_WS + 1), WS_WO, 37 * MT)
    late += [salu("s_and_b32", s(S_T0), s(G_C), 3), salu("s_and_b32", s(S_T1), s(S_T0), 1), salu("s_mul_i32", s(S_T0), s(S_T0), 9),
             salu("s_add_u32", s(S_T2), s(S_T0), s(S_T1)), salu("s_xor_b32", s(S_T1), s(S_T1), 1), salu("s_lshl_b32", s(S_T1), s(S_T1), 3),
             salu("s_add_u32", s(S_T0), s(S_T0), s(S_T1)),
             salu("s_lshl_b32", s(S_T1), s(S_W), 1), salu("s_add_u32", s(S_T2), s(S_T2), s(S_T1)),
             salu("s_mul_i32", s(S_T2), s(S_T2), MT), valu("v_add_u32", v(V_WP), s(S_T2), v(V_LIN)),
             scmp("s_cmp_lt_u32", s(S_W), 2), salu("s_cselect_b32", s(S_T0), s(S_T0), 36),
             salu("s_mul_i32", s(S_T0), s(S_T0), MT), valu("v_add_u32", v(V_W3), s(S_T0), v(V_LIN))]
    return late


def wo_load(i, sx):
    k, o = sx >> 2, 1024 * (sx & 3)
    return bload("buffer_load_dwordx4", xa(i, sx), v(V_W3 if i == 2 else V_WP), s(SWO, 4), s(S_K + k + (5 if i == 1 else 0)), off=o)


def body(p, late, tail, la=4, st_flags="", ld_flags="sc1", wo_keep=0, T=None, HD=3, first=None, warm=()):
    def only_first(q):
        skip = sync.uid("l0")
        return [scmp("s_cmp_lg_u32", s(G_LAYER), 0), raw(f"s_cbranch_scc1 {skip}", "branch")] + sync.untracked(q) + [label(skip)]
    first = dict(first or {})
    for rho in range(3, 8):
        first[2 * (rho - 3)] = wq_round(rho, s(S_T0)) + first.get(2 * (rho - 3), [])
    assert la <= 4

    p += late
    p += sync.poll(F_A, s(S_T0), tail, addr=v(V_PA))
    if T: T(p)

    def xl(sx):
        k, o = sx >> 2, 1024 * (sx & 3)
        return [bload("buffer_load_dwordx4", xa(0, sx), v(V_XO), s(SXA, 4), s(S_K + k), off=o, flags=ld_flags),
                bload("buffer_load_dwordx4", xa(1, sx), v(V_XO), s(SXA, 4), s(S_K + 5 + k), off=o, flags=ld_flags, tag=("x", sx))]

    def fr(sx, n):
        return V_FR + 28 * (sx & 1) + 4 * n

    def hfr(sx, i):
        return V_HF + 12 * (sx & 1) + 4 * i

    def reads(sx):
        out = []
        for n in range(7):
            off = (7 * sx + n) * 1024
            out.append(dsr("ds_read_b128", v(fr(sx, n), 4), v((V_LIN, V_LIN2)[off >> 16]), off & 65535, tag=("fr", sx)))
        return out

    def hreads(sx):
        off, off4 = 7 * sx * 1024, (7 * sx + 4) * 1024
        return [dsr("ds_read_b128", v(hfr(sx, 0), 4), v((V_LH, V_LH2)[off >> 16]), off & 65535),
                dsr("ds_read_b128", v(hfr(sx, 1), 4), v((V_LIN, V_LIN2)[off4 >> 16]), off4 & 65535),
                dsr("ds_read_b128", v(hfr(sx, 2), 4), v(V_LX), 1024 * sx, tag=("hf", sx))]

    acc = lambda t, n: V_ACC + 28 * t + 4 * n
    HA, HB_ = V_ACC + 56, V_ACC + 60

    def hmf(sx):
        return [mfma16(v(c, 4), v(hfr(sx, i), 4), v(hfr(sx, 2), 4), "0" if sx == 0 else v(c, 4)) for i, c in enumerate((HA, HB_))]
    p += xl(0) + xl(1)
    p.append(salu("s_mov_b32", "m0", s(S_MH)))
    p += [dma(v(V_XH), s(SXA, 4), "0", off=1024 * i, flags=ld_flags, tag="xh") for i in range(4)]
    p += [salu("s_add_u32", "m0", s(S_MH), 4096), dma(v(V_XH), s(SXA, 4), s(S_K + 1), flags=ld_flags, tag="xh")]
    for sx in range(2, la):
        p += xl(sx)
    p += [wait(vm=[("x", 0)]), barrier()]
    p += reads(0)
    if T: T(p)
    rs = [bload("buffer_load_dword", v(V_RS + 2), v(V_RS + 1), s(SRS, 4), off=256, flags=ld_flags),
          bload("buffer_load_dword", v(V_RS), v(V_RS), s(SRS, 4), flags=ld_flags),
          bload("buffer_load_dword", v(V_RS + 1), v(V_RS + 1), s(SRS, 4), flags=ld_flags)]
    w3 = [wo_load(2, sx) for sx in range(18)]
    pairs = [wo_load(i, sx) for sx in range(18) for i in range(2)]
    for sx in range(18 + HD):
        fill = reads(sx + 1) if sx + 1 < 18 else []
        if 0 <= sx + 1 - HD < 18: fill += hreads(sx + 1 - HD)
        ld = []
        if sx < 18:
            ld = xl(sx + la) if sx + la < 18 else (rs + list(warm) if sx + la == 18 else [])
            if sx >= 9: ld = ld + [w3.pop(0), w3.pop(0)]
            if sx + la > 18: ld = ld + [pairs.pop(0), pairs.pop(0)]
        ms = []
        if sx < 18:
            for n in range(7):
                for t in range(2):
                    c = v(acc(t, n), 4)
                    ms.append(mfma16(c, v(fr(sx, n), 4), xa(t, sx), "0" if sx == 0 else c))
        if sx >= HD: ms += hmf(sx - HD)
        p.append(wait(lgkm=[("fr", sx), ("hf", sx - HD)], vm=[("x", sx)]))
        for k, m in enumerate(ms):
            p.append(m)
            if k == 0 and (sx == HD - 1 or (sx + 1 < 18 and (7 * sx + 13) // 16 > (7 * sx + 6) // 16)):
                p += ([wait(vm=["xh"])] if sx == HD - 1 else []) + [barrier()]
            elif k == 9 and sx in first:
                p += only_first(first[sx])
            elif fill:
                p.append(fill.pop(0))
            elif ld:
                p.append(ld.pop(0))
        p += fill + ld
    p.append(barrier())
    if T: T(p)
    n_early = len(pairs) - wo_keep
    early, rest = pairs[:n_early], pairs[n_early:]
    start = len(p)
    tiles = [(HA, V_RS, V_SH, 0), (HB_, V_RS, V_SH4, 0)] + \
            [(acc(t, n), V_RS + 1 + t, V_SO, 16 * PITCH * t + 32 * n) for n in range(7) for t in range(2)]
    tiles = tiles[2:] + tiles[:2]
    for k, (c, rs, ad, off) in enumerate(tiles):
        tt = V_FR + 2 * (k & 3)
        for e in range(4):
            p.append(valu("v_mul_f32", v(c + e), v(c + e), v(rs)))
        p += [valu("v_cvt_pk_bf16_f32", v(tt), v(c), v(c + 1)), valu("v_cvt_pk_bf16_f32", v(tt + 1), v(c + 2), v(c + 3)),
              dsw("ds_write_b64", v(ad), v(tt, 2), off)]
    p += [wait(lgkm_all=True), barrier()]
    if T: T(p)
    KV, Qr, LG, PP, O, TM = 36, 196, 208, 216, 220, 238
    for i in range(4):
        p.append(Ins(f"ds_read2_b32 {v(Qr + 2 * i, 2)}, {v(V_Q)} offset0:{2 * i} offset1:{2 * i + 1}", "dsr", rd=[v(V_Q)], wr=[v(Qr + 2 * i, 2)]))
    p.append(dsr("ds_read_b32", v(Qr + 8), v(V_Q), 32))

    def kvread(w, pc):
        off = 2 * PITCH * (7 - w) + 16 * pc
        if pc < 4:
            return dsr("ds_read_b128", v(KV + 20 * w + 4 * pc, 4), v(V_KV), off)
        return dsr("ds_read_b64", v(KV + 20 * w + 16, 2), v(V_KV), off)
    for w in range(8):
        p += [kvread(w, pc) for pc in range(3)]
    vreads = [kvread(w, pc) for w in range(8) for pc in (3, 4)]
    for half in range(2):
        for i in range(9):
            for w in range(4 * half, 4 * half + 4):
                if i == 0:
                    p.append(valu("v_dot2_f32_bf16", v(LG + w), v(Qr), v(KV + 20 * w), 0))
                else:
                    p.append(valu("v_dot2_f32_bf16", v(LG + w), v(Qr + i), v(KV + 20 * w + i), v(LG + w)))
            if half == 0 and vreads:
                p += [vreads.pop(0), vreads.pop(0)]
    assert not vreads
    cs = f32(DH ** -0.5 * math.log2(math.e))
    for w in range(8):
        p.append(valu("v_mul_f32", v(LG + w), cs, v(LG + w)))
    for w in range(1, 8):
        p.append(cnd(v(LG + w), v(V_NEG), v(LG + w), s(S_MASK + 2 * (w - 1), 2)))
    MX = v(TM + 8)
    p += [valu("v_max3_f32", MX, v(LG), v(LG + 1), v(LG + 2)), valu("v_max3_f32", v(TM + 9), v(LG + 3), v(LG + 4), v(LG + 5)),
          valu("v_max3_f32", MX, MX, v(LG + 6), v(LG + 7)), valu("v_max_f32", MX, MX, v(TM + 9))]
    for w in range(8):
        p.append(valu("v_sub_f32", v(LG + w), v(LG + w), MX))
    for w in range(8):
        p.append(valu("v_exp_f32", v(LG + w), v(LG + w)))
    for j in range(4):
        p.append(valu("v_cvt_pk_bf16_f32", v(PP + j), v(LG + 2 * j), v(LG + 2 * j + 1)))
    SUM = v(TM + 10)
    p.append(valu("v_dot2_f32_bf16", SUM, v(PP), s(S_ONE), 0))
    for j in range(1, 4):
        p.append(valu("v_dot2_f32_bf16", SUM, v(PP + j), s(S_ONE), SUM))
    k = 0
    pend = []
    for j in range(4):
        for i in range(9):
            x0, x1 = v(KV + 20 * (2 * j) + 9 + i), v(KV + 20 * (2 * j + 1) + 9 + i)
            t = TM + 2 * (k & 3); k += 1
            p += [valu("v_perm_b32", v(t), x1, x0, s(S_PLO)), valu("v_perm_b32", v(t + 1), x1, x0, s(S_PHI))]
            p += pend
            pend = [valu("v_dot2_f32_bf16", v(O + 2 * i + e), v(PP + j), v(t + e), 0 if j == 0 else v(O + 2 * i + e)) for e in range(2)]
            if j == 1 and i == 0:
                p.append(valu("v_rcp_f32", SUM, SUM))
    p += pend
    for d in range(18):
        p.append(valu("v_mul_f32", v(O + d), v(O + d), SUM))
    for i in range(9):
        p.append(valu("v_cvt_pk_bf16_f32", v(Qr + i), v(O + 2 * i), v(O + 2 * i + 1)))
    seg = p[start:]; del p[start:]
    step = max(1, int(len(seg) * 0.8) // max(1, len(early)))
    for i, ins in enumerate(seg):
        p.append(ins)
        if i % step == step - 1 and early: p.append(early.pop(0))
    p += early
    p += [bstore("buffer_store_dwordx4", v(Qr, 4), v(V_O), s(SOF, 4), flags=st_flags),
          bstore("buffer_store_dwordx4", v(Qr + 4, 4), v(V_O), s(SOF, 4), off=256, flags=st_flags),
          bstore("buffer_store_dword", v(Qr + 8), v(V_O8), s(SOF, 4), flags=st_flags)]
    if T: T(p)
    return rest
```

```python
from asm import *
from layout import *
import sync, a1
from rows import xsum, tree_sum

S_WG, S_WU, S_WD, S_XF, S_P, S_WS, S_HX = 4, 8, 12, 16, 20, 24, 28
S_W1K, S_OFF, S_OFF2, S_T0, S_T1, S_T2 = 33, 34, 35, 36, 37, 38
S_W, S_C, S_R = G_W, G_C, G_R
V_RD = [[8, 9, 10], [11, 12, 13]]
V_RS = [14, 15, 25]
V_LX = [26, 27, 28]
V_H, V_HW, V_HS = 16, 17, 18
V_DD, V_DS, V_DWL, V_LX8, V_DX = 19, 20, 21, 22, 23
V_LIN = 24
V_TMP = 32
V_FR = 56
V_XV = 96
V_ACC = [128, 192]


def xreg(sidx, t):
    if sidx < 16:
        return a(16 * sidx + 4 * t, 4)
    return v(V_XV + 16 * (sidx - 16) + 4 * t, 4)


def setup(p):
    L, I, Q, T, T2, T3 = "v1", "v2", "v3", "v4", "v5", "v6"
    p += [valu("v_and_b32", L, 63, "v0"), valu("v_and_b32", I, 15, L), valu("v_lshrrev_b32", Q, 4, L),
          valu("v_lshlrev_b32", v(V_LIN), 4, L), salu("s_lshl_b32", s(S_W1K), s(S_W), 10)]
    FG, MG, ODD = s(41), s(42), s(43)
    p += [salu("s_and_b32", FG, s(S_W), 1), salu("s_lshr_b32", MG, s(S_W), 1), salu("s_and_b32", ODD, s(S_C), 1)]
    p += [valu("v_lshrrev_b32", T, 2, I), valu("v_lshl_add_u32", T, Q, 2, T),
          valu("v_and_b32", T2, 3, I), valu("v_lshlrev_b32", T2, 3, T2),
          valu("v_lshrrev_b32", T3, 1, T), valu("v_and_b32", T3, 3, T3),
          salu("s_lshl_b32", s(S_T0), FG, 1)]
    for k in range(2):
        p += [salu("s_add_u32", s(S_T1), s(S_T0), k),
              valu("v_xor_b32", v(V_RD[k][0]), s(S_T1), T3), valu("v_lshlrev_b32", v(V_RD[k][0]), 5, v(V_RD[k][0])),
              valu("v_lshl_add_u32", v(V_RD[k][0]), T, 7, v(V_RD[k][0])), valu("v_add_u32", v(V_RD[k][0]), v(V_RD[k][0]), T2),
              valu("v_add_u32", v(V_RD[k][1]), 65536, v(V_RD[k][0])), valu("v_add_u32", v(V_RD[k][2]), 131072, v(V_RD[k][0]))]
    p += [valu("v_and_b32", T3, 1, Q), valu("v_xor_b32", T3, FG, T3), valu("v_lshlrev_b32", T3, 5, T3),
          valu("v_lshl_add_u32", v(V_RS[0]), T, 6, T3), valu("v_add_u32", v(V_RS[0]), v(V_RS[0]), T2),
          valu("v_add_u32", v(V_RS[1]), 65536, v(V_RS[0])), valu("v_add_u32", v(V_RS[2]), 131072, v(V_RS[0]))]
    p += [salu("s_lshl_b32", s(S_T0), MG, 11), valu("v_add_u32", v(V_LX[0]), s(S_T0), v(V_LIN)),
          valu("v_add_u32", v(V_LX[1]), 65536, v(V_LX[0])), valu("v_add_u32", v(V_LX[2]), 131072, v(V_LX[0])),
          salu("s_mul_i32", s(S_T0), MG, 36864), salu("s_add_u32", s(S_T0), s(S_T0), HB),
          valu("v_add_u32", v(V_H), s(S_T0), v(V_LIN)),
          salu("s_lshl_b32", s(S_T1), FG, 12), valu("v_add_u32", v(V_HW), s(S_T1), v(V_H)),
          salu("s_lshl_b32", s(S_T1), FG, 3), valu("v_add_u32", v(V_HS), s(S_T1), v(V_H))]
    p += [valu("v_bfe_u32", T, L, 1, 2), valu("v_xor_b32", T, T, Q), valu("v_lshlrev_b32", T, 5, T),
          valu("v_and_b32", T2, 1, L), valu("v_lshl_add_u32", T, T2, 4, T),
          valu("v_lshrrev_b32", T2, 3, L), salu("s_lshl_b32", s(S_T0), s(S_W), 3),
          valu("v_add_u32", T2, s(S_T0), T2),
          salu("s_mul_i32", s(S_T0), s(S_C), 576), salu("s_lshl_b32", s(S_T1), ODD, 6),
          salu("s_add_u32", s(S_T1), s(S_T0), s(S_T1)),
          valu("v_mul_u32_u24", T3, 9216, T2), valu("v_add3_u32", v(V_DD), T3, T, s(S_T1)),
          valu("v_mul_u32_u24", T3, 1152, T2), valu("v_add_u32", v(V_DWL), T3, T),
          valu("v_lshlrev_b32", T3, 3, L), salu("s_lshl_b32", s(S_T1), MG, 11), valu("v_add_u32", v(V_LX8), s(S_T1), T3)]
    p += [valu("v_bfe_u32", T, L, 1, 1), valu("v_and_b32", T2, 1, Q), valu("v_xor_b32", T, T, T2),
          valu("v_lshlrev_b32", T, 5, T), valu("v_and_b32", T2, 1, L), valu("v_lshl_add_u32", T, T2, 4, T),
          valu("v_lshrrev_b32", T2, 2, L), salu("s_lshl_b32", s(S_T1), FG, 4), valu("v_add_u32", T2, s(S_T1), T2),
          valu("v_mul_u32_u24", T2, 9216, T2),
          salu("s_xor_b32", s(S_T2), ODD, 1), salu("s_lshl_b32", s(S_T2), s(S_T2), 9),
          salu("s_add_u32", s(S_T2), s(S_T2), s(S_T0)), valu("v_add3_u32", v(V_DS), T2, T, s(S_T2))]
    p += [salu("s_lshl_b32", s(S_T1), s(S_R), 1), salu("s_add_u32", s(S_T1), s(S_T1), MG), salu("s_lshl_b32", s(S_T1), s(S_T1), 2),
          salu("s_add_u32", s(S_T1), s(S_T1), FG),
          salu("s_mul_i32", s(S_T1), s(S_T1), 18432), valu("v_add_u32", v(V_DX), s(S_T1), v(V_LIN))]
    srd(p, S_WG, s(G_WG), s(G_WG + 1), D * F * 2)
    srd(p, S_WU, s(G_WU), s(G_WU + 1), D * F * 2)
    srd(p, S_WD, s(G_WD), s(G_WD + 1), D * F * 2)
    p += [scmp("s_cmp_eq_u32", MG, 0), salu("s_cselect_b32", s(S_WS), s(G_WG), s(G_WU)),
          salu("s_cselect_b32", s(S_WS + 1), s(S_WG + 1), s(S_WU + 1)),
          salu("s_mov_b32", s(S_WS + 2), D * F * 2), salu("s_mov_b32", s(S_WS + 3), "0x20000")]
    srd_off(p, S_XF, s(G_LB), s(G_LB + 1), L_XB, ACT)
    p += [salu("s_lshr_b32", s(S_T0), s(S_C), 1), salu("s_mul_i32", s(S_T0), s(S_T0), ACT), salu("s_lshl_b32", s(S_T1), s(S_R), 1),
          salu("s_add_u32", s(S_T1), s(S_T1), MG), salu("s_mul_i32", s(S_T1), s(S_T1), 4 * MT),
          salu("s_add_u32", s(S_T0), s(S_T0), s(S_T1)), salu("s_add_u32", s(S_T0), s(S_T0), L_P)]
    srd_off(p, S_P, s(G_LB), s(G_LB + 1), s(S_T0), 4 * MT)
    p += [salu("s_lshl_b32", s(S_T0), s(S_R), 4), salu("s_add_u32", s(S_T0), s(S_T0), s(S_C)), salu("s_lshl_b32", s(S_T0), s(S_T0), 1),
          salu("s_add_u32", s(S_T0), s(S_T0), MG), salu("s_mul_i32", s(S_T0), s(S_T0), 36864), salu("s_add_u32", s(S_T0), s(S_T0), L_HX)]
    srd_off(p, S_HX, s(G_LB), s(G_LB + 1), s(S_T0), 36864)


NSLOT = 40
HSLOT = 22
HB = HSLOT * 4096
LDS_BYTES = NSLOT * 4096
G = 12
A2_SLOTS = 10
S_HP, S_PA = 68, 72
S_SS, S_MU, S_DM, S_XA, S_ST = 48, 52, 56, 48, 52
S_C4, S_PO, S_WO, S_RO, S_HO = 60, 63, 64, 65, 61
V_HG, V_HG8, V_DW, V_DW8, V_DP, V_DP8, V_DT, V_DT8, V_DH, V_HD, V_HD8, V_PH = range(80, 92)
V_WARM = 92
V_Y = 160
V_SEL = 180
V_PL, V_PL8, V_PD, V_PT = 188, 189, 191, 3
V_X8, V_XO4, V_RO, V_RO8, V_ROW4, V_SSA, V_RED, V_REDR, V_OB, V_STA, V_X2, V_X6 = range(8, 20)
V_XB = 56
V_RS2, V_MU, V_X0, V_X1 = 66, 67, 68, 69
RED = LDS_BYTES - 512
YQ = {0: (0, 0), 5: (0, 1), 1: (1, 0), 6: (1, 1), 2: (2, 0), 7: (2, 1), 3: (3, 0), 8: (3, 1), 4: (4, 0)}


class B1:
    def __init__(self, nb=4, nb0=2, nb2=3, lau=9, pro=3, npre=(12, 6), lags=(5, 4, 4, 4), hl=(5, 3, 4),
                 wqd=(24, 27, 30, 33, 36, 39, 99, 99), verbose=False, warm=True, nc=4, exp=0, early=10, lau2=9, sp=0, lp=0, hdir=0, warm_at=({2: 26, 3: 40, 4: 50}, (60, 68, 76))):
        self.__dict__.update(locals())
        self.stf = self.ldf = self.hf = "sc1"
        self.plan()

    def plan(self):
        W, ring, X, Hh = [], [], {}, {}

        def pair(kind, tr, b0s, accs, firsts):
            n0 = len(W)
            for u in tr:
                u["first"], u["done"] = n0 - 1, n0 + 1
            ring.extend(tr)
            for k in range(2):
                W.append(dict(kind=kind, src=tr, k=k, b0=b0s[k], acc=accs[k], zero=firsts[k]))
        for j in range(4):
            for tau in range(6):
                n0 = len(W)
                if j == 0:
                    for i in range(3):
                        for ab in range(2):
                            u = dict(kind="X", ab=ab, s=3 * tau + i, first=n0 - 3 + i, done=n0 - 1 + i)
                            if tau == 0: u["first"], u["done"] = -1, 0
                            X[ab, 3 * tau + i] = u; ring.append(u)
                for m in range(2):
                    b = V_ACC[j & 1] + 32 * m
                    pair("D", [dict(kind="D", j=j, s=3 * tau + i, m=m) for i in range(3)], [3 * tau] * 2, [b, b + 16], [tau == 0] * 2)
        hfirst = {0: 104, 1: 105, 2: 106, 3: 107, 4: 109, 5: 110}
        for tau in range(6):
            for kp, n in hfirst.items():
                if n - 1 in (len(W), len(W) + 1) and n < 108 and not self.hdir:
                    for ab in range(2):
                        Hh[ab, kp] = dict(kind="H", ab=ab, kp=kp, first=n, done=n + 2); ring.append(Hh[ab, kp])
            pair("S", [dict(kind="S", s=3 * tau + i) for i in range(3)], [3 * tau] * 2, [V_ACC[0], V_ACC[0] + 16], [tau == 0] * 2)
        P2 = self.P2 = len(W)
        for kp in (4, 5) if not self.hdir else ():
            for ab in range(2):
                Hh[ab, kp] = dict(kind="H", ab=ab, kp=kp, first=hfirst[kp], done=hfirst[kp] + 2); ring.append(Hh[ab, kp])
        e1 = (self.early - 10) // 2
        self.OACC = [192, 224, 128, 192] if e1 == 5 else [192, 224, 192, 224]
        self.TACC = 224 if e1 == 5 else 192
        order = [(0, t) for t in ((0, 1, 3, 4, 2) if self.hdir < 2 else (0, 1, 2, 3, 4))] + [(1, t) for t in range(e1)] + [(0, 5)] + [(1, t) for t in range(e1, 6)] + \
                [(d, t) for d in (2, 3) for t in range(6)]
        self.oend = {}
        for dl, tau in order:
            b = self.OACC[dl]
            pair("O", [dict(kind="O", dl=dl, kp=3 * tau + i) for i in range(3)], [3 * tau] * 2, [b, b + 16], [tau == 0] * 2)
            self.oend[dl] = len(W)
        for tau in range(3):
            pair("T", [dict(kind="T", kp=3 * tau + i) for i in range(3)], [3 * tau, 9 + 3 * tau], [self.TACC] * 2, [tau == 0, False])
        for i, u in enumerate(ring):
            u["ri"] = i
        NU = self.NU = len(W)
        self.W, self.ring, self.X, self.Hh, self.hfirst = W, ring, X, Hh, hfirst
        self.bar_units = sorted(set(list(range(0, 24, self.nb0)) + list(range(24, 96, self.nb)) + list(range(96, P2 + 3, 3)) +
                                    list(range(P2 + 3, NU - 1, self.nb2))))
        self.isbar = set(self.bar_units)
        self.h0 = self.bar_at(82 + self.hl[0])
        self.h0_ok = self.h0 + self.hl[1] + self.hl[2]
        self.own_rd = {0: 98, 1: 99, 2: 100, 3: 101, 4: 102, 5: 103, 6: 108, 7: 111, 8: 112} if not self.hdir else \
                      {0: 98, 1: 99, 2: 100, 3: 101, 4: 102, 5: 103, 6: 104, 7: 105, 8: 111}
        reserve, release = {}, {}
        for kp in range(9):
            for mg in range(2):
                reserve[HSLOT + 9 * mg + kp] = 24 * (kp // 2 + 1) if kp < 8 else P2
                release[HSLOT + 9 * mg + kp] = self.bar_at(self.own_rd[kp] + 2)
        self.wq_at = [self.bar_at(P2 + d) for d in self.wqd]
        final = {4 * rho + i: n for rho, n in enumerate(self.wq_at) for i in range(4)}
        free = list(range(A2_SLOTS, NSLOT)) + list(range(A2_SLOTS))
        busy = []

        def take(u, n, lo=0, hi=NSLOT):
            fb = self.bar_at(max(u["done"], 0))
            if u["kind"] == "X" and u["s"] in (4, 13): hi = 16
            for sl in free:
                if not lo <= sl < hi: continue
                if sl in reserve and n < release[sl] and fb > reserve[sl]: continue
                if sl in final and fb > final[sl]: continue
                free.remove(sl); u["slot"] = sl; busy.append(u); u["iss"] = n
                return True
            return False
        wunits = [u for u in ring if u["kind"] == "D"]
        self.pre = [wunits[:self.npre[0]], wunits[self.npre[0]:sum(self.npre)]]
        for u in self.pre[0]: assert take(u, -3, 16) or take(u, -3, A2_SLOTS)
        for u in self.pre[1]: assert take(u, -2, 16) or take(u, -2)
        pend = [u for u in ring if "slot" not in u]
        issue = self.issue = {n: [] for n in range(-1, NU)}
        while pend[0]["first"] <= self.pro and take(pend[0], -1):
            issue[-1].append(pend.pop(0))
        for n in range(NU):
            if n in self.isbar:
                for u in list(busy):
                    if u["done"] <= n:
                        busy.remove(u); free.append(u["slot"])
            cnt = 0
            lau = self.lau2 if n >= P2 + 6 else (self.lau if not (24 <= n < 72) else self.lau + 6)
            kmax = 3 if (n < 24 or 92 <= n < 112) else 2
            while pend and cnt < kmax:
                u = next((x for x in pend[:8] if x["kind"] != "H" or n > self.h0_ok), None)
                if u is None or u["first"] - n > lau or not take(u, n): break
                pend.remove(u); issue[n].append(u); cnt += 1
        assert not pend

    def bar_at(self, n):
        while n not in self.isbar:
            n += 1
            if n > self.NU: return 10 ** 6
        return n

    def dmas(self, u):
        k = u["kind"]; fl = ""
        if k == "X":
            vo, sr, so, fl = V_DX, S_XF, u["ab"] * 2 * MT + 1024 * u["s"], self.ldf
        elif k == "H":
            vo, sr, so, fl = V_DH, S_HP, u["kp"] * 4096 + u["ab"] * 2048, self.hf
        elif k == "D":
            vo, sr, so = V_DD, (S_WG, S_WU)[u["m"]], 32 * u["s"] * 9216 + 128 * u["j"]
        elif k == "S":
            vo, sr, so = V_DS, S_WS, 32 * u["s"] * 9216
        elif k == "T":
            vo, sr, so = (V_DT, S_WD, 32 * u["kp"] * 1152) if u["kp"] < 8 else (V_DT8, S_WD, 0)
        else:
            kp, own = u["kp"] % 9, u["kp"] < 9
            vo = ((V_DW, V_DW8) if own else (V_DP, V_DP8))[kp == 8]
            sr, so = S_WD, (32 * kp * 1152 if kp < 8 else 0) + 128 * u["dl"]
        return [salu("s_add_u32", "m0", s(S_W1K), u["slot"] * 4096), salu("s_mov_b32", s(S_OFF), so),
                dma(v(vo), s(sr, 4), s(S_OFF), tag=("dma", u["ri"]), flags=fl)]

    def prefetch(self, part):
        return [self.dmas(u) for u in self.pre[part]]

    def hx_setup(self):
        return [salu("s_and_b32", s(S_T0), s(S_W), 1), salu("s_lshl_b32", s(S_T1), s(S_T0), 12), valu("v_add_u32", v(V_HG), s(S_T1), v(V_LIN)),
                salu("s_lshl_b32", s(S_T1), s(S_T0), 9), valu("v_lshrrev_b32", v(V_HG8), 1, v(V_LIN)),
                valu("v_add_u32", v(V_HG8), s(S_T1), v(V_HG8))]

    @staticmethod
    def warm_setup(dst=V_WARM, T="v4", T3="v6"):
        return [salu("s_mul_i32", s(S_T0), s(S_R), 36), valu("v_add_u32", T, s(S_T0), "v0"), valu("v_mul_u32_u24", T, 9216, T),
                salu("s_mul_i32", s(S_T0), s(S_C), 576), salu("s_and_b32", s(S_T0), s(S_T0), "0xffffff80"), valu("v_add_u32", T, s(S_T0), T),
                valu("v_mov_b32", T3, OOB), vcmp("v_cmp_gt_u32", "vcc", 36, "v0"), cnd(v(dst), T3, T),
                salu("s_lshl_b32", s(S_T0), s(S_C), 4), salu("s_add_u32", s(S_T0), s(S_T0), s(S_R)), salu("s_mul_i32", s(S_T0), s(S_T0), 18 * 1152),
                valu("v_lshl_add_u32", T, "v0", 7, s(S_T0)), vcmp("v_cmp_gt_u32", "vcc", 54, "v0"), cnd(v(dst + 1), T3, T),
                scmp("s_cmp_eq_u32", s(G_LAYER), 0), salu("s_cselect_b32", s(S_T0), 0, OOB),
                valu("v_or_b32", v(dst), s(S_T0), v(dst)), valu("v_or_b32", v(dst + 1), s(S_T0), v(dst + 1))]

    @staticmethod
    def warm_gu(line, sreg, src=V_WARM, sg=S_WG, su=S_WU):
        return [salu("s_and_b32", sreg, s(S_C), 1), salu("s_add_u32", sreg, sreg, line), scmp("s_cmp_eq_u32", sreg, 5),
                salu("s_cselect_b32", sreg, 0, sreg), salu("s_lshl_b32", sreg, sreg, 7),
                bload("buffer_load_dword", v(GV_T), v(src), s(sg, 4), sreg), bload("buffer_load_dword", v(GV_T), v(src), s(su, 4), sreg)]

    def p2_setup(self):
        p = []
        L, T, T2, T3 = "v1", "v4", "v5", "v6"
        ODD, F0, MG, FG = s(S_T0), s(S_T1), s(39), s(40)
        p += [salu("s_and_b32", ODD, s(S_C), 1), salu("s_lshr_b32", F0, s(S_C), 1), salu("s_mul_i32", F0, F0, 576 * 1152),
              salu("s_lshr_b32", MG, s(S_W), 1), salu("s_and_b32", FG, s(S_W), 1),
              salu("s_mul_i32", s(S_T2), ODD, 640), salu("s_add_u32", s(S_T2), s(S_T2), F0), valu("v_add_u32", T, s(S_T2), v(V_DWL))]
        for dst, ev, od in ((V_DW, 0, 320), (V_DW8, 256, 288), (V_DP, 320, 0), (V_DP8, 288, 256)):
            p += [salu("s_mul_i32", s(S_T2), ODD, (od - ev) * 1152), valu("v_add_u32", v(dst), s(S_T2), T), valu("v_add_u32", v(dst), ev * 1152, v(dst))]
        p += [valu("v_and_b32", L, 63, "v0"), valu("v_bfe_u32", T, L, 1, 1), valu("v_bfe_u32", T2, L, 4, 1), valu("v_xor_b32", T, T, T2),
              valu("v_lshlrev_b32", T, 5, T), valu("v_and_b32", T2, 1, L), valu("v_lshl_add_u32", T, T2, 4, T),
              valu("v_lshrrev_b32", T2, 2, L), salu("s_lshl_b32", s(S_T2), FG, 4), valu("v_add_u32", T2, s(S_T2), T2),
              valu("v_mul_u32_u24", T2, 1152, T2), salu("s_lshl_b32", s(S_T2), ODD, 6), salu("s_add_u32", s(S_T2), s(S_T2), F0),
              salu("s_add_u32", s(S_T2), s(S_T2), 512), valu("v_add3_u32", T, T, T2, s(S_T2)),
              salu("s_xor_b32", s(S_T2), ODD, MG), salu("s_mul_i32", s(41), s(S_T2), 320 * 1152), valu("v_add_u32", v(V_DT), s(41), T),
              salu("s_mul_i32", s(41), s(S_T2), 32 * 1152), salu("s_add_u32", s(41), s(41), 256 * 1152), valu("v_add_u32", v(V_DT8), s(41), T),
              salu("s_mul_i32", s(S_T2), MG, 36864), valu("v_add_u32", v(V_HD), s(S_T2), v(V_LIN)),
              valu("v_lshlrev_b32", T, 3, L), valu("v_add_u32", v(V_HD8), s(S_T2), T),
              salu("s_lshl_b32", s(41), FG, 10), valu("v_add_u32", v(V_DH), s(41), v(V_HD)),
              salu("s_xor_b32", s(S_T2), s(S_C), 1), salu("s_lshl_b32", s(41), s(S_R), 4), salu("s_add_u32", s(41), s(41), s(S_T2)),
              salu("s_lshl_b32", s(39), s(S_R), 11), salu("s_lshl_b32", s(S_T2), s(S_T2), 7), salu("s_add_u32", s(S_T2), s(S_T2), s(39)),
              valu("v_and_b32", v(V_PH), 4, v(GV_POLL)), valu("v_add_u32", v(V_PH), s(S_T2), v(V_PH)),
              salu("s_mul_i32", s(41), s(41), 73728), salu("s_add_u32", s(41), s(41), L_HX)]
        srd_off(p, S_HP, s(G_LB), s(G_LB + 1), s(41), 73728)
        return p

    def frag_base(self, T, T3):
        return [salu("s_lshl_b32", s(S_T0), s(S_R), 4), salu("s_add_u32", s(S_T0), s(S_T0), s(S_C)),
                salu("s_lshr_b32", s(S_T1), s(S_T0), 1), salu("s_mul_i32", s(S_T1), s(S_T1), MT), salu("s_and_b32", s(S_T2), s(S_T0), 1),
                salu("s_lshl_b32", s(S_T2), s(S_T2), 7), salu("s_add_u32", s(39), s(S_T1), s(S_T2)),
                salu("s_lshl_b32", s(S_T2), s(S_W), 9), salu("s_add_u32", s(39), s(39), s(S_T2)),
                valu("v_and_b32", T, 7, "v0"), valu("v_bfe_u32", T3, "v0", 3, 1),
                valu("v_lshlrev_b32", T, 4, T), valu("v_lshl_add_u32", T, T3, 8, T), valu("v_add_u32", T, s(39), T)]

    def split_base(self, dst, T):
        return [valu("v_subrev_u32", dst, s(S_T1), T), valu("v_and_b32", dst, 1023, dst), valu("v_lshrrev_b32", dst, 1, dst),
                salu("s_lshr_b32", s(S_T2), s(S_W), 1), salu("s_lshl_b32", s(S_T2), s(S_T2), 10), salu("s_add_u32", s(S_T2), s(S_T2), s(S_T1)),
                valu("v_add_u32", dst, s(S_T2), dst)]

    def red_setup(self):
        p = []
        RHO, T, T2, T3 = "v2", "v4", "v5", "v6"
        srd_off(p, S_PA, s(G_LB), s(G_LB + 1), L_P, 8 * ACT)
        p += [salu("s_and_b32", s(S_T0), s(S_C), 1), salu("s_and_b32", s(S_T1), s(S_W), 1),
              salu("s_mul_i32", s(S_T2), s(S_T0), 10), salu("s_add_u32", s(S_T2), s(S_T2), s(S_T1)), salu("s_lshl_b32", s(S_T2), s(S_T2), 10),
              valu("v_add_u32", v(V_PD), s(S_T2), v(V_LIN)),
              salu("s_lshl_b32", s(S_T0), s(S_T0), 1), salu("s_add_u32", s(S_T0), s(S_T0), s(S_T1)), salu("s_add_u32", s(S_T0), s(S_T0), 16),
              salu("s_lshl_b32", s(S_T0), s(S_T0), 9), valu("v_lshrrev_b32", T, 1, v(V_LIN)), valu("v_add_u32", v(V_PT), s(S_T0), T)]
        p += self.frag_base(T, T3) + self.split_base(v(V_PL8), T)
        p += [valu("v_bfe_u32", RHO, "v0", 4, 2), salu("s_mov_b32", s(S_T2), ACT), valu("v_mul_lo_u32", T2, RHO, s(S_T2)),
              valu("v_add_u32", v(V_PL), T, T2), valu("v_add_u32", v(V_PL8), v(V_PL8), T2),
              valu("v_and_b32", T, 1, "v0"), valu("v_lshlrev_b32", T, 4, T), valu("v_mov_b32", T2, "0x3f80"), valu("v_lshlrev_b32", T, T, T2),
              valu("v_bfe_u32", T2, "v0", 1, 3)]
        for odd in range(2):
            for d in range(4):
                p += [vcmp("v_cmp_eq_u32", "vcc", 2 * d + odd, T2), cnd(v(V_SEL + 4 * odd + d), 0, T)]
        return p

    def tail_setup(self):
        p = []
        RHO, T, T2, T3 = "v2", "v4", "v5", "v6"
        lb = (s(G_LB), s(G_LB + 1))
        srd_off(p, S_SS, *lb, L_SS, S * 64)
        srd_off(p, S_MU, *lb, L_ST, 32768)
        srd_off(p, S_DM, *lb, L_DM, S * 4)
        p += self.frag_base(T, T3) + self.split_base(v(V_X2), T)
        p += [valu("v_bfe_u32", RHO, "v0", 4, 2),
              valu("v_lshl_add_u32", v(V_X8), RHO, 2, T), valu("v_lshl_add_u32", v(V_XO4), RHO, 11, T),
              valu("v_lshrrev_b32", T2, 1, RHO), valu("v_lshl_add_u32", v(V_X2), T2, 9, v(V_X2)),
              valu("v_and_b32", T, 1, RHO), valu("v_lshl_add_u32", v(V_X2), T, 2, v(V_X2)),
              scmp("s_cmp_lt_u32", s(S_W), 2), salu("s_cselect_b64", "vcc", -1, 0),
              cnd(v(V_X6), v(V_X2), v(V_X8)), cnd(v(V_X2), v(V_X8), v(V_X2))]
        for e in range(9):
            if e % 2 == 0: p.append(salu("s_mov_b32", s(S_RO), 2048 * e))
            ad = {2: V_X2, 6: V_X6}.get(e, V_X8)
            p.append(bload("buffer_load_dword", v(V_XB + e), v(ad), s(S_XF, 4), s(S_RO), off=2048 * (e & 1), flags=self.ldf))
        p += [salu("s_lshl_b32", s(S_T1), s(S_T0), 3), valu("v_and_b32", v(V_REDR), 7, "v0"), valu("v_add_u32", v(V_RO), s(S_T1), v(V_REDR)),
              valu("v_lshlrev_b32", v(V_ROW4), 2, v(V_RO)),
              valu("v_bfe_u32", v(V_SSA), "v0", 3, 3), valu("v_lshl_add_u32", v(V_SSA), v(V_SSA), 14, v(V_ROW4)),
              salu("s_mov_b32", s(S_RO), 8192),
              bload("buffer_load_dword", v(V_X0), v(V_SSA), s(S_SS, 4), flags=self.ldf),
              bload("buffer_load_dword", v(V_X1), v(V_SSA), s(S_SS, 4), s(S_RO), flags=self.ldf),
              salu("s_lshl_b32", s(S_T1), s(S_T0), 7), valu("v_lshl_add_u32", v(V_STA), v(V_REDR), 2, s(S_T1)),
              bload("buffer_load_dword", v(V_MU), v(V_STA), s(S_MU, 4), off=32, flags="sc1"),
              bload("buffer_load_dword", v(V_RS2), v(V_ROW4), s(S_DM, 4), flags=self.ldf),
              valu("v_lshl_add_u32", v(V_STA), "v0", 2, s(S_T1)), valu("v_mov_b32", v(V_OB), OOB),
              vcmp("v_cmp_gt_u32", "vcc", 32, "v0"), cnd(v(V_STA), v(V_OB), v(V_STA)),
              valu("v_lshlrev_b32", v(V_REDR), 4, v(V_REDR)), valu("v_add_u32", v(V_REDR), RED, v(V_REDR)),
              salu("s_lshl_b32", s(S_T1), s(S_W), 2), valu("v_add_u32", v(V_RED), s(S_T1), v(V_REDR)),
              valu("v_mul_u32_u24", v(V_RO), 1152, v(V_RO)), valu("v_lshl_add_u32", v(V_RO), T3, 3, v(V_RO)),
              salu("s_lshr_b32", s(S_T1), s(S_W), 1), salu("s_lshl_b32", s(S_T1), s(S_T1), 6), salu("s_and_b32", s(S_T2), s(S_W), 1),
              salu("s_lshl_b32", s(S_T2), s(S_T2), 4), salu("s_add_u32", s(S_T1), s(S_T1), s(S_T2)), valu("v_add_u32", v(V_RO), s(S_T1), v(V_RO)),
              valu("v_lshl_add_u32", v(V_RO8), T2, 5, v(V_RO)), valu("v_lshl_add_u32", v(V_RO8), T, 2, v(V_RO8)),
              valu("v_lshl_add_u32", v(V_RO), RHO, 7, v(V_RO))]
        q = [valu("v_add_f32", v(V_MU), v(V_MU), v(V_RS2)), valu("v_add_f32", v(V_X0), v(V_X0), v(V_X1))]
        xsum(q, v(V_X0), v(V_X1))
        q += [valu("v_mov_b32", v(V_X1), f32(1e-5)), valu("v_fmac_f32", v(V_X1), f32(1.0 / D), v(V_X0), rmw=True),
              valu("v_rcp_f32", v(V_RS2), v(V_X1))]
        return p, q

    def e_store(self, dl, step):
        items = []
        for t in range(4):
            tt = V_TMP + 8 + 4 * t
            for k in range(2 if dl < 4 else 1):
                c = (self.OACC[dl] + 16 * k if dl < 4 else self.TACC) + 4 * t
                items.append(valu("v_cvt_pk_bf16_f32", v(tt + 2 * k), v(c), v(c + 1)))
                items.append(valu("v_cvt_pk_bf16_f32", v(tt + 2 * k + 1), v(c + 2), v(c + 3)))
            items.append(salu("s_mov_b32", s(S_OFF2), (18 * t + (2 * dl if dl < 4 else 0)) * 1024))
            if dl < 4:
                items.append(bstore("buffer_store_dwordx4", v(tt, 4), v(V_PD), s(S_P, 4), s(S_OFF2), flags=self.stf, tag=("st", step)))
            else:
                items.append(bstore("buffer_store_dwordx2", v(tt, 2), v(V_PT), s(S_P, 4), s(S_OFF2), flags=self.stf, tag=("st", step)))
        return items

    def e_loads(self, es, dst):
        out = []
        for n, e in enumerate(es):
            for i in range(2):
                d = dst + 8 * n + 4 * i
                out.append(salu("s_mov_b32", s(S_RO), 2048 * e + 4 * ACT * i))
                if e != 4:
                    out.append(bload("buffer_load_dwordx4", v(d, 4), v(V_PL), s(S_PA, 4), s(S_RO), flags=self.ldf))
                else:
                    out += [bload("buffer_load_dwordx2", v(d + 2 * h, 2), v(V_PL8), s(S_PA, 4), s(S_RO), off=512 * h, flags=self.ldf) for h in range(2)]
        return out

    def e_acc(self, es, dst):
        out = []
        for n, e in enumerate(es):
            qd, odd = YQ[e]
            y = v(V_Y + 4 * qd, 4)
            out += [mfma16(y, v(V_SEL + 4 * odd, 4), v(dst + 8 * n + 4 * i, 4), "0" if (i == 0 and not odd) else y) for i in range(2)]
        return out

    def body(self, p, tail, T=None, stamps=()):
        W, ring, X, Hh, NU, P2, isbar = self.W, self.ring, self.X, self.Hh, self.NU, self.P2, self.isbar

        def lds3(regs3, off):
            return v(regs3[off >> 16]), off & 65535

        def frag(n, i):
            return V_FR + 4 * (3 * (n & 1) + i)

        def reads(n):
            w = W[n]; k = w["k"]; out = []
            for i, u in enumerate(w["src"]):
                for hf in range(2):
                    if w["kind"] in "ST":
                        ad, off = lds3(V_RS, u["slot"] * 4096 + 2048 * k + 1024 * hf)
                    else:
                        ad, off = lds3(V_RD[k], u["slot"] * 4096 + 2048 * hf)
                    if self.exp == 1:
                        if hf == 1:
                            ad, off = lds3(V_LX, u["slot"] * 4096 + 1024 * k)
                            out.append(dsr("ds_read_b128", v(frag(n, i), 4), ad, off, tag=("rd", n, i, hf)))
                        continue
                    if self.exp == 2:
                        if hf == 0: continue
                    out.append(dsr("ds_read_b64_tr_b16", v(frag(n, i) + 2 * hf, 2), ad, off, tag=("rd", n, i, hf)))
            return out

        def half(reg, h):
            f, lo = reg[0], int(reg[2:].split(":")[0])
            return R(f, lo + 2 * h, 2)

        def xreads(tab, sx, dst):
            out = []
            for t in range(4):
                off = tab[t >> 1, sx]["slot"] * 4096 + 1024 * (t & 1)
                if tab is X and sx in (4, 13):
                    out += [dsr("ds_read_b64", half(xreg(dst, t), h), v(V_LX8), off + 512 * h) for h in range(2)]
                else:
                    ad, off = lds3(V_LX, off)
                    out.append(dsr("ds_read_b128", xreg(dst, t), ad, off))
            return out

        def mfmas(n):
            w = W[n]; out = []
            for t, i in ([(t, i) for t in range(4) for i in range(3)] if self.exp != 3 else [(t, i) for i in range(3) for t in range(4)]):
                if True:
                    c = v(w["acc"] + 4 * t, 4)
                    out.append(mfma16(c, v(frag(n, i), 4), xreg(w["b0"] + i, t), "0" if (w["zero"] and i == 0) else c))
            return out

        NG = NU * G
        gaps = [[] for _ in range(NG)]
        cap = [2] * NG

        def put(g, ins):
            gaps[g].append(ins); cap[g] -= 0 if ins.kind == "label" else ins.cost

        def flow(items, g, per=1, limit=None, note="flow", over=0):
            for it in items:
                while it.kind != "label" and not it.glue and (cap[g] < 1 - over or sum(1 for x in gaps[g] if x.note == note) >= per):
                    g += 1
                it.note = note
                put(g, it)
            if limit is not None:
                assert g <= limit, (g / G, limit / G, note)
            return g

        def whole(items, n):
            for it in items: put(G * n + 1, it)

        wq = [(rho, i) for rho in range(8) for i in range(4)]
        hread = {n: kp for kp, n in self.hfirst.items()}
        oread = {n: kp for kp, n in self.own_rd.items()}
        for n in range(NU):
            g = G * n
            if n in isbar:
                cap[g] -= 2; g += 1
            cap[G * n + G - 1] -= 1
            g0 = g
            if n + 1 < NU:
                g = flow(reads(n + 1), g, note="rd")
            if n < 20 and n % 4 > 0:
                sx = 3 * (n // 4 + 1) + n % 4 - 1
                g = flow(xreads(X, sx, sx), g, note="rd", per=2 if sx in (4, 13) else 1, limit=G * n + G - 1)
            if n in hread and not self.hdir:
                g = flow(xreads(Hh, hread[n], 9 + hread[n]), g, note="rd", limit=G * n + G - 1)
            if n in oread:
                kp = oread[n]
                g = flow([dsr("ds_read_b128", xreg(kp, t), v(V_H), (4 * kp + t) * 1024) for t in range(4)], g, note="rd", limit=G * n + G - 1)
            seq = [self.dmas(u) for u in self.issue[n]]
            while wq and self.wq_at[wq[0][0]] <= n and len(seq) < 3:
                seq.append(a1.wq_piece(*wq.pop(0), s(S_WO)))
            gg = g0 if (n < 24 or len(seq) > 2) else g0 + 6
            for q_, sq in enumerate(seq):
                for e, it in enumerate(sq):
                    put(min(gg + 3 * q_ + e, G * n + G - 1), it)
        bars = {}
        minfl = (1e9, 0)
        for bi, n in enumerate(self.bar_units):
            nn = self.bar_units[bi + 1] if bi + 1 < len(self.bar_units) else NU
            need = [u for u in ring if n <= u["first"] < nn]
            for u in need:
                if n > 30: minfl = min(minfl, (n - u["iss"], n))
                assert u["iss"] < n, (u, n)
            bars[n] = dict(vm=[("dma", u["ri"]) for u in need], lg=[], after=[])
        if self.verbose: print("b1: min DMA flight (units of 192 cyc):", minfl)

        def bar_for(n, slack=1):
            for k in range(n, n + slack + 1):
                if k in bars: return k
            if n >= NU - 1: return 10 ** 6
            bars[n] = dict(vm=[], lg=[], after=[]); cap[G * n] -= 2
            return n

        g = flow(self.hx_setup(), G * 12, per=2, note="su")
        if self.warm:
            g = flow(self.warm_setup(), g, per=2, note="su")
            for line, n in self.warm_at[0].items():
                flow(self.warm_gu(line, s(S_RO)), max(g, G * n), note="wa")
            for i, n in enumerate(self.warm_at[1]):
                flow([salu("s_mov_b32", s(S_RO), 54 * 128 * i), bload("buffer_load_dword", v(GV_T), v(V_WARM + 1), s(S_WD, 4), s(S_RO))], G * n, note="wa")
        g = flow(self.p2_setup(), max(g, G * 60), per=1, note="su", limit=G * 72)
        TT = V_TMP
        hready, hend = {}, {}
        for j in range(4):
            base = V_ACC[j & 1]; items = []
            for t in range(4):
                tt = TT + 4 * (t & 1)
                for k in range(2):
                    g_, u_ = base + 16 * k + 4 * t, base + 32 + 16 * k + 4 * t
                    for e in range(4):
                        items.append(valu("v_mul_f32", v(g_ + e), v(g_ + e), v(u_ + e)))
                    items.append(valu("v_cvt_pk_bf16_f32", v(tt + 2 * k), v(g_), v(g_ + 1)))
                    items.append(valu("v_cvt_pk_bf16_f32", v(tt + 2 * k + 1), v(g_ + 2), v(g_ + 3)))
                items += [dsw("ds_write_b128", v(V_HW), v(tt, 4), (8 * j + t) * 1024, tag=("hw", j, t)),
                          salu("s_mov_b32", s(S_HO), (8 * j + t) * 1024),
                          bstore("buffer_store_dwordx4", v(tt, 4), v(V_HG), s(S_HX, 4), s(S_HO), flags=self.hf, tag=("hs", j))]
            g = flow(items, G * 24 * (j + 1) + 1, per=2 if j == 3 else 1, over=1 if j == 3 else 0)
            hend[j] = g // G
            nbar = self.bar_at(g // G + 1); bars[nbar]["lg"].append(("hw", j, 3))
            hready[2 * j] = hready[2 * j + 1] = nbar
        items = []
        for t in range(4):
            tt = TT + 2 * t
            g_, u_ = V_ACC[0] + 4 * t, V_ACC[0] + 16 + 4 * t
            for e in range(4):
                items.append(valu("v_mul_f32", v(g_ + e), v(g_ + e), v(u_ + e)))
            items += [valu("v_cvt_pk_bf16_f32", v(tt), v(g_), v(g_ + 1)), valu("v_cvt_pk_bf16_f32", v(tt + 1), v(g_ + 2), v(g_ + 3)),
                      dsw("ds_write_b64", v(V_HS), v(tt, 2), (32 + t) * 1024, tag=("hw", 4, t)),
                      salu("s_mov_b32", s(S_HO), (32 + t) * 1024),
                      bstore("buffer_store_dwordx2", v(tt, 2), v(V_HG8), s(S_HX, 4), s(S_HO), flags=self.hf, tag=("hs", 4))]
        g = flow(items, G * P2 + 1, per=2, over=1)
        hend[4] = g // G
        nbar = self.bar_at(g // G + 1); bars[nbar]["lg"].append(("hw", 4, 3)); hready[8] = nbar
        for kp in range(9):
            assert hready[kp] <= self.own_rd[kp], (kp, hready[kp])
        g_rs = flow(self.red_setup() + a1.wq_setup(enable=True), G * (hend[2] + 1), per=1, note="su", limit=G * 96)
        l_ack, l_fl, l_chk = self.hl
        assert hend[2] + l_ack <= self.h0 + 1, (hend[2], self.h0)
        prev = g_rs // G + 1
        for i, j in enumerate((2, 3, 4)):
            n2 = self.h0 if j == 2 else bar_for(hend[j] + l_ack, 1 if j == 3 else 0)
            bars[n2]["vm"].append(("hs", j)); bars[n2]["after"] += sync.post(F_H + i, s(S_PO))
            n3 = flow(sync.poll_issue(F_H + i, s(S_PO), v(V_PH)), G * max(n2 + l_fl, prev) + 1, per=2, note="po") // G
            n4 = n3 + l_chk
            whole(sync.poll_check(F_H + i, s(S_PO), tail, v(V_PH)), n4)
            prev = n4 + 1
            if j == 2:
                assert n4 <= self.h0_ok, (n4, self.h0_ok)
                if self.hdir:
                    gl = 0
                    for kp in range(6):
                        ld = [salu("s_mov_b32", s(S_RO), 4096 * kp)] + \
                             [bload("buffer_load_dwordx4", xreg(9 + kp, t), v(V_HD), s(S_HP, 4), s(S_RO), off=1024 * t, flags=self.hf) for t in range(4)]
                        gl = flow(ld, max(gl, G * (104 + 2 * (kp // 3))), per=1, note="hl", over=1)
                    prev = max(prev, gl // G + 1)
                    if self.verbose: print("  direct partner loads end", gl // G - P2)
                continue
            ld = []
            for kp in ((6, 7) if j == 3 else (8,)):
                ld.append(salu("s_mov_b32", s(S_RO), 4096 * kp))
                for t in range(4):
                    if kp < 8:
                        ld.append(bload("buffer_load_dwordx4", xreg(9 + kp, t), v(V_HD), s(S_HP, 4), s(S_RO), off=1024 * t, flags=self.hf))
                    else:
                        ld += [bload("buffer_load_dwordx2", half(xreg(17, t), h), v(V_HD8), s(S_HP, 4), s(S_RO), off=1024 * t + 512 * h, flags=self.hf) for h in range(2)]
            n5 = flow(ld, G * max(n4, P2) + 2, per=2, note="hl") // G
            prev = max(prev, n5)
            if self.verbose: print("  hidden", j, "stores end", hend[j] - P2, "post", n2 - P2, "poll", n3 - P2, "check", n4 - P2, "loads end", n5 - P2, "needed at", self.early)

        l_ack, l_fl, l_chk, l_ld = self.lags
        END = NU - 1
        if self.early == 20:
            steps = [((0, 1), (0, 5, 1, 6), 224), ((2,), (2, 7), 128), ((3,), (3, 8), 144), ((4,), (4,), 192)]
        else:
            steps = [((0,), (0, 5), 128), ((1,), (1, 6), 144), ((2,), (2, 7), 128), ((3,), (3, 8), 144), ((4,), (4,), 224)]
        LS = len(steps) - 1
        t_pre, t_acc, t_es, g = [], [], [], 0
        inloop = True
        acc_end = {}
        for st, (dls, es, dst) in enumerate(steps[:LS]):
            for dl in dls:
                g = max(g, G * self.oend[dl] + 1)
                its = self.e_store(dl, st)
                if self.sp and dl < 3:
                    g = flow(its[:6] + [x for x in its[6:] if x.kind == "valu"], g, per=2, note="st")
                    gc = g
                    for t in range(1, 4):
                        g = flow(its[6 * t + 4:6 * t + 6], g + self.sp, per=2, note="st")
                else:
                    gc = g = flow(its, g, per=2, note="st")
                if self.early < 20 and dl < 3: assert gc < G * self.oend[dl + 1], (dl, gc / G)
            n2 = bar_for(g // G + l_ack)
            if n2 >= END or not inloop:
                inloop = False; t_es.append((es, dst)); continue
            bars[n2]["vm"].append(("st", st)); bars[n2]["after"] += sync.post(F_P + st, s(S_PO))
            n3 = max(n2 + l_fl, prev)
            issue_, check_ = sync.poll_issue(F_P + st, s(S_PO)), sync.poll_check(F_P + st, s(S_PO), tail)
            if n3 >= END:
                t_pre += issue_ + check_ + self.e_loads(es, dst); t_acc += self.e_acc(es, dst); inloop = False; continue
            n3 = flow(issue_, G * n3 + 1, per=2, note="po") // G
            n4 = n3 + l_chk
            if n4 >= END - 1:
                t_pre += check_ + self.e_loads(es, dst); t_acc += self.e_acc(es, dst); inloop = False; continue
            whole(check_, n4)
            assert st < 2 or self.early == 20 or acc_end[st - 2] < n4
            its, gl = self.e_loads(es, dst), G * n4 + 2
            for q_ in range(0, len(its), 2):
                gl = flow(its[q_:q_ + 2], gl, per=2, note="pl") + (self.lp if q_ + 2 < len(its) else 0)
            n4 = gl // G
            prev = n4 + 1
            if n4 + l_ld < END:
                n5 = flow(self.e_acc(es, dst), G * (n4 + l_ld), note="ac") // G
                if self.early == 20 and st == 0: assert n5 < P2 + 48, n5 - P2
                acc_end[st] = n5
            else:
                n5 = END; t_acc += self.e_acc(es, dst)
            if self.verbose: print("  step", st, "store end", g // G - P2, "post", n2 - P2, "poll", n3 - P2, "loads end", n4 - P2, "acc", n5 - P2)
        t_es.append(steps[LS][1:])
        assert g_rs < G * self.wq_at[0]
        wq_late = sum((a1.wq_piece(rho, i, s(S_WO)) for rho, i in wq), [])
        ts1, ts2 = self.tail_setup()
        seq = self.e_store(4, LS) + t_pre + ts1 + [wait(vm=[("st", LS)]), barrier()] + sync.post(F_P + LS, s(S_PO))
        seq += sync.poll_issue(F_P + LS, s(S_PO)) + t_acc + ts2 + sync.poll_check(F_P + LS, s(S_PO), tail)
        for es, dst in t_es: seq += self.e_loads(es, dst)
        seq += wq_late
        for es, dst in t_es: seq += self.e_acc(es, dst)
        if self.verbose: print("  tail steps", t_es, "wq pieces left", len(wq))

        for u in self.issue[-1]:
            p += self.dmas(u)
        p.append(wait(vm=[("dma", u["ri"]) for u in ring if u["first"] < 0]))
        p.append(barrier())
        p += reads(0) + xreads(X, 0, 0) + xreads(X, 1, 1) + xreads(X, 2, 2)
        for n in range(NU):
            if T and n in stamps: T(p)
            p.append(wait(lgkm=[("rd", n, 2, 1)]))
            for k, m in enumerate(mfmas(n)):
                p.append(m)
                if k == 0 and n in bars:
                    p += [wait(vm=bars[n]["vm"], lgkm=bars[n]["lg"]), barrier()] + bars[n]["after"]
                p += gaps[G * n + k]
        if T: T(p)
        p += seq
        if T: T(p)
        if self.verbose:
            print("b1: gaps over capacity:", sum(1 for c in cap if c < 0), " free slots:", sum(max(c, 0) for c in cap))

    def finish(self, p, last):
        Yr = [v(V_Y + 4 * YQ[i >> 1][0] + 2 * YQ[i >> 1][1] + (i & 1)) for i in range(18)]
        M, T1, V2, V2b, Q4, DO = v(V_TMP), v(V_TMP + 1), v(V_TMP + 2), v(V_TMP + 3), V_TMP + 4, V_TMP + 8
        lb = (s(G_LB), s(G_LB + 1))
        if last:
            srd(p, S_XA, s(G_OUT), s(G_OUT + 1), ACT)
        else:
            srd_off(p, S_XA, *lb, LSTRIDE + L_XA, ACT)
            srd_off(p, S_ST, *lb, LSTRIDE + L_ST, 32768)
        for e in range(9):
            p += [valu("v_lshlrev_b32", v(V_X0), 16, v(V_XB + e)), valu("v_and_b32", v(V_X1), "0xffff0000", v(V_XB + e)),
                  valu("v_fma_f32", Yr[2 * e], Yr[2 * e], v(V_RS2), v(V_X0)), valu("v_fma_f32", Yr[2 * e + 1], Yr[2 * e + 1], v(V_RS2), v(V_X1))]

        def wgsum(x, slot):
            return [dsw("ds_write_b32", v(V_RED), x, 128 * slot, tag=("red", slot)), wait(lgkm=[("red", slot)]), barrier(),
                    dsr("ds_read_b128", v(Q4, 4), v(V_REDR), 128 * slot),
                    valu("v_add_f32", v(Q4), v(Q4), v(Q4 + 1)), valu("v_add_f32", v(Q4 + 2), v(Q4 + 2), v(Q4 + 3)),
                    valu("v_add_f32", x, v(Q4), v(Q4 + 2))]
        if last:
            for y in Yr: p.append(valu("v_add_f32", y, y, v(V_MU)))
        else:
            tree_sum(p, M, Yr, T1)
            xsum(p, M, T1)
            p += wgsum(M, 0)
            p.append(valu("v_mul_f32", M, f32(1.0 / D), M))
            for y in Yr: p.append(valu("v_sub_f32", y, y, M))
        for e in range(9):
            p.append(valu("v_cvt_pk_bf16_f32", v(DO + e), Yr[2 * e], Yr[2 * e + 1]))
        for g in range(2):
            d = DO + 4 * g
            p += [swap("v_permlane32_swap_b32", v(d), v(d + 2)), swap("v_permlane32_swap_b32", v(d + 1), v(d + 3))]
        for g in range(2):
            d = DO + 4 * g
            p += [swap("v_permlane16_swap_b32", v(d), v(d + 1)), swap("v_permlane16_swap_b32", v(d + 2), v(d + 3))]
        if last:
            for g in range(2):
                p += [bstore("buffer_store_dwordx2", v(DO + 4 * g, 2), v(V_RO), s(S_XA, 4), off=512 * g),
                      bstore("buffer_store_dwordx2", v(DO + 4 * g + 2, 2), v(V_RO), s(S_XA, 4), off=512 * g + 32)]
            p.append(bstore("buffer_store_dword", v(DO + 8), v(V_RO8), s(S_XA, 4), off=1024))
            return
        p += [salu("s_mov_b32", s(S_OFF), 8192), salu("s_mov_b32", s(S_OFF2), 16384),
              bstore("buffer_store_dwordx4", v(DO, 4), v(V_XO4), s(S_XA, 4), flags="sc1"),
              bstore("buffer_store_dwordx4", v(DO + 4, 4), v(V_XO4), s(S_XA, 4), s(S_OFF), flags="sc1"),
              bstore("buffer_store_dword", v(DO + 8), v(V_X8), s(S_XA, 4), s(S_OFF2), flags="sc1")]
        p += [valu("v_mul_f32", V2, Yr[0], Yr[0]), valu("v_mul_f32", V2b, Yr[1], Yr[1])]
        for i in range(2, 18):
            p.append(valu("v_fmac_f32", (V2, V2b)[i & 1], Yr[i], Yr[i], rmw=True))
        p.append(valu("v_add_f32", V2, V2, V2b))
        xsum(p, V2, T1)
        p += wgsum(V2, 1)
        p += [valu("v_mov_b32", T1, f32(1e-5)), valu("v_fmac_f32", T1, f32(1.0 / D), V2, rmw=True), valu("v_rsq_f32", T1, T1),
              valu("v_add_f32", M, M, v(V_MU)),
              valu("v_and_b32", V2b, 8, "v0"), vcmp("v_cmp_eq_u32", "vcc", 0, V2b), cnd(M, M, T1),
              bstore("buffer_store_dword", M, v(V_STA), s(S_ST, 4), flags="sc1")]
```

```python
from asm import *
from layout import *

S_W = G_W
S_RO = 33
S_T0, S_T1, S_T2, S_T3 = 36, 37, 38, 39
V_L, V_SEG, V_M8 = 1, 2, 3
V_FO = 4
V_FO8 = 5
V_RO = 6
V_RO8 = 7
V_ROW4 = 8
V_RED = 9
V_REDR = 10
V_OOB = 11
Y = 64
LDS_RED = 0
LDS_S8 = 1024


def common(p):
    T, T2 = "v12", "v13"
    p += [valu("v_and_b32", v(V_L), 63, "v0"),
          valu("v_lshrrev_b32", v(V_SEG), 3, v(V_L)), valu("v_and_b32", v(V_M8), 7, v(V_L)),
          salu("s_lshl_b32", s(S_T0), s(G_R), 4), salu("s_add_u32", s(S_RO), s(S_T0), s(G_C)),
          salu("s_lshl_b32", s(S_T0), s(S_RO), 3), valu("v_add_u32", T2, s(S_T0), v(V_M8)),
          valu("v_mul_u32_u24", T2, 1152, T2),
          valu("v_lshrrev_b32", T, 2, v(V_SEG)), valu("v_lshl_add_u32", T2, T, 6, T2),
          valu("v_and_b32", T, 3, v(V_SEG)), valu("v_lshl_add_u32", T2, T, 3, T2),
          salu("s_lshl_b32", s(S_T1), s(S_W), 8), valu("v_add_u32", v(V_RO), s(S_T1), T2),
          salu("s_lshr_b32", s(S_T1), s(S_W), 1), salu("s_lshl_b32", s(S_T1), s(S_T1), 5),
          salu("s_and_b32", s(S_T2), s(S_W), 1), salu("s_lshl_b32", s(S_T2), s(S_T2), 2),
          salu("s_add_u32", s(S_T1), s(S_T1), s(S_T2)), salu("s_add_u32", s(S_T1), s(S_T1), 1024),
          valu("v_add_u32", v(V_RO8), s(S_T1), T2), valu("v_mov_b32", v(V_OOB), OOB)]
    return [
          salu("s_lshr_b32", s(S_T0), s(S_RO), 1), salu("s_mul_i32", s(S_T0), s(S_T0), MT),
          salu("s_and_b32", s(S_T1), s(S_RO), 1), salu("s_lshl_b32", s(S_T1), s(S_T1), 7),
          salu("s_add_u32", s(S_T0), s(S_T0), s(S_T1)),
          valu("v_lshlrev_b32", T, 8, v(V_SEG)), valu("v_lshl_add_u32", T, v(V_M8), 4, T),
          salu("s_lshl_b32", s(S_T1), s(S_W), 12), salu("s_add_u32", s(S_T1), s(S_T1), s(S_T0)),
          valu("v_add_u32", v(V_FO), s(S_T1), T),
          salu("s_lshl_b32", s(S_T1), s(S_W), 2), salu("s_add_u32", s(S_T1), s(S_T1), s(S_T0)),
          salu("s_add_u32", s(S_T1), s(S_T1), 16384), valu("v_add_u32", v(V_FO8), s(S_T1), T),
          valu("v_lshlrev_b32", v(V_REDR), 4, v(V_M8)),
          salu("s_lshl_b32", s(S_T1), s(S_W), 2), valu("v_add_u32", v(V_RED), s(S_T1), v(V_REDR))]


def only_first(p, dst, src):
    p += [vcmp("v_cmp_gt_u32", "vcc", 8, "v0"), cnd(dst, v(V_OOB), src)]


def xsum(p, x, t):
    p += [dpp("v_add_f32", x, x, x, "row_ror:8"),
          valu("v_mov_b32", t, x), swap("v_permlane16_swap_b32", x, t), valu("v_add_f32", x, x, t),
          valu("v_mov_b32", t, x), swap("v_permlane32_swap_b32", x, t), valu("v_add_f32", x, x, t)]


def wgsum(p, x, t4, slot):
    p += [dsw("ds_write_b32", v(V_RED), x, LDS_RED + 128 * slot, tag=("red", slot)), wait(lgkm=[("red", slot)]), barrier(),
          dsr("ds_read_b128", v(t4, 4), v(V_REDR), LDS_RED + 128 * slot),
          valu("v_add_f32", v(t4), v(t4), v(t4 + 1)), valu("v_add_f32", v(t4 + 2), v(t4 + 2), v(t4 + 3)),
          valu("v_add_f32", x, v(t4), v(t4 + 2))]


def tree_sum(p, dst, srcs, tmp):
    p.append(valu("v_add_f32", dst, srcs[0], srcs[1]))
    p.append(valu("v_add_f32", tmp, srcs[2], srcs[3]))
    for i, x in enumerate(srcs[4:]):
        p.append(valu("v_add_f32", (dst, tmp)[i & 1], (dst, tmp)[i & 1], x))
    p.append(valu("v_add_f32", dst, dst, tmp))


def centre_and_store(p, S_XA, S_ST, flags=""):
    M, T, Q4 = "v14", "v15", 16
    tree_sum(p, M, [v(Y + i) for i in range(18)], T)
    xsum(p, M, T)
    wgsum(p, M, Q4, 0)
    p.append(valu("v_mul_f32", M, f32(1.0 / D), M))
    for i in range(18):
        p.append(valu("v_sub_f32", v(Y + i), v(Y + i), M))
    V2, V2b = "v20", "v21"
    p += [valu("v_mul_f32", V2, v(Y), v(Y)), valu("v_mul_f32", V2b, v(Y + 1), v(Y + 1))]
    for i in range(2, 18):
        p.append(valu("v_fmac_f32", (V2, V2b)[i & 1], v(Y + i), v(Y + i), rmw=True))
    p.append(valu("v_add_f32", V2, V2, V2b))
    for i in range(9):
        p.append(valu("v_cvt_pk_bf16_f32", v(24 + i), v(Y + 2 * i), v(Y + 2 * i + 1)))
    p += [bstore("buffer_store_dwordx4", v(24, 4), v(V_FO), s(S_XA, 4), flags=flags),
          bstore("buffer_store_dwordx4", v(28, 4), v(V_FO), s(S_XA, 4), off=2048, flags=flags),
          bstore("buffer_store_dword", v(32), v(V_FO8), s(S_XA, 4), flags=flags)]
    xsum(p, V2, T)
    wgsum(p, V2, Q4, 1)
    p += [valu("v_mov_b32", T, f32(1e-5)), valu("v_fmac_f32", T, f32(1.0 / D), V2, rmw=True),
          valu("v_rsq_f32", T, T)]
    p += [valu("v_and_b32", "v22", 8, "v0"), vcmp("v_cmp_eq_u32", "vcc", 0, "v22"), cnd(M, M, T),
          salu("s_lshl_b32", s(S_T0), s(S_RO), 7), valu("v_lshl_add_u32", "v22", "v0", 2, s(S_T0)),
          vcmp("v_cmp_gt_u32", "vcc", 32, "v0"), cnd("v22", v(V_OOB), "v22"),
          bstore("buffer_store_dword", M, "v22", s(S_ST, 4), flags=flags)]


def unpack(p, dst, src):
    p += [valu("v_lshlrev_b32", v(dst), 16, src), valu("v_and_b32", v(dst + 1), "0xffff0000", src)]


def prep(p, later, early, first=()):
    import sync
    SX, SQ, SO, SXA, SRS, SWQ, SWO = 4, 8, 12, 16, 20, 28, 40
    srd(p, SX, "s44", "s45", ACT)
    p += [bload("buffer_load_dwordx2", v(24, 2), v(V_RO), s(SX, 4)),
          bload("buffer_load_dwordx2", v(26, 2), v(V_RO), s(SX, 4), off=32),
          bload("buffer_load_dwordx2", v(28, 2), v(V_RO), s(SX, 4), off=128),
          bload("buffer_load_dwordx2", v(30, 2), v(V_RO), s(SX, 4), off=160),
          bload("buffer_load_dword", v(32), v(V_RO8), s(SX, 4))]
    p += first
    srd(p, SQ, "s46", "s47", D * 3 * D * 2)
    GW, FI, N, SS_ = s(52), s(53), s(54), s(55)
    C, Q, T, T2, T3, E = "v34", "v35", "v36", "v37", "v38", "v39"
    vo = "v52"
    p += [salu("s_lshl_b32", FI, s(G_R), 2), salu("s_add_u32", FI, FI, s(S_W)),
          valu("v_and_b32", C, 15, v(V_L)), valu("v_lshrrev_b32", Q, 4, v(V_L)),
          salu("s_mul_hi_u32", SS_, FI, (2 ** 32 + 6) // 7), salu("s_mul_i32", s(S_T1), SS_, 7), salu("s_sub_u32", N, FI, s(S_T1)),
          salu("s_lshl_b32", s(S_T1), N, 4), valu("v_add_u32", T, s(S_T1), C),
          vcmp("v_cmp_le_u32", "vcc", 40, T), valu("v_subrev_u32", T3, 40, T), cnd(E, T, T3), cnd(T2, 0, "18"),
          vcmp("v_cmp_le_u32", "vcc", 18, E), valu("v_add_u32", T2, T2, E), valu("v_add_u32", T3, 558, T2), cnd(T2, T2, T3),
          vcmp("v_cmp_le_u32", "vcc", 76, T), valu("v_add_u32", T2, 576, T2), valu("v_subrev_u32", T3, 76, T), cnd(T2, T2, T3),
          salu("s_mul_i32", s(S_T1), s(G_C), 72), salu("s_mul_i32", s(S_T2), SS_, 64 * 3456), salu("s_add_u32", s(S_T1), s(S_T1), s(S_T2)),
          valu("v_mul_u32_u24", T3, 4 * 3456, Q), valu("v_lshl_add_u32", T3, T2, 1, T3), valu("v_add_u32", vo, s(S_T1), T3),
          valu("v_subrev_u32", T3, 36, T), vcmp("v_cmp_gt_u32", "vcc", 4, T3),
          scmp("s_cmp_lt_u32", FI, 63), salu("s_cselect_b32", s(S_T3), 0, OOB), cnd(vo, vo, v(V_OOB)), valu("v_or_b32", vo, s(S_T3), vo)]
    for it in range(2):
        for i, rows_ in enumerate((0, 2, 16, 18)):
            p += [salu("s_mov_b32", s(S_T1), (32 * it + rows_) * 3456),
                  bload("buffer_load_ushort", v(40 + 4 * it + i), vo, s(SQ, 4), s(S_T1)),
                  bload("buffer_load_ushort", v(100 + 4 * it + i), vo, s(SQ, 4), s(S_T1), off=3456)]
    srd(p, SO, "s48", "s49", D * D * 2)
    p += [salu("s_mul_i32", s(S_T1), s(G_C), 126), salu("s_mul_i32", s(S_T2), SS_, 14), salu("s_add_u32", s(S_T1), s(S_T1), s(S_T2)),
          salu("s_add_u32", s(S_T1), s(S_T1), N), salu("s_lshl_b32", s(S_T1), s(S_T1), 10),
          valu("v_lshl_add_u32", "v56", v(V_L), 4, s(S_T1)), valu("v_or_b32", "v56", s(S_T3), "v56"),
          salu("s_lshl_b32", GW, "s2", 2), salu("s_add_u32", GW, GW, s(S_W))]
    vo, vst = "v54", "v58"
    p += [salu("s_mul_hi_u32", N, GW, (2 ** 32 + 17) // 18), salu("s_mul_i32", s(S_T1), N, 18), salu("s_sub_u32", SS_, GW, s(S_T1))]

    def wo_rows(qsrc, dst):
        return [valu("v_lshrrev_b32", T, 1, qsrc), valu("v_mul_u32_u24", T, 18, T),
                valu("v_and_b32", T2, 1, qsrc), valu("v_lshl_add_u32", T, T2, 3, T),
                salu("s_mul_i32", s(S_T1), SS_, 36), valu("v_add_u32", T, s(S_T1), T),
                valu("v_mul_u32_u24", T2, 72, qsrc), salu("s_mul_i32", s(S_T1), SS_, 288),
                salu("s_sub_u32", s(S_T1), s(S_T1), 16 * 288 - 16), valu("v_add_u32", T2, s(S_T1), T2),
                scmp("s_cmp_lt_u32", SS_, 16), salu("s_cselect_b64", "vcc", -1, 0), cnd(dst, T2, T)]
    p += wo_rows(Q, T3)
    p += [salu("s_cselect_b32", s(60), 2, 18), salu("s_mul_i32", s(60), s(60), 1152), salu("s_mul_i32", s(61), s(60), 2),
          salu("s_mul_i32", s(62), s(60), 3),
          valu("v_mul_u32_u24", T3, 1152, T3), salu("s_lshl_b32", s(S_T1), N, 5),
          valu("v_lshl_add_u32", T, C, 1, s(S_T1)), valu("v_add_u32", vo, T3, T),
          salu("s_lshl_b32", s(S_T1), GW, 10), valu("v_lshl_add_u32", vst, v(V_L), 4, s(S_T1)),
          scmp("s_cmp_lt_u32", GW, 648), salu("s_cselect_b32", s(S_T1), 0, OOB),
          valu("v_or_b32", vo, s(S_T1), vo), valu("v_or_b32", vst, s(S_T1), vst)]
    for i, so in enumerate(["0", s(60), s(61), s(62)]):
        p += [bload("buffer_load_ushort", v(48 + i), vo, s(SO, 4), so),
              bload("buffer_load_ushort", v(108 + i), vo, s(SO, 4), so, off=1152)]
    q = [salu("s_sub_u32", SS_, "s2", 238), valu("v_mov_b32", Q, s(S_W))] + wo_rows(Q, T3)
    q += [valu("v_lshrrev_b32", T, 1, v(V_SEG)), valu("v_mul_u32_u24", T, 18, T), valu("v_and_b32", T2, 1, v(V_SEG)),
          valu("v_add_u32", T, T, T2), cnd(T, T, v(V_SEG)), valu("v_add_u32", T3, T3, T),
          valu("v_mul_u32_u24", T3, 1152, T3), valu("v_lshl_add_u32", "v59", v(V_M8), 4, T3)]
    q += [bload("buffer_load_dwordx4", v(128 + 4 * t, 4), "v59", s(SO, 4), off=128 * t) for t in range(9)]
    p += [scmp("s_cmp_lt_u32", "s2", 238), raw("s_cbranch_scc1 L_wb_a", "branch")] + sync.untracked(q) + [label("L_wb_a")]
    nvm0 = sum(1 for i in p if i.kind in ("vld", "vst", "dma"))
    p += early + later
    srd_off(p, SXA, s(G_WS), s(G_WS + 1), WS_L0 + L_XA, ACT)
    srd_off(p, SRS, s(G_WS), s(G_WS + 1), WS_L0 + L_ST, 32768)
    srd_off(p, SWQ, s(G_WS), s(G_WS + 1), WS_WQ, 16 * WQ_SLICE)
    srd_off(p, SWO, s(G_WS), s(G_WS + 1), WS_WO, 37 * MT)
    p.append(salu("s_mov_b32", s(56), 7 * 1024))
    for i in range(9):
        unpack(p, Y + 2 * i, v(24 + i))
    centre_and_store(p, SXA, SRS, flags="sc1")
    for i in range(12):
        p.append(valu("v_lshl_or_b32", v(40 + i), v(100 + i), 16, v(40 + i)))
    p += [bstore("buffer_store_dwordx4", v(40, 4), "v56", s(SWQ, 4), flags="sc1"),
          bstore("buffer_store_dwordx4", v(44, 4), "v56", s(SWQ, 4), s(56), flags="sc1"),
          bstore("buffer_store_dwordx4", v(48, 4), "v58", s(SWO, 4), flags="sc1")]
    nvm = sum(1 for i in p if i.kind in ("vld", "vst", "dma")) - nvm0
    q = [raw(f"s_waitcnt vmcnt({nvm})"), valu("v_mov_b32", T, 0), valu("v_mov_b32", T2, 0), salu("s_mov_b32", s(S_T1), "0x3f803f80")]
    for t in range(36):
        q.append(valu("v_dot2c_f32_bf16", (T, T2)[t & 1], s(S_T1), v(128 + t), rmw=True))
    Z = 164
    q += [valu("v_add_f32", T, T, T2),
          dpp("v_add_f32", T, T, T, "quad_perm:[1,0,3,2]"), dpp("v_add_f32", T, T, T, "quad_perm:[2,3,0,1]"),
          dpp("v_add_f32", T, T, T, "row_half_mirror"),
          valu("v_mul_f32", T, f32(1.0 / D), T),
          valu("v_cvt_pk_bf16_f32", T2, T, T), valu("v_and_b32", T2, "0xffff0000", T2),
          valu("v_sub_f32", T, T, T2), valu("v_cvt_pk_bf16_f32", T, T, T), valu("v_and_b32", T, "0xffff", T),
          valu("v_lshrrev_b32", T2, 16, T2)]
    for d in range(4):
        q += [valu("v_readlane_b32", s(64), T2, 16 * d), valu("v_readlane_b32", s(65), T2, 16 * d + 8),
              valu("v_readlane_b32", s(66), T, 16 * d), valu("v_readlane_b32", s(67), T, 16 * d + 8), raw("s_nop 3"),
              salu("s_lshl_b32", s(65), s(65), 16), salu("s_or_b32", s(64), s(64), s(65)),
              salu("s_lshl_b32", s(67), s(67), 16), salu("s_or_b32", s(66), s(66), s(67)),
              valu("v_mov_b32", v(Z + d), 0), raw(f"v_writelane_b32 v{Z + d}, s64, 0"), raw(f"v_writelane_b32 v{Z + d}, s66, 1")]
    q += [salu("s_add_u32", s(S_T1), SS_, 36 * 18), salu("s_lshl_b32", s(S_T1), s(S_T1), 10),
          salu("s_lshl_b32", s(S_T2), s(S_W), 8), salu("s_add_u32", s(S_T1), s(S_T1), s(S_T2)),
          valu("v_lshl_add_u32", T3, v(V_L), 4, s(S_T1)),
          vcmp("v_cmp_gt_u32", "vcc", 16, v(V_L)), cnd(T3, v(V_OOB), T3),
          bstore("buffer_store_dwordx4", v(Z, 4), T3, s(SWO, 4), flags="sc1")]
    p += [scmp("s_cmp_lt_u32", "s2", 238), raw("s_cbranch_scc1 L_wb_b", "branch")] + sync.untracked(q) + [label("L_wb_b")]
```

```python
from asm import *
from layout import *

_n = [0]
SPIN_MAX = 1 << 16


def uid(t):
    _n[0] += 1
    return f"L_{t}_{_n[0]}"


def untracked(q):
    return [i if i.kind == "label" else raw(i.text, "branch" if i.kind == "branch" else "raw") for i in finalize(q)]


def setup(p):
    p += [salu("s_lshl_b32", "s36", s(G_R), 11), salu("s_lshl_b32", "s37", s(G_C), 7), salu("s_add_u32", "s37", "s37", "s36"),
          valu("v_mov_b32", v(GV_T), OOB), valu("v_lshl_add_u32", v(GV_POST), "v0", 2, "s37"),
          vcmp("v_cmp_gt_u32", "vcc", 32, "v0"), cnd(v(GV_POST), v(GV_T), v(GV_POST)),
          valu("v_bfe_u32", v(GV_POLL), "v0", 1, 4), valu("v_lshlrev_b32", v(GV_POLL), 7, v(GV_POLL)),
          valu("v_and_b32", v(GV_T), 1, "v0"), valu("v_lshl_add_u32", v(GV_POLL), v(GV_T), 2, v(GV_POLL)),
          valu("v_add_u32", v(GV_POLL), "s36", v(GV_POLL))]


def flag_srd(p):
    srd_off(p, G_FL, s(G_LB), s(G_LB + 1), L_FL, LSTRIDE + FL_BYTES)


def post(phase, soff_reg, nxt=False):
    st = bstore("buffer_store_dword", v(GV_TAG), v(GV_POST), s(G_FL, 4), soff_reg, flags="sc1")
    return [salu("s_mov_b32", soff_reg, FL_PH * phase + (LSTRIDE if nxt else 0)), st]


def poll_issue(phase, soff_reg, addr=None, dst=None):
    ld = bload("buffer_load_dword", dst or v(GV_T), addr or v(GV_POLL), s(G_FL, 4), soff_reg, flags="sc1")
    ld.glue = True
    return [salu("s_mov_b32", soff_reg, FL_PH * phase), ld]


def spin(tail, cmp_text, load_text, pre=()):
    sp, back = uid("sp"), uid("bk")
    tail += [label(sp), raw(f"s_mov_b32 {s(G_SPIN)}, 0")] + [raw(t) for t in pre] + [label(sp + "_l"), raw(load_text),
             raw(f"s_add_u32 {s(G_SPIN)}, {s(G_SPIN)}, 1"), raw(f"s_cmp_gt_u32 {s(G_SPIN)}, {SPIN_MAX}"), raw(f"s_cbranch_scc1 {back}"),
             raw("s_waitcnt vmcnt(0)"), raw(cmp_text), raw(f"s_cbranch_vccnz {sp}_l"), raw(f"s_branch {back}")]
    return [raw(f"s_cbranch_vccnz {sp}", "branch"), label(back)]


def poll_check(phase, soff_reg, tail, addr=None, dst=None):
    dst, ad = dst or v(GV_T), addr or v(GV_POLL)
    c = vcmp("v_cmp_ne_u32", "vcc", v(GV_TAG), dst)
    return [c] + spin(tail, c.text, f"buffer_load_dword {dst}, {ad}, {s(G_FL, 4)}, {soff_reg} offen sc1",
                      [f"s_mov_b32 {soff_reg}, {FL_PH * phase}"])


def poll(phase, soff_reg, tail, addr=None):
    return poll_issue(phase, soff_reg, addr) + poll_check(phase, soff_reg, tail, addr)


def tag_publish(p, SD, va):
    skip = uid("tg")
    q = [Ins("s_memrealtime s[36:37]", "smem", wr="s[36:37]"), wait(lgkm_all=True),
         salu("s_or_b32", "s36", "s36", 1), salu("s_or_b32", "s37", "s37", "0x80000000"),
         valu("v_mov_b32", "v12", "s36"), valu("v_mov_b32", "v13", "s37"),
         vcmp("v_cmp_eq_u32", "vcc", 0, va), cnd("v12", "v13", "v12"),
         valu("v_lshlrev_b32", "v13", 2, "v0"),
         bstore("buffer_store_dword", "v12", "v13", s(SD, 4), flags="sc1")]
    p += [scmp("s_cmp_lg_u32", "s2", 0), raw(f"s_cbranch_scc1 {skip}", "branch")] + untracked(q) + [label(skip)]


def tag_fetch(p, SD, va, tail):
    c = vcmp("v_cmp_eq_u32", "vcc", 0, v(GV_TAG))
    ld = bload("buffer_load_dword", v(GV_TAG), va, s(SD, 4), flags="sc1")
    return [ld], [c] + spin(tail, c.text, ld.text)


def clear_own(p, t, z):
    p += [valu("v_lshrrev_b32", t, 3, "v0"), valu("v_and_b32", v(z), 15, t), valu("v_lshlrev_b32", v(z), 15, v(z)),
          valu("v_lshrrev_b32", t, 4, t), salu("s_mov_b32", "s36", LSTRIDE), valu("v_mul_lo_u32", t, t, "s36"), valu("v_add_u32", t, t, v(z)),
          valu("v_and_b32", v(z), 7, "v0"), valu("v_lshl_add_u32", t, v(z), 4, t),
          salu("s_lshl_b32", "s36", s(G_R), 11), salu("s_lshl_b32", "s37", s(G_C), 7), salu("s_add_u32", "s36", "s36", "s37")]
    p += [valu("v_mov_b32", v(z + i), 0) for i in range(4)]
    p.append(bstore("buffer_store_dwordx4", v(z, 4), t, s(G_FL, 4), "s36", flags="sc1"))
```

```python
import sys, os
sys.path.insert(0, os.path.dirname(os.path.abspath(__file__)))
from asm import *
from layout import *
import rows, a1, a2, b1, sync

NAME = "interleave_layers__sliding_local_dilated__glu_gated_bilinear__prompt"
out = sys.argv[1]
kw = dict(x.split("=") for x in sys.argv[2:])
I = lambda k, d: int(kw.get(k, d))
TUP = lambda k, d: tuple(int(x) for x in kw.get(k, d).split(","))
nc = I("nc", 4)
stamps = I("stamps", 0)
verbose = I("v", 0)
warm = I("warm", 1)
nstamp = [0]


def T(p):
    if not stamps: return
    k = nstamp[0]; nstamp[0] += 1
    assert k < 32
    p += [Ins(("s_memrealtime" if stamps == 2 else "s_memtime") + " s[42:43]", "smem", wr="s[42:43]"), wait(lgkm_all=True),
          raw(f"s_lshl_b32 s43, s{G_LAYER}, 5"), raw(f"s_or_b32 m0, s43, {k}"), raw("s_nop 0"),
          raw("v_writelane_b32 v95, s42, m0")]


def main_kernel():
    name = NAME + "_kernel"
    tail = []
    wa = TUP("wa", "22,40,52,60,68,76")
    w0, w1, w2 = TUP("w", "1,1,1")
    B = b1.B1(nb=I("nb", 4), nb0=I("nb0", 2), nb2=I("nb2", 3), lau=I("lau", 9), pro=I("pro", 3), npre=TUP("npre", "12,6"),
              lags=TUP("lags", "5,4,4,4"), wqd=TUP("wqd", "39,42,45,48,99,99,99,99"), verbose=verbose, warm=warm, nc=nc, exp=I("exp", 0),
              hl=TUP("hl", "4,2,3"), lau2=I("lau2", 14), sp=I("sp", 12), lp=I("lp", 6), hdir=I("hdir", 0), early=I("early", 14),
              warm_at=({l: n for l, n in ((1, 14), (2, wa[0]), (3, wa[1]), (4, wa[2])) if l >= w2}, wa[3:]))
    p = [scmp("s_cmp_ge_u32", "s2", 256), raw("s_cbranch_scc1 L_main_end", "branch"),
         sload(44, 4, K_X), sload(48, 2, K_WO), sload(G_WS, 2, K_WS), sload(G_WG, 4, K_WG), sload(G_WD, 2, K_WD), sload(76, 4, K_OUT)]
    if I("code", 1):
        p += [raw("s_getpc_b64 s[74:75]", "salu", wr=["s[74:75]"]), label("L_pc"),
              salu("s_lshr_b32", "s36", "s2", 3), salu("s_lshl_b32", "s36", "s36", 11),
              valu("v_and_b32", "v113", 15, "v0"), valu("v_lshl_add_u32", "v113", "v113", 7, "s36"),
              raw("v_min_u32 v113, L_code_end-L_pc-4, v113", "valu", rd=["v113"], wr=["v113"]),
              Ins("global_load_dword v114, v113, s[74:75]", "vld", rd=["v113", "s[74:75]"], wr=["v114"])]
    p += [valu("v_lshrrev_b32", "v1", 6, "v0"), salu("s_mov_b32", s(G_LAYER), 0), valu("v_readfirstlane_b32", s(G_W), "v1")]
    lg = nc.bit_length() - 1
    p += [salu("s_and_b32", "s36", "s2", 7), salu("s_lshr_b32", "s37", "s2", 3),
          salu("s_and_b32", s(G_C), "s36", 16 // nc - 1), salu("s_lshl_b32", s(G_C), s(G_C), lg),
          salu("s_and_b32", "s38", "s37", nc - 1), salu("s_add_u32", s(G_C), s(G_C), "s38"),
          salu("s_lshr_b32", s(G_R), "s36", 4 - lg), salu("s_lshl_b32", s(G_R), s(G_R), 5 - lg),
          salu("s_lshr_b32", "s38", "s37", lg), salu("s_add_u32", s(G_R), s(G_R), "s38"),
          valu("v_and_b32", "v112", 1, "v0"), valu("v_lshlrev_b32", "v112", 2, "v112")]
    later = rows.common(p)
    p.append(wait(lgkm_all=True))
    T(p)
    SD = 72
    early = []
    srd(early, SD, "s78", "s79", 8)
    sync.tag_publish(early, SD, "v112")
    early += [salu("s_mov_b32", s(G_OUT), "s76"), salu("s_mov_b32", s(G_OUT + 1), "s77"),
              salu("s_add_u32", s(G_LB), s(G_WS), WS_L0), salu("s_addc_u32", s(G_LB + 1), s(G_WS + 1), 0)]
    sync.flag_srd(early)
    sync.clear_own(early, "v113", 120)

    def wgu(line, sreg, dst, src, sg, su):
        return [i if i.kind != "vld" else bload("buffer_load_dword", dst, *[x.strip() for x in i.text.split(None, 1)[1].replace(" offen", "").split(",")[1:]])
                for i in B.warm_gu(line, sreg, src=src, sg=sg, su=su)]
    if warm:
        srd(early, 64, s(G_WG), s(G_WG + 1), D * F * 2); srd(early, 68, s(G_WU), s(G_WU + 1), D * F * 2)
        early += B.warm_setup(dst=116, T="v113", T3="v115")
        for line in range(w0): early += wgu(line, "s38", "v118", 116, 64, 68)
    rows.prep(p, later, early)
    t1, t2 = sync.tag_fetch(p, SD, "v112", tail)
    p += t1
    sync.setup(p)
    p += a1.wq_setup()
    p += [valu("v_bfe_u32", "v1", "v0", 1, 4), salu("s_lshl_b32", "s36", s(G_C), 7), valu("v_lshl_add_u32", "v1", "v1", 11, "s36"),
          valu("v_add_u32", "v1", "v1", "v112")]
    T(p)
    p += [wait(vm_all=True)] + t2 + [barrier()] + sync.post(F_A, "s36")
    T(p)
    p += sync.poll(F_A, "s36", tail, "v1")
    T(p)
    for rho in range(3):
        p += a1.wq_round(rho, "s38")
    pre = finalize(p, verbose=verbose)

    p = [label("L_layer")]
    late = a1.setup(p)
    allp = [valu("v_lshrrev_b32", "v27", 1, "v0"), valu("v_lshlrev_b32", "v27", 7, "v27"), valu("v_and_b32", "v28", 4, v(GV_POLL)),
            valu("v_add_u32", "v27", "v27", "v28"), valu("v_add_u32", "v28", 16384, "v27")]
    a_w = []
    if warm and w2 > w0:
        srd(late, 16, s(G_WG), s(G_WG + 1), D * F * 2); srd(late, 20, s(G_WU), s(G_WU + 1), D * F * 2)
        late += B.warm_setup(dst=252, T="v23", T3="v24")
        for line in range(w0, w1): a_w += wgu(line, "s39", "v254", 252, 16, 20)
    first = {7: allp + sync.poll_issue(F_A, "s37", "v27") + sync.poll_issue(F_A, "s37", "v28", "v26") +
                sync.poll_check(F_A, "s37", tail, "v27") + sync.poll_check(F_A, "s37", tail, "v28", "v26")}
    rest = a1.body(p, late, tail, la=I("a1la", 4), st_flags="sc1", wo_keep=I("wok", 0), T=T, HD=I("hd", 3), first=first, warm=a_w)
    p += [wait(vm_all=True), barrier()] + sync.post(F_O, "s36")
    T(p)
    p += rest
    shadow = a2.setup(p)
    b1.setup(shadow)
    p += sync.poll(F_O, "s36", tail)
    T(p)
    if warm and w2 > w1:
        for line in range(w1, w2): shadow += wgu(line, "s39", "v254", 252, b1.S_WG, b1.S_WU)
    a2.body(p, shadow, B.prefetch(0), st_flags="sc1", ld_flags="sc1", T=T)
    T(p)
    p += [wait(vm_all=True), barrier()] + sync.post(F_B, "s36")
    T(p)
    p += sum(B.prefetch(1), [])
    p += sync.poll(F_B, "s36", tail)
    T(p)
    B.body(p, tail, T=T, stamps=(0, 12, 24, 48, 72, 96, 108, 128, 144))
    p += [scmp("s_cmp_lg_u32", s(G_LAYER), 0), raw("s_cbranch_scc1 L_last", "branch")]
    body, state = finalize(p, verbose=verbose, keep=True)
    q = []
    B.finish(q, False)
    q += [wait(vm_all=True), barrier()] + sync.post(F_A, "s36", nxt=True)
    T(q)
    q += [salu("s_mov_b32", s(G_LAYER), 1), salu("s_add_u32", s(G_LB), s(G_LB), LSTRIDE), salu("s_addc_u32", s(G_LB + 1), s(G_LB + 1), 0)]
    sync.flag_srd(q)
    q.append(raw("s_branch L_layer", "branch"))
    r = []
    B.finish(r, True)
    if stamps:
        nstamp[0] -= 1
        r.append(wait(vm_all=True))
        T(r)
        r += [salu("s_add_u32", "s36", s(G_WS), WS_STAMP), salu("s_addc_u32", "s37", s(G_WS + 1), 0), salu("s_lshl_b32", "s38", "s2", 10),
              valu("v_lshl_add_u32", "v1", "v0", 2, "s38"), Ins("global_store_dword v1, v95, s[36:37]", "vst", rd=["v1", "v95", "s[36:37]"])]
    prog = pre + body + finalize(q, state=state) + [label("L_last")] + finalize(r, state=state) + [label("L_main_end"), raw("s_endpgm")] + tail + [label("L_code_end")]
    return name, kernel_header(name) + "\n" + text(prog), kernel_desc(name), b1.LDS_BYTES


name, code, desc, lds = main_kernel()
head = open(os.path.join(os.path.dirname(os.path.abspath(__file__)), "..", NAME + ".s.ref")).read().split("; Override")[0]
src = head + "; Generated by gen/build.py (hand-scheduled generator scripts in gen/).  One persistent workgroup per CU.\n"
src += f"; @launch grid=(256,1,1) block=(256,1,1) lds={lds}\n"
src += '.amdgcn_target "amdgcn-amd-amdhsa--gfx950"\n.text\n' + code + '\n.section .rodata,"a"\n.p2align 6\n' + desc + "\n"
open(out, "w").write(src)
if stamps: print("stamps per layer:", nstamp[0])
```

```python
import math
from asm import *
from layout import *

import sync
SXA, SRS, SOF = 4, 8, 12
SWQ, SWO = 44, 60
S_HP = G_C
S_W, S_R = G_W, G_R
S_MH = 35
S_W4K = 101
S_T0, S_T1, S_T2 = 36, 37, 38
S_K = 48
S_MASK = 64
S_PLO, S_PHI, S_ONE = 32, 33, 34
STG = WQ_SLICE
PITCH = 240
LDS_BYTES = STG + 144 * PITCH
V_LIN, V_LIN2, V_LH, V_LH2, V_LX = 1, 2, 3, 4, 19
V_XH, V_XO, V_DW = 5, 6, 94
V_RS = 8
V_SH, V_SH4, V_SO = 11, 12, 13
V_KV, V_Q, V_O, V_O8 = 14, 15, 16, 17
V_NEG = 18
V_PA = 25
V_FR = 176
V_HF = 32
V_ACC = 112
V_WP, V_W3 = 250, 251


def xa(i, sx):
    return a(72 * i + 4 * sx, 4)


def wq_setup(enable=None):
    p = []
    srd_off(p, SWQ, s(G_WS), s(G_WS + 1), WS_WQ, 16 * WQ_SLICE)
    if enable is not None:
        p += [scmp("s_cmp_eq_u32", s(G_LAYER), 0), salu("s_cselect_b32", s(SWQ + 2), s(SWQ + 2), 0)]
    p += [salu("s_mul_i32", s(S_T0), s(S_HP), WQ_SLICE), salu("s_lshl_b32", s(S_W4K), s(S_W), 12), salu("s_add_u32", s(S_T0), s(S_T0), s(S_W4K)),
          valu("v_and_b32", v(V_DW), 63, "v0"), valu("v_lshlrev_b32", v(V_DW), 4, v(V_DW)), valu("v_add_u32", v(V_DW), s(S_T0), v(V_DW))]
    return p


def wq_round(rho, sreg):
    out = [salu("s_add_u32", "m0", s(S_W4K), 16384 * rho), salu("s_mov_b32", sreg, 16384 * rho)]
    out += [dma(v(V_DW), s(SWQ, 4), sreg, off=1024 * i, tag=("wq", rho)) for i in range(4)]
    return out


def wq_piece(rho, i, sreg):
    r = wq_round(rho, sreg)
    return r[:2] + [r[2 + i]]


def setup(p):
    L, M, Q, T, T2 = "v20", "v21", "v22", "v23", "v24"
    p += [valu("v_and_b32", L, 63, "v0"), valu("v_and_b32", M, 15, L), valu("v_lshrrev_b32", Q, 4, L),
          valu("v_lshlrev_b32", v(V_LIN), 4, L), valu("v_add_u32", v(V_LIN2), 65536, v(V_LIN)),
          valu("v_add_u32", v(V_LX), STG + 2048, v(V_LIN)),
          salu("s_lshl_b32", s(S_T0), s(S_W), 10), valu("v_add_u32", v(V_LH), s(S_T0), v(V_LIN)),
          valu("v_add_u32", v(V_LH2), 65536, v(V_LH)),
          salu("s_lshl_b32", s(S_T0), s(S_R), 3), salu("s_max_u32", s(S_T1), s(S_T0), 1), salu("s_sub_u32", s(S_T1), s(S_T1), 1),
          salu("s_lshl_b32", s(S_T2), s(S_W), 1), salu("s_add_u32", s(S_T0), s(S_T0), s(S_T2)),
          valu("v_lshrrev_b32", T, 3, M), valu("v_lshlrev_b32", T, 7, T), valu("v_and_b32", T2, 7, M), valu("v_lshl_add_u32", T, T2, 2, T),
          salu("s_lshl_b32", s(S_T2), s(S_T1), 8), valu("v_add_u32", v(V_RS), s(S_T2), T),
          salu("s_lshl_b32", s(S_T2), s(S_T0), 8), valu("v_add_u32", v(V_RS + 1), s(S_T2), T),
          salu("s_mul_i32", s(S_T1), s(S_T1), MT), salu("s_mul_i32", s(S_MH), s(S_W), 5120), salu("s_add_u32", s(S_T1), s(S_T1), s(S_MH)),
          valu("v_add_u32", v(V_XH), s(S_T1), v(V_LIN)), salu("s_add_u32", s(S_MH), s(S_MH), STG + 2048),
          salu("s_mul_i32", s(S_T0), s(S_T0), MT), valu("v_add_u32", v(V_XO), s(S_T0), v(V_LIN)),
          valu("v_and_b32", T, "0xffffff84", v(GV_POLL)), valu("v_and_b32", T2, 2, L), valu("v_lshl_add_u32", T, T2, 2, T),
          valu("v_add_u32", T, (F_A2 - F_A) * FL_PH, T),
          scmp("s_cmp_eq_u32", s(S_R), 0), salu("s_cselect_b32", s(S_T1), 64, 32),
          vcmp("v_cmp_gt_u32", "vcc", s(S_T1), L), cnd(v(V_PA), T, v(GV_POLL))]
    for i in range(5):
        p += [salu("s_mov_b32", s(S_K + i), 4096 * i), salu("s_mov_b32", s(S_K + 5 + i), MT + 4096 * i)]
    srd_off(p, SXA, s(G_LB), s(G_LB + 1), L_XA, ACT)
    srd_off(p, SRS, s(G_LB), s(G_LB + 1), L_ST, 32768)
    late = []
    srd_off(late, SOF, s(G_LB), s(G_LB + 1), L_OF, ACT)
    late += [valu("v_mul_u32_u24", T, PITCH, M), valu("v_lshl_add_u32", T, Q, 3, T),
             valu("v_add_u32", v(V_SH4), STG + 32 * 4, T),
             salu("s_lshl_b32", s(S_T0), s(S_W), 5), salu("s_add_u32", s(S_T1), s(S_T0), STG), valu("v_add_u32", v(V_SH), s(S_T1), T),
             salu("s_mul_i32", s(S_T0), s(S_T0), PITCH), salu("s_add_u32", s(S_T0), s(S_T0), STG + 16 * PITCH),
             valu("v_add_u32", v(V_SO), s(S_T0), T)]
    HH = "v26"
    late += [valu("v_lshrrev_b32", HH, 5, L), valu("v_and_b32", T, 31, L), salu("s_lshl_b32", s(S_T0), s(S_W), 5),
             valu("v_add_u32", T, s(S_T0), T),
             valu("v_mul_u32_u24", T2, PITCH, T),
             valu("v_mul_u32_u24", v(V_KV), 80, HH), valu("v_add_u32", v(V_KV), v(V_KV), T2), valu("v_add_u32", v(V_KV), STG + 2 * PITCH, v(V_KV)),
             valu("v_mul_u32_u24", v(V_Q), 36, HH), valu("v_add_u32", v(V_Q), v(V_Q), T2), valu("v_add_u32", v(V_Q), STG + 16 * PITCH + 152, v(V_Q)),
             salu("s_lshl_b32", s(S_T1), s(S_R), 7), valu("v_add_u32", T, s(S_T1), T)]
    for w in range(1, 8):
        late.append(vcmp("v_cmp_le_u32", s(S_MASK + 2 * (w - 1), 2), 2 * w, T))
    late += [valu("v_lshrrev_b32", T2, 4, T), valu("v_mul_u32_u24", T2, MT, T2),
             valu("v_lshl_add_u32", v(V_O), M, 4, T2), valu("v_lshl_add_u32", v(V_O), HH, 9, v(V_O)),
             salu("s_lshl_b32", s(S_T1), s(S_HP), 10), valu("v_add_u32", v(V_O), s(S_T1), v(V_O)),
             valu("v_lshl_add_u32", v(V_O8), M, 2, T2), valu("v_lshl_add_u32", v(V_O8), HH, 6, v(V_O8)),
             salu("s_lshl_b32", s(S_T1), s(S_HP), 7), salu("s_add_u32", s(S_T1), s(S_T1), 16384), valu("v_add_u32", v(V_O8), s(S_T1), v(V_O8)),
             valu("v_mov_b32", v(V_NEG), f32(-1e9 * math.log2(math.e))),
             salu("s_mov_b32", s(S_PLO), "0x05040100"), salu("s_mov_b32", s(S_PHI), "0x07060302"), salu("s_mov_b32", s(S_ONE), "0x3f803f80")]
    srd_off(late, SWO, s(G_WS), s(G_WS + 1), WS_WO, 37 * MT)
    late += [salu("s_and_b32", s(S_T0), s(G_C), 3), salu("s_and_b32", s(S_T1), s(S_T0), 1), salu("s_mul_i32", s(S_T0), s(S_T0), 9),
             salu("s_add_u32", s(S_T2), s(S_T0), s(S_T1)), salu("s_xor_b32", s(S_T1), s(S_T1), 1), salu("s_lshl_b32", s(S_T1), s(S_T1), 3),
             salu("s_add_u32", s(S_T0), s(S_T0), s(S_T1)),
             salu("s_lshl_b32", s(S_T1), s(S_W), 1), salu("s_add_u32", s(S_T2), s(S_T2), s(S_T1)),
             salu("s_mul_i32", s(S_T2), s(S_T2), MT), valu("v_add_u32", v(V_WP), s(S_T2), v(V_LIN)),
             scmp("s_cmp_lt_u32", s(S_W), 2), salu("s_cselect_b32", s(S_T0), s(S_T0), 36),
             salu("s_mul_i32", s(S_T0), s(S_T0), MT), valu("v_add_u32", v(V_W3), s(S_T0), v(V_LIN))]
    return late


def wo_load(i, sx):
    k, o = sx >> 2, 1024 * (sx & 3)
    return bload("buffer_load_dwordx4", xa(i, sx), v(V_W3 if i == 2 else V_WP), s(SWO, 4), s(S_K + k + (5 if i == 1 else 0)), off=o)


def body(p, late, tail, la=4, st_flags="", ld_flags="sc1", wo_keep=0, T=None, HD=3, first=None, warm=()):
    def only_first(q):
        skip = sync.uid("l0")
        return [scmp("s_cmp_lg_u32", s(G_LAYER), 0), raw(f"s_cbranch_scc1 {skip}", "branch")] + sync.untracked(q) + [label(skip)]
    first = dict(first or {})
    for rho in range(3, 8):
        first[2 * (rho - 3)] = wq_round(rho, s(S_T0)) + first.get(2 * (rho - 3), [])
    assert la <= 4

    p += late
    p += sync.poll(F_A, s(S_T0), tail, addr=v(V_PA))
    if T: T(p)

    def xl(sx):
        k, o = sx >> 2, 1024 * (sx & 3)
        return [bload("buffer_load_dwordx4", xa(0, sx), v(V_XO), s(SXA, 4), s(S_K + k), off=o, flags=ld_flags),
                bload("buffer_load_dwordx4", xa(1, sx), v(V_XO), s(SXA, 4), s(S_K + 5 + k), off=o, flags=ld_flags, tag=("x", sx))]

    def fr(sx, n):
        return V_FR + 28 * (sx & 1) + 4 * n

    def hfr(sx, i):
        return V_HF + 12 * (sx & 1) + 4 * i

    def reads(sx):
        out = []
        for n in range(7):
            off = (7 * sx + n) * 1024
            out.append(dsr("ds_read_b128", v(fr(sx, n), 4), v((V_LIN, V_LIN2)[off >> 16]), off & 65535, tag=("fr", sx)))
        return out

    def hreads(sx):
        off, off4 = 7 * sx * 1024, (7 * sx + 4) * 1024
        return [dsr("ds_read_b128", v(hfr(sx, 0), 4), v((V_LH, V_LH2)[off >> 16]), off & 65535),
                dsr("ds_read_b128", v(hfr(sx, 1), 4), v((V_LIN, V_LIN2)[off4 >> 16]), off4 & 65535),
                dsr("ds_read_b128", v(hfr(sx, 2), 4), v(V_LX), 1024 * sx, tag=("hf", sx))]

    acc = lambda t, n: V_ACC + 28 * t + 4 * n
    HA, HB_ = V_ACC + 56, V_ACC + 60

    def hmf(sx):
        return [mfma16(v(c, 4), v(hfr(sx, i), 4), v(hfr(sx, 2), 4), "0" if sx == 0 else v(c, 4)) for i, c in enumerate((HA, HB_))]
    p += xl(0) + xl(1)
    p.append(salu("s_mov_b32", "m0", s(S_MH)))
    p += [dma(v(V_XH), s(SXA, 4), "0", off=1024 * i, flags=ld_flags, tag="xh") for i in range(4)]
    p += [salu("s_add_u32", "m0", s(S_MH), 4096), dma(v(V_XH), s(SXA, 4), s(S_K + 1), flags=ld_flags, tag="xh")]
    for sx in range(2, la):
        p += xl(sx)
    p += [wait(vm=[("x", 0)]), barrier()]
    p += reads(0)
    if T: T(p)
    rs = [bload("buffer_load_dword", v(V_RS + 2), v(V_RS + 1), s(SRS, 4), off=256, flags=ld_flags),
          bload("buffer_load_dword", v(V_RS), v(V_RS), s(SRS, 4), flags=ld_flags),
          bload("buffer_load_dword", v(V_RS + 1), v(V_RS + 1), s(SRS, 4), flags=ld_flags)]
    w3 = [wo_load(2, sx) for sx in range(18)]
    pairs = [wo_load(i, sx) for sx in range(18) for i in range(2)]
    for sx in range(18 + HD):
        fill = reads(sx + 1) if sx + 1 < 18 else []
        if 0 <= sx + 1 - HD < 18: fill += hreads(sx + 1 - HD)
        ld = []
        if sx < 18:
            ld = xl(sx + la) if sx + la < 18 else (rs + list(warm) if sx + la == 18 else [])
            if sx >= 9: ld = ld + [w3.pop(0), w3.pop(0)]
            if sx + la > 18: ld = ld + [pairs.pop(0), pairs.pop(0)]
        ms = []
        if sx < 18:
            for n in range(7):
                for t in range(2):
                    c = v(acc(t, n), 4)
                    ms.append(mfma16(c, v(fr(sx, n), 4), xa(t, sx), "0" if sx == 0 else c))
        if sx >= HD: ms += hmf(sx - HD)
        p.append(wait(lgkm=[("fr", sx), ("hf", sx - HD)], vm=[("x", sx)]))
        for k, m in enumerate(ms):
            p.append(m)
            if k == 0 and (sx == HD - 1 or (sx + 1 < 18 and (7 * sx + 13) // 16 > (7 * sx + 6) // 16)):
                p += ([wait(vm=["xh"])] if sx == HD - 1 else []) + [barrier()]
            elif k == 9 and sx in first:
                p += only_first(first[sx])
            elif fill:
                p.append(fill.pop(0))
            elif ld:
                p.append(ld.pop(0))
        p += fill + ld
    p.append(barrier())
    if T: T(p)
    n_early = len(pairs) - wo_keep
    early, rest = pairs[:n_early], pairs[n_early:]
    start = len(p)
    tiles = [(HA, V_RS, V_SH, 0), (HB_, V_RS, V_SH4, 0)] + \
            [(acc(t, n), V_RS + 1 + t, V_SO, 16 * PITCH * t + 32 * n) for n in range(7) for t in range(2)]
    tiles = tiles[2:] + tiles[:2]
    for k, (c, rs, ad, off) in enumerate(tiles):
        tt = V_FR + 2 * (k & 3)
        for e in range(4):
            p.append(valu("v_mul_f32", v(c + e), v(c + e), v(rs)))
        p += [valu("v_cvt_pk_bf16_f32", v(tt), v(c), v(c + 1)), valu("v_cvt_pk_bf16_f32", v(tt + 1), v(c + 2), v(c + 3)),
              dsw("ds_write_b64", v(ad), v(tt, 2), off)]
    p += [wait(lgkm_all=True), barrier()]
    if T: T(p)
    KV, Qr, LG, PP, O, TM = 36, 196, 208, 216, 220, 238
    for i in range(4):
        p.append(Ins(f"ds_read2_b32 {v(Qr + 2 * i, 2)}, {v(V_Q)} offset0:{2 * i} offset1:{2 * i + 1}", "dsr", rd=[v(V_Q)], wr=[v(Qr + 2 * i, 2)]))
    p.append(dsr("ds_read_b32", v(Qr + 8), v(V_Q), 32))

    def kvread(w, pc):
        off = 2 * PITCH * (7 - w) + 16 * pc
        if pc < 4:
            return dsr("ds_read_b128", v(KV + 20 * w + 4 * pc, 4), v(V_KV), off)
        return dsr("ds_read_b64", v(KV + 20 * w + 16, 2), v(V_KV), off)
    for w in range(8):
        p += [kvread(w, pc) for pc in range(3)]
    vreads = [kvread(w, pc) for w in range(8) for pc in (3, 4)]
    for half in range(2):
        for i in range(9):
            for w in range(4 * half, 4 * half + 4):
                if i == 0:
                    p.append(valu("v_dot2_f32_bf16", v(LG + w), v(Qr), v(KV + 20 * w), 0))
                else:
                    p.append(valu("v_dot2_f32_bf16", v(LG + w), v(Qr + i), v(KV + 20 * w + i), v(LG + w)))
            if half == 0 and vreads:
                p += [vreads.pop(0), vreads.pop(0)]
    assert not vreads
    cs = f32(DH ** -0.5 * math.log2(math.e))
    for w in range(8):
        p.append(valu("v_mul_f32", v(LG + w), cs, v(LG + w)))
    for w in range(1, 8):
        p.append(cnd(v(LG + w), v(V_NEG), v(LG + w), s(S_MASK + 2 * (w - 1), 2)))
    MX = v(TM + 8)
    p += [valu("v_max3_f32", MX, v(LG), v(LG + 1), v(LG + 2)), valu("v_max3_f32", v(TM + 9), v(LG + 3), v(LG + 4), v(LG + 5)),
          valu("v_max3_f32", MX, MX, v(LG + 6), v(LG + 7)), valu("v_max_f32", MX, MX, v(TM + 9))]
    for w in range(8):
        p.append(valu("v_sub_f32", v(LG + w), v(LG + w), MX))
    for w in range(8):
        p.append(valu("v_exp_f32", v(LG + w), v(LG + w)))
    for j in range(4):
        p.append(valu("v_cvt_pk_bf16_f32", v(PP + j), v(LG + 2 * j), v(LG + 2 * j + 1)))
    SUM = v(TM + 10)
    p.append(valu("v_dot2_f32_bf16", SUM, v(PP), s(S_ONE), 0))
    for j in range(1, 4):
        p.append(valu("v_dot2_f32_bf16", SUM, v(PP + j), s(S_ONE), SUM))
    k = 0
    pend = []
    for j in range(4):
        for i in range(9):
            x0, x1 = v(KV + 20 * (2 * j) + 9 + i), v(KV + 20 * (2 * j + 1) + 9 + i)
            t = TM + 2 * (k & 3); k += 1
            p += [valu("v_perm_b32", v(t), x1, x0, s(S_PLO)), valu("v_perm_b32", v(t + 1), x1, x0, s(S_PHI))]
            p += pend
            pend = [valu("v_dot2_f32_bf16", v(O + 2 * i + e), v(PP + j), v(t + e), 0 if j == 0 else v(O + 2 * i + e)) for e in range(2)]
            if j == 1 and i == 0:
                p.append(valu("v_rcp_f32", SUM, SUM))
    p += pend
    for d in range(18):
        p.append(valu("v_mul_f32", v(O + d), v(O + d), SUM))
    for i in range(9):
        p.append(valu("v_cvt_pk_bf16_f32", v(Qr + i), v(O + 2 * i), v(O + 2 * i + 1)))
    seg = p[start:]; del p[start:]
    step = max(1, int(len(seg) * 0.8) // max(1, len(early)))
    for i, ins in enumerate(seg):
        p.append(ins)
        if i % step == step - 1 and early: p.append(early.pop(0))
    p += early
    p += [bstore("buffer_store_dwordx4", v(Qr, 4), v(V_O), s(SOF, 4), flags=st_flags),
          bstore("buffer_store_dwordx4", v(Qr + 4, 4), v(V_O), s(SOF, 4), off=256, flags=st_flags),
          bstore("buffer_store_dword", v(Qr + 8), v(V_O8), s(SOF, 4), flags=st_flags)]
    if T: T(p)
    return rest
```

```python
from asm import *
from layout import *
import sync, a1
from rows import xsum, tree_sum

S_WG, S_WU, S_WD, S_XF, S_P, S_WS, S_HX = 4, 8, 12, 16, 20, 24, 28
S_W1K, S_OFF, S_OFF2, S_T0, S_T1, S_T2 = 33, 34, 35, 36, 37, 38
S_W, S_C, S_R = G_W, G_C, G_R
V_RD = [[8, 9, 10], [11, 12, 13]]
V_RS = [14, 15, 25]
V_LX = [26, 27, 28]
V_H, V_HW, V_HS = 16, 17, 18
V_DD, V_DS, V_DWL, V_LX8, V_DX = 19, 20, 21, 22, 23
V_LIN = 24
V_TMP = 32
V_FR = 56
V_XV = 96
V_ACC = [128, 192]


def xreg(sidx, t):
    if sidx < 16:
        return a(16 * sidx + 4 * t, 4)
    return v(V_XV + 16 * (sidx - 16) + 4 * t, 4)


def setup(p):
    L, I, Q, T, T2, T3 = "v1", "v2", "v3", "v4", "v5", "v6"
    p += [valu("v_and_b32", L, 63, "v0"), valu("v_and_b32", I, 15, L), valu("v_lshrrev_b32", Q, 4, L),
          valu("v_lshlrev_b32", v(V_LIN), 4, L), salu("s_lshl_b32", s(S_W1K), s(S_W), 10)]
    FG, MG, ODD = s(41), s(42), s(43)
    p += [salu("s_and_b32", FG, s(S_W), 1), salu("s_lshr_b32", MG, s(S_W), 1), salu("s_and_b32", ODD, s(S_C), 1)]
    p += [valu("v_lshrrev_b32", T, 2, I), valu("v_lshl_add_u32", T, Q, 2, T),
          valu("v_and_b32", T2, 3, I), valu("v_lshlrev_b32", T2, 3, T2),
          valu("v_lshrrev_b32", T3, 1, T), valu("v_and_b32", T3, 3, T3),
          salu("s_lshl_b32", s(S_T0), FG, 1)]
    for k in range(2):
        p += [salu("s_add_u32", s(S_T1), s(S_T0), k),
              valu("v_xor_b32", v(V_RD[k][0]), s(S_T1), T3), valu("v_lshlrev_b32", v(V_RD[k][0]), 5, v(V_RD[k][0])),
              valu("v_lshl_add_u32", v(V_RD[k][0]), T, 7, v(V_RD[k][0])), valu("v_add_u32", v(V_RD[k][0]), v(V_RD[k][0]), T2),
              valu("v_add_u32", v(V_RD[k][1]), 65536, v(V_RD[k][0])), valu("v_add_u32", v(V_RD[k][2]), 131072, v(V_RD[k][0]))]
    p += [valu("v_and_b32", T3, 1, Q), valu("v_xor_b32", T3, FG, T3), valu("v_lshlrev_b32", T3, 5, T3),
          valu("v_lshl_add_u32", v(V_RS[0]), T, 6, T3), valu("v_add_u32", v(V_RS[0]), v(V_RS[0]), T2),
          valu("v_add_u32", v(V_RS[1]), 65536, v(V_RS[0])), valu("v_add_u32", v(V_RS[2]), 131072, v(V_RS[0]))]
    p += [salu("s_lshl_b32", s(S_T0), MG, 11), valu("v_add_u32", v(V_LX[0]), s(S_T0), v(V_LIN)),
          valu("v_add_u32", v(V_LX[1]), 65536, v(V_LX[0])), valu("v_add_u32", v(V_LX[2]), 131072, v(V_LX[0])),
          salu("s_mul_i32", s(S_T0), MG, 36864), salu("s_add_u32", s(S_T0), s(S_T0), HB),
          valu("v_add_u32", v(V_H), s(S_T0), v(V_LIN)),
          salu("s_lshl_b32", s(S_T1), FG, 12), valu("v_add_u32", v(V_HW), s(S_T1), v(V_H)),
          salu("s_lshl_b32", s(S_T1), FG, 3), valu("v_add_u32", v(V_HS), s(S_T1), v(V_H))]
    p += [valu("v_bfe_u32", T, L, 1, 2), valu("v_xor_b32", T, T, Q), valu("v_lshlrev_b32", T, 5, T),
          valu("v_and_b32", T2, 1, L), valu("v_lshl_add_u32", T, T2, 4, T),
          valu("v_lshrrev_b32", T2, 3, L), salu("s_lshl_b32", s(S_T0), s(S_W), 3),
          valu("v_add_u32", T2, s(S_T0), T2),
          salu("s_mul_i32", s(S_T0), s(S_C), 576), salu("s_lshl_b32", s(S_T1), ODD, 6),
          salu("s_add_u32", s(S_T1), s(S_T0), s(S_T1)),
          valu("v_mul_u32_u24", T3, 9216, T2), valu("v_add3_u32", v(V_DD), T3, T, s(S_T1)),
          valu("v_mul_u32_u24", T3, 1152, T2), valu("v_add_u32", v(V_DWL), T3, T),
          valu("v_lshlrev_b32", T3, 3, L), salu("s_lshl_b32", s(S_T1), MG, 11), valu("v_add_u32", v(V_LX8), s(S_T1), T3)]
    p += [valu("v_bfe_u32", T, L, 1, 1), valu("v_and_b32", T2, 1, Q), valu("v_xor_b32", T, T, T2),
          valu("v_lshlrev_b32", T, 5, T), valu("v_and_b32", T2, 1, L), valu("v_lshl_add_u32", T, T2, 4, T),
          valu("v_lshrrev_b32", T2, 2, L), salu("s_lshl_b32", s(S_T1), FG, 4), valu("v_add_u32", T2, s(S_T1), T2),
          valu("v_mul_u32_u24", T2, 9216, T2),
          salu("s_xor_b32", s(S_T2), ODD, 1), salu("s_lshl_b32", s(S_T2), s(S_T2), 9),
          salu("s_add_u32", s(S_T2), s(S_T2), s(S_T0)), valu("v_add3_u32", v(V_DS), T2, T, s(S_T2))]
    p += [salu("s_lshl_b32", s(S_T1), s(S_R), 1), salu("s_add_u32", s(S_T1), s(S_T1), MG), salu("s_lshl_b32", s(S_T1), s(S_T1), 2),
          salu("s_add_u32", s(S_T1), s(S_T1), FG),
          salu("s_mul_i32", s(S_T1), s(S_T1), 18432), valu("v_add_u32", v(V_DX), s(S_T1), v(V_LIN))]
    srd(p, S_WG, s(G_WG), s(G_WG + 1), D * F * 2)
    srd(p, S_WU, s(G_WU), s(G_WU + 1), D * F * 2)
    srd(p, S_WD, s(G_WD), s(G_WD + 1), D * F * 2)
    p += [scmp("s_cmp_eq_u32", MG, 0), salu("s_cselect_b32", s(S_WS), s(G_WG), s(G_WU)),
          salu("s_cselect_b32", s(S_WS + 1), s(S_WG + 1), s(S_WU + 1)),
          salu("s_mov_b32", s(S_WS + 2), D * F * 2), salu("s_mov_b32", s(S_WS + 3), "0x20000")]
    srd_off(p, S_XF, s(G_LB), s(G_LB + 1), L_XB, ACT)
    p += [salu("s_lshr_b32", s(S_T0), s(S_C), 1), salu("s_mul_i32", s(S_T0), s(S_T0), ACT), salu("s_lshl_b32", s(S_T1), s(S_R), 1),
          salu("s_add_u32", s(S_T1), s(S_T1), MG), salu("s_mul_i32", s(S_T1), s(S_T1), 4 * MT),
          salu("s_add_u32", s(S_T0), s(S_T0), s(S_T1)), salu("s_add_u32", s(S_T0), s(S_T0), L_P)]
    srd_off(p, S_P, s(G_LB), s(G_LB + 1), s(S_T0), 4 * MT)
    p += [salu("s_lshl_b32", s(S_T0), s(S_R), 4), salu("s_add_u32", s(S_T0), s(S_T0), s(S_C)), salu("s_lshl_b32", s(S_T0), s(S_T0), 1),
          salu("s_add_u32", s(S_T0), s(S_T0), MG), salu("s_mul_i32", s(S_T0), s(S_T0), 36864), salu("s_add_u32", s(S_T0), s(S_T0), L_HX)]
    srd_off(p, S_HX, s(G_LB), s(G_LB + 1), s(S_T0), 36864)


NSLOT = 40
HSLOT = 22
HB = HSLOT * 4096
LDS_BYTES = NSLOT * 4096
G = 12
A2_SLOTS = 10
S_HP, S_PA = 68, 72
S_SS, S_MU, S_DM, S_XA, S_ST = 48, 52, 56, 48, 52
S_C4, S_PO, S_WO, S_RO, S_HO = 60, 63, 64, 65, 61
V_HG, V_HG8, V_DW, V_DW8, V_DP, V_DP8, V_DT, V_DT8, V_DH, V_HD, V_HD8, V_PH = range(80, 92)
V_PHP = V_LX8
V_WARM = 92
V_Y = 192
V_SEL = 212
V_PL, V_PL8, V_PD, V_PT = 220, 221, 222, 3
V_X8, V_XO4, V_RO, V_RO8, V_ROW4, V_SSA, V_RED, V_REDR, V_OB, V_STA, V_X2, V_X6, V_AP = range(8, 21)
V_XB = 56
V_RS2, V_MU, V_X0, V_X1 = 66, 67, 68, 69
RED = LDS_BYTES - 512
YQ = {0: (0, 0), 5: (0, 1), 1: (1, 0), 6: (1, 1), 2: (2, 0), 7: (2, 1), 3: (3, 0), 8: (3, 1), 4: (4, 0)}


class B1:
    def __init__(self, nb=4, nb0=2, nb2=3, lau=9, pro=3, npre=(12, 6), lags=(5, 4, 4, 4), hl=(5, 3, 4),
                 wqd=(24, 27, 30, 33, 36, 39, 99, 99), verbose=False, warm=True, nc=4, exp=0, early=10, lau2=9, sp=0, lp=0, wql=16, k3=(100, 112), hla=22, hp=2, of="", dg=6, warm_at=({2: 26, 3: 40, 4: 50}, (60, 68, 76))):
        self.__dict__.update(locals())
        self.stf = self.ldf = self.hf = "sc1"
        self.plan()

    def plan(self):
        W, ring, X, Hh = [], [], {}, {}

        def pair(kind, tr, bs, accs, firsts):
            n0 = len(W)
            for u in tr:
                u["first"], u["done"] = n0 - 1, n0 + 1
            ring.extend(tr)
            for k in range(2):
                W.append(dict(kind=kind, src=tr, k=k, b=bs[k], acc=accs[k], zero=firsts[k]))
        tri = lambda tau: [3 * tau, 3 * tau + 1, 3 * tau + 2]
        hset = self.hset = {9: 0, 10: 1, 11: 2, 0: 3, 1: 4, 2: 5, 12: 6, 3: 7, 4: 8, 5: 9, 8: 10, 17: 11, 13: 12, 14: 13, 6: 14, 7: 15, 15: 16, 16: 17}
        hfirst = {0: 89, 1: 90, 2: 91, 3: 97, 4: 112, 5: 113}
        self.own_rd = {0: 93, 1: 94, 2: 95, 3: 98, 4: 99, 5: 101, 8: 102, 6: 114, 7: 115}
        self.pend_ = {}

        def hunits():
            for kp, n in hfirst.items():
                if (0, kp) not in Hh and n - 1 <= len(W) + 1:
                    for ab in range(2):
                        Hh[ab, kp] = dict(kind="H", ab=ab, kp=kp, first=n, done=n + 2); ring.append(Hh[ab, kp])

        def dtri(j, tau):
            n0 = len(W)
            if j == 0:
                for i in range(3):
                    for ab in range(2):
                        u = dict(kind="X", ab=ab, s=3 * tau + i, first=n0 - 3 + i, done=n0 - 1 + i)
                        if tau == 0: u["first"], u["done"] = -1, 0
                        X[ab, 3 * tau + i] = u; ring.append(u)
            for m in range(2):
                hunits()
                b = V_ACC[j & 1] + 32 * m
                pair("D", [dict(kind="D", j=j, s=3 * tau + i, m=m) for i in range(3)], [tri(tau)] * 2, [b, b + 16], [tau == 0] * 2)
            self.pend_[j] = len(W)

        def stri(tau):
            pair("S", [dict(kind="S", s=3 * tau + i) for i in range(3)], [tri(tau)] * 2, [V_ACC[1], V_ACC[1] + 16], [tau == 0] * 2)
            self.pend_[4] = len(W)
        for j in (0, 1):
            for tau in range(6): dtri(j, tau)
        for kind, tau in "D0 D1 S0 S1 S2 D2 S3 S4 S5 D3 D4 D5".split():
            dtri(2, int(tau)) if kind == "D" else stri(int(tau))
        for tau in range(6): dtri(3, tau)
        P2 = self.P2 = len(W)
        e1 = (self.early - 10) // 2
        self.OACC = [128, 160, 128, 160]
        self.TACC = 128
        KT = [(0, 1, 2), (9, 10, 11), (3, 4, 5), (12, 8, 17), (13, 14, 6), (7, 15, 16)]
        order = [(0, t) for t in range(5)] + [(1, t) for t in range(e1)] + [(0, 5)] + [(1, t) for t in range(e1, 6)] + \
                [(d, t) for d in (2, 3) for t in range(6)]
        self.oend = {}
        for dl, tau in order:
            hunits()
            b = self.OACC[dl]
            pair("O", [dict(kind="O", dl=dl, kp=kp) for kp in KT[tau]], [[hset[kp] for kp in KT[tau]]] * 2, [b, b + 16], [tau == 0] * 2)
            self.oend[dl] = len(W)
        for tau in range(3):
            pair("T", [dict(kind="T", kp=kp) for kp in tri(tau)], [[hset[kp] for kp in tri(tau)], [hset[9 + kp] for kp in tri(tau)]],
                 [self.TACC] * 2, [tau == 0, False])
        for i, u in enumerate(ring):
            u["ri"] = i
        NU = self.NU = len(W)
        self.W, self.ring, self.X, self.Hh, self.hfirst = W, ring, X, Hh, hfirst
        self.bar_units = sorted(set(list(range(0, 24, self.nb0)) + list(range(24, 84, self.nb)) + list(range(84, P2 + 3, 3)) +
                                    list(range(P2 + 3, NU - 1, self.nb2))))
        self.isbar = set(self.bar_units)
        self.h0 = [self.bar_at(self.pend_[j] + 5 + j + self.hl[0]) for j in (1, 2)]
        self.h0_ok = [n + self.hl[1] + self.hl[2] for n in self.h0]
        reserve, release = {}, {}
        for kp in range(9):
            for mg in range(2):
                reserve[HSLOT + 9 * mg + kp] = self.pend_[kp // 2]
                release[HSLOT + 9 * mg + kp] = self.bar_at(self.own_rd[kp] + 2)
        self.wq_at = [self.bar_at(P2 + d) for d in self.wqd]
        final = {4 * rho + i: n for rho, n in enumerate(self.wq_at) for i in range(4)}
        free = list(range(A2_SLOTS, NSLOT)) + list(range(A2_SLOTS))
        busy = []

        def take(u, n, lo=0, hi=NSLOT):
            fb = self.bar_at(max(u["done"], 0))
            if u["kind"] == "X" and u["s"] in (4, 13): hi = 16
            for sl in free:
                if not lo <= sl < hi: continue
                if sl in reserve and n < release[sl] and fb > reserve[sl]: continue
                if sl in final and fb > final[sl]: continue
                free.remove(sl); u["slot"] = sl; busy.append(u); u["iss"] = n
                return True
            return False
        wunits = [u for u in ring if u["kind"] == "D"]
        self.pre = [wunits[:self.npre[0]], wunits[self.npre[0]:sum(self.npre)]]
        for u in self.pre[0]: assert take(u, -3, 16) or take(u, -3, A2_SLOTS)
        for u in self.pre[1]: assert take(u, -2, 16) or take(u, -2)
        pend = [u for u in ring if "slot" not in u and u["kind"] != "H"]
        hpend = [u for u in ring if u["kind"] == "H"]
        issue = self.issue = {n: [] for n in range(-1, NU)}
        while pend[0]["first"] <= self.pro and take(pend[0], -1):
            issue[-1].append(pend.pop(0))
        for n in range(NU):
            if n in self.isbar:
                for u in list(busy):
                    if u["done"] <= n:
                        busy.remove(u); free.append(u["slot"])
            cnt = 0
            lau = self.lau2 if n >= P2 + 6 else (self.lau if not (24 <= n < 72) else self.lau + 6)
            kmax = 3 if (n < 24 or self.k3[0] <= n < self.k3[1]) else 2
            if hpend and n > self.h0_ok[hpend[0]["kp"] > 3] and hpend[0]["first"] - n <= self.hla and \
                    (n % self.hp == 0 or hpend[0]["first"] - n <= 7) and take(hpend[0], n):
                issue[n].append(hpend.pop(0))
            while pend and cnt < kmax and len(issue[n]) < 3:
                u = pend[0]
                if u["first"] - n > lau or not take(u, n): break
                pend.remove(u); issue[n].append(u); cnt += 1
        assert not hpend
        assert not pend

    def bar_at(self, n):
        while n not in self.isbar:
            n += 1
            if n > self.NU: return 10 ** 6
        return n

    def dmas(self, u):
        k = u["kind"]; fl = ""
        if k == "X":
            vo, sr, so, fl = V_DX, S_XF, u["ab"] * 2 * MT + 1024 * u["s"], self.ldf
        elif k == "H":
            vo, sr, so, fl = V_DH, S_HP, u["kp"] * 4096 + u["ab"] * 2048, self.hf
        elif k == "D":
            vo, sr, so = V_DD, (S_WG, S_WU)[u["m"]], 32 * u["s"] * 9216 + 128 * u["j"]
        elif k == "S":
            vo, sr, so = V_DS, S_WS, 32 * u["s"] * 9216
        elif k == "T":
            vo, sr, so = (V_DT, S_WD, 32 * u["kp"] * 1152) if u["kp"] < 8 else (V_DT8, S_WD, 0)
        else:
            kp, own = u["kp"] % 9, u["kp"] < 9
            vo = ((V_DW, V_DW8) if own else (V_DP, V_DP8))[kp == 8]
            sr, so = S_WD, (32 * kp * 1152 if kp < 8 else 0) + 128 * u["dl"]
        return [salu("s_add_u32", "m0", s(S_W1K), u["slot"] * 4096), salu("s_mov_b32", s(S_OFF), so),
                dma(v(vo), s(sr, 4), s(S_OFF), tag=("dma", u["ri"]), flags=fl)]

    def prefetch(self, part):
        return [self.dmas(u) for u in self.pre[part]]

    def hx_setup(self):
        return [salu("s_and_b32", s(S_T0), s(S_W), 1), salu("s_lshl_b32", s(S_T1), s(S_T0), 12), valu("v_add_u32", v(V_HG), s(S_T1), v(V_LIN)),
                salu("s_lshl_b32", s(S_T1), s(S_T0), 9), valu("v_lshrrev_b32", v(V_HG8), 1, v(V_LIN)),
                valu("v_add_u32", v(V_HG8), s(S_T1), v(V_HG8))]

    @staticmethod
    def warm_setup(dst=V_WARM, T="v4", T3="v6"):
        return [salu("s_mul_i32", s(S_T0), s(S_R), 36), valu("v_add_u32", T, s(S_T0), "v0"), valu("v_mul_u32_u24", T, 9216, T),
                salu("s_mul_i32", s(S_T0), s(S_C), 576), salu("s_and_b32", s(S_T0), s(S_T0), "0xffffff80"), valu("v_add_u32", T, s(S_T0), T),
                valu("v_mov_b32", T3, OOB), vcmp("v_cmp_gt_u32", "vcc", 36, "v0"), cnd(v(dst), T3, T),
                salu("s_lshl_b32", s(S_T0), s(S_C), 4), salu("s_add_u32", s(S_T0), s(S_T0), s(S_R)), salu("s_mul_i32", s(S_T0), s(S_T0), 18 * 1152),
                valu("v_lshl_add_u32", T, "v0", 7, s(S_T0)), vcmp("v_cmp_gt_u32", "vcc", 54, "v0"), cnd(v(dst + 1), T3, T),
                scmp("s_cmp_eq_u32", s(G_LAYER), 0), salu("s_cselect_b32", s(S_T0), 0, OOB),
                valu("v_or_b32", v(dst), s(S_T0), v(dst)), valu("v_or_b32", v(dst + 1), s(S_T0), v(dst + 1))]

    @staticmethod
    def warm_gu(line, sreg, src=V_WARM, sg=S_WG, su=S_WU):
        return [salu("s_and_b32", sreg, s(S_C), 1), salu("s_add_u32", sreg, sreg, line), scmp("s_cmp_eq_u32", sreg, 5),
                salu("s_cselect_b32", sreg, 0, sreg), salu("s_lshl_b32", sreg, sreg, 7),
                bload("buffer_load_dword", v(GV_T), v(src), s(sg, 4), sreg), bload("buffer_load_dword", v(GV_T), v(src), s(su, 4), sreg)]

    def p2_setup(self):
        p = []
        L, T, T2, T3 = "v1", "v4", "v5", "v6"
        ODD, F0, MG, FG = s(S_T0), s(S_T1), s(39), s(40)
        p += [salu("s_and_b32", ODD, s(S_C), 1), salu("s_lshr_b32", F0, s(S_C), 1), salu("s_mul_i32", F0, F0, 576 * 1152),
              salu("s_lshr_b32", MG, s(S_W), 1), salu("s_and_b32", FG, s(S_W), 1),
              salu("s_mul_i32", s(S_T2), ODD, 640), salu("s_add_u32", s(S_T2), s(S_T2), F0), valu("v_add_u32", T, s(S_T2), v(V_DWL))]
        for dst, ev, od in ((V_DW, 0, 320), (V_DW8, 256, 288), (V_DP, 320, 0), (V_DP8, 288, 256)):
            p += [salu("s_mul_i32", s(S_T2), ODD, (od - ev) * 1152), valu("v_add_u32", v(dst), s(S_T2), T), valu("v_add_u32", v(dst), ev * 1152, v(dst))]
        p += [valu("v_and_b32", L, 63, "v0"), valu("v_bfe_u32", T, L, 1, 1), valu("v_bfe_u32", T2, L, 4, 1), valu("v_xor_b32", T, T, T2),
              valu("v_lshlrev_b32", T, 5, T), valu("v_and_b32", T2, 1, L), valu("v_lshl_add_u32", T, T2, 4, T),
              valu("v_lshrrev_b32", T2, 2, L), salu("s_lshl_b32", s(S_T2), FG, 4), valu("v_add_u32", T2, s(S_T2), T2),
              valu("v_mul_u32_u24", T2, 1152, T2), salu("s_lshl_b32", s(S_T2), ODD, 6), salu("s_add_u32", s(S_T2), s(S_T2), F0),
              salu("s_add_u32", s(S_T2), s(S_T2), 512), valu("v_add3_u32", T, T, T2, s(S_T2)),
              salu("s_xor_b32", s(S_T2), ODD, MG), salu("s_mul_i32", s(41), s(S_T2), 320 * 1152), valu("v_add_u32", v(V_DT), s(41), T),
              salu("s_mul_i32", s(41), s(S_T2), 32 * 1152), salu("s_add_u32", s(41), s(41), 256 * 1152), valu("v_add_u32", v(V_DT8), s(41), T),
              salu("s_mul_i32", s(S_T2), MG, 36864), valu("v_add_u32", v(V_HD), s(S_T2), v(V_LIN)),
              valu("v_lshlrev_b32", T, 3, L), valu("v_add_u32", v(V_HD8), s(S_T2), T),
              salu("s_lshl_b32", s(41), FG, 10), valu("v_add_u32", v(V_DH), s(41), v(V_HD)),
              salu("s_xor_b32", s(S_T2), s(S_C), 1), salu("s_lshl_b32", s(41), s(S_R), 4), salu("s_add_u32", s(41), s(41), s(S_T2)),
              valu("v_and_b32", v(V_PH), "0xffffff84", v(GV_POLL)),
              valu("v_xor_b32", T, 128, v(V_PH)), valu("v_mov_b32", T2, OOB), vcmp("v_cmp_gt_u32", "vcc", 2, "v0"), cnd(v(V_PHP), T2, T),
              salu("s_mul_i32", s(41), s(41), 73728), salu("s_add_u32", s(41), s(41), L_HX)]
        srd_off(p, S_HP, s(G_LB), s(G_LB + 1), s(41), 73728)
        return p

    def frag_base(self, T, T3):
        return [salu("s_lshl_b32", s(S_T0), s(S_R), 4), salu("s_add_u32", s(S_T0), s(S_T0), s(S_C)),
                salu("s_lshr_b32", s(S_T1), s(S_T0), 1), salu("s_mul_i32", s(S_T1), s(S_T1), MT), salu("s_and_b32", s(S_T2), s(S_T0), 1),
                salu("s_lshl_b32", s(S_T2), s(S_T2), 7), salu("s_add_u32", s(39), s(S_T1), s(S_T2)),
                salu("s_lshl_b32", s(S_T2), s(S_W), 9), salu("s_add_u32", s(39), s(39), s(S_T2)),
                valu("v_and_b32", T, 7, "v0"), valu("v_bfe_u32", T3, "v0", 3, 1),
                valu("v_lshlrev_b32", T, 4, T), valu("v_lshl_add_u32", T, T3, 8, T), valu("v_add_u32", T, s(39), T)]

    def split_base(self, dst, T):
        return [valu("v_subrev_u32", dst, s(S_T1), T), valu("v_and_b32", dst, 1023, dst), valu("v_lshrrev_b32", dst, 1, dst),
                salu("s_lshr_b32", s(S_T2), s(S_W), 1), salu("s_lshl_b32", s(S_T2), s(S_T2), 10), salu("s_add_u32", s(S_T2), s(S_T2), s(S_T1)),
                valu("v_add_u32", dst, s(S_T2), dst)]

    def red_setup(self):
        p = []
        RHO, T, T2, T3 = "v2", "v4", "v5", "v6"
        srd_off(p, S_PA, s(G_LB), s(G_LB + 1), L_P, 8 * ACT)
        p += [salu("s_and_b32", s(S_T0), s(S_C), 1), salu("s_and_b32", s(S_T1), s(S_W), 1),
              salu("s_mul_i32", s(S_T2), s(S_T0), 10), salu("s_add_u32", s(S_T2), s(S_T2), s(S_T1)), salu("s_lshl_b32", s(S_T2), s(S_T2), 10),
              valu("v_add_u32", v(V_PD), s(S_T2), v(V_LIN)),
              salu("s_lshl_b32", s(S_T0), s(S_T0), 1), salu("s_add_u32", s(S_T0), s(S_T0), s(S_T1)), salu("s_add_u32", s(S_T0), s(S_T0), 16),
              salu("s_lshl_b32", s(S_T0), s(S_T0), 9), valu("v_lshrrev_b32", T, 1, v(V_LIN)), valu("v_add_u32", v(V_PT), s(S_T0), T)]
        p += self.frag_base(T, T3) + self.split_base(v(V_PL8), T)
        p += [valu("v_bfe_u32", RHO, "v0", 4, 2), salu("s_mov_b32", s(S_T2), ACT), valu("v_mul_lo_u32", T2, RHO, s(S_T2)),
              valu("v_add_u32", v(V_PL), T, T2), valu("v_add_u32", v(V_PL8), v(V_PL8), T2),
              valu("v_and_b32", T, 1, "v0"), valu("v_lshlrev_b32", T, 4, T), valu("v_mov_b32", T2, "0x3f80"), valu("v_lshlrev_b32", T, T, T2),
              valu("v_bfe_u32", T2, "v0", 1, 3)]
        for odd in range(2):
            for d in range(4):
                p += [vcmp("v_cmp_eq_u32", "vcc", 2 * d + odd, T2), cnd(v(V_SEL + 4 * odd + d), 0, T)]
        return p

    def tail_setup(self):
        p = []
        RHO, T, T2, T3 = "v2", "v4", "v5", "v6"
        lb = (s(G_LB), s(G_LB + 1))
        srd_off(p, S_SS, *lb, L_SS, S * 64)
        srd_off(p, S_MU, *lb, L_ST, 32768)
        srd_off(p, S_DM, *lb, L_DM, S * 4)
        p += self.frag_base(T, T3) + self.split_base(v(V_X2), T)
        p += [valu("v_bfe_u32", RHO, "v0", 4, 2),
              valu("v_lshl_add_u32", v(V_X8), RHO, 2, T), valu("v_lshl_add_u32", v(V_XO4), RHO, 11, T),
              valu("v_lshrrev_b32", T2, 1, RHO), valu("v_lshl_add_u32", v(V_X2), T2, 9, v(V_X2)),
              valu("v_and_b32", T, 1, RHO), valu("v_lshl_add_u32", v(V_X2), T, 2, v(V_X2)),
              scmp("s_cmp_lt_u32", s(S_W), 2), salu("s_cselect_b64", "vcc", -1, 0),
              cnd(v(V_X6), v(V_X2), v(V_X8)), cnd(v(V_X2), v(V_X8), v(V_X2))]
        for e in range(9):
            if e % 2 == 0: p.append(salu("s_mov_b32", s(S_RO), 2048 * e))
            ad = {2: V_X2, 6: V_X6}.get(e, V_X8)
            p.append(bload("buffer_load_dword", v(V_XB + e), v(ad), s(S_XF, 4), s(S_RO), off=2048 * (e & 1), flags=self.ldf))
        p += [salu("s_lshl_b32", s(S_T1), s(S_T0), 3), valu("v_and_b32", v(V_REDR), 7, "v0"), valu("v_add_u32", v(V_RO), s(S_T1), v(V_REDR)),
              valu("v_lshlrev_b32", v(V_ROW4), 2, v(V_RO)),
              valu("v_bfe_u32", v(V_SSA), "v0", 3, 3), valu("v_lshl_add_u32", v(V_SSA), v(V_SSA), 14, v(V_ROW4)),
              salu("s_mov_b32", s(S_RO), 8192),
              bload("buffer_load_dword", v(V_X0), v(V_SSA), s(S_SS, 4), flags=self.ldf),
              bload("buffer_load_dword", v(V_X1), v(V_SSA), s(S_SS, 4), s(S_RO), flags=self.ldf),
              salu("s_lshl_b32", s(S_T1), s(S_T0), 7), valu("v_lshl_add_u32", v(V_STA), v(V_REDR), 2, s(S_T1)),
              bload("buffer_load_dword", v(V_MU), v(V_STA), s(S_MU, 4), off=32, flags="sc1"),
              bload("buffer_load_dword", v(V_RS2), v(V_ROW4), s(S_DM, 4), flags=self.ldf),
              valu("v_lshl_add_u32", v(V_STA), "v0", 2, s(S_T1)), valu("v_mov_b32", v(V_OB), OOB),
              vcmp("v_cmp_gt_u32", "vcc", 32, "v0"), cnd(v(V_STA), v(V_OB), v(V_STA)),
              valu("v_lshlrev_b32", v(V_REDR), 4, v(V_REDR)), valu("v_add_u32", v(V_REDR), RED, v(V_REDR)),
              salu("s_lshl_b32", s(S_T1), s(S_W), 2), valu("v_add_u32", v(V_RED), s(S_T1), v(V_REDR)),
              valu("v_mul_u32_u24", v(V_RO), 1152, v(V_RO)), valu("v_lshl_add_u32", v(V_RO), T3, 3, v(V_RO)),
              salu("s_lshr_b32", s(S_T1), s(S_W), 1), salu("s_lshl_b32", s(S_T1), s(S_T1), 6), salu("s_and_b32", s(S_T2), s(S_W), 1),
              salu("s_lshl_b32", s(S_T2), s(S_T2), 4), salu("s_add_u32", s(S_T1), s(S_T1), s(S_T2)), valu("v_add_u32", v(V_RO), s(S_T1), v(V_RO)),
              valu("v_lshl_add_u32", v(V_RO8), T2, 5, v(V_RO)), valu("v_lshl_add_u32", v(V_RO8), T, 2, v(V_RO8)),
              valu("v_lshl_add_u32", v(V_RO), RHO, 7, v(V_RO))]
        p += sync.halo_post_addr(v(V_AP), T)
        q = [valu("v_add_f32", v(V_MU), v(V_MU), v(V_RS2)), valu("v_add_f32", v(V_X0), v(V_X0), v(V_X1))]
        xsum(q, v(V_X0), v(V_X1))
        q += [valu("v_mov_b32", v(V_X1), f32(1e-5)), valu("v_fmac_f32", v(V_X1), f32(1.0 / D), v(V_X0), rmw=True),
              valu("v_rcp_f32", v(V_RS2), v(V_X1))]
        return p, q

    def e_store(self, dl, step):
        items = []
        for t in range(4):
            tt = V_TMP + 8 + 4 * t
            for k in range(2 if dl < 4 else 1):
                c = (self.OACC[dl] + 16 * k if dl < 4 else self.TACC) + 4 * t
                items.append(valu("v_cvt_pk_bf16_f32", v(tt + 2 * k), v(c), v(c + 1)))
                items.append(valu("v_cvt_pk_bf16_f32", v(tt + 2 * k + 1), v(c + 2), v(c + 3)))
            items.append(salu("s_mov_b32", s(S_OFF2), (18 * t + (2 * dl if dl < 4 else 0)) * 1024))
            if dl < 4:
                items.append(bstore("buffer_store_dwordx4", v(tt, 4), v(V_PD), s(S_P, 4), s(S_OFF2), flags=self.stf, tag=("st", step)))
            else:
                items.append(bstore("buffer_store_dwordx2", v(tt, 2), v(V_PT), s(S_P, 4), s(S_OFF2), flags=self.stf, tag=("st", step)))
        return items

    def e_loads(self, es, dst):
        out = []
        for n, e in enumerate(es):
            for i in range(2):
                d = dst + 8 * n + 4 * i
                out.append(salu("s_mov_b32", s(S_RO), 2048 * e + 4 * ACT * i))
                if e != 4:
                    out.append(bload("buffer_load_dwordx4", v(d, 4), v(V_PL), s(S_PA, 4), s(S_RO), flags=self.ldf))
                else:
                    out += [bload("buffer_load_dwordx2", v(d + 2 * h, 2), v(V_PL8), s(S_PA, 4), s(S_RO), off=512 * h, flags=self.ldf) for h in range(2)]
        return out

    def e_acc(self, es, dst):
        out = []
        for n, e in enumerate(es):
            qd, odd = YQ[e]
            y = v(V_Y + 4 * qd, 4)
            out += [mfma16(y, v(V_SEL + 4 * odd, 4), v(dst + 8 * n + 4 * i, 4), "0" if (i == 0 and not odd) else y) for i in range(2)]
        return out

    def body(self, p, tail, T=None, stamps=()):
        W, ring, X, Hh, NU, P2, isbar = self.W, self.ring, self.X, self.Hh, self.NU, self.P2, self.isbar

        def lds3(regs3, off):
            return v(regs3[off >> 16]), off & 65535

        def frag(n, i):
            return V_FR + 4 * (3 * (n & 1) + i)

        def reads(n):
            w = W[n]; k = w["k"]; out = []
            for i, u in enumerate(w["src"]):
                for hf in range(2):
                    if w["kind"] in "ST":
                        ad, off = lds3(V_RS, u["slot"] * 4096 + 2048 * k + 1024 * hf)
                    else:
                        ad, off = lds3(V_RD[k], u["slot"] * 4096 + 2048 * hf)
                    if self.exp == 1:
                        if hf == 1:
                            ad, off = lds3(V_LX, u["slot"] * 4096 + 1024 * k)
                            out.append(dsr("ds_read_b128", v(frag(n, i), 4), ad, off, tag=("rd", n, i, hf)))
                        continue
                    if self.exp == 2:
                        if hf == 0: continue
                    out.append(dsr("ds_read_b64_tr_b16", v(frag(n, i) + 2 * hf, 2), ad, off, tag=("rd", n, i, hf)))
            return out

        def half(reg, h):
            f, lo = reg[0], int(reg[2:].split(":")[0])
            return R(f, lo + 2 * h, 2)

        def xreads(tab, sx, dst):
            out = []
            for t in range(4):
                off = tab[t >> 1, sx]["slot"] * 4096 + 1024 * (t & 1)
                if tab is X and sx in (4, 13):
                    out += [dsr("ds_read_b64", half(xreg(dst, t), h), v(V_LX8), off + 512 * h) for h in range(2)]
                else:
                    ad, off = lds3(V_LX, off)
                    out.append(dsr("ds_read_b128", xreg(dst, t), ad, off))
            return out

        def mfmas(n):
            w = W[n]; out = []
            for t, i in ([(t, i) for t in range(4) for i in range(3)] if self.exp != 3 else [(t, i) for i in range(3) for t in range(4)]):
                if True:
                    c = v(w["acc"] + 4 * t, 4)
                    out.append(mfma16(c, v(frag(n, i), 4), xreg(w["b"][i], t), "0" if (w["zero"] and i == 0) else c))
            return out

        NG = NU * G
        gaps = [[] for _ in range(NG)]
        cap = [2] * NG

        def put(g, ins):
            gaps[g].append(ins); cap[g] -= 0 if ins.kind == "label" else ins.cost

        def flow(items, g, per=1, limit=None, note="flow", over=0):
            for it in items:
                while it.kind != "label" and not it.glue and (cap[g] < 1 - over or sum(1 for x in gaps[g] if x.note == note) >= per):
                    g += 1
                it.note = note
                put(g, it)
            if limit is not None:
                assert g <= limit, (g / G, limit / G, note)
            return g

        def whole(items, n):
            for it in items: put(G * n + 1, it)

        wq = [(rho, i) for rho in range(8) for i in range(4)]
        hread = {n: kp for kp, n in self.hfirst.items()}
        oread = {n: kp for kp, n in self.own_rd.items()}
        for n in range(NU):
            g = G * n
            if n in isbar:
                cap[g] -= 2; g += 1
            cap[G * n + G - 1] -= 1
            g0 = g
            if n + 1 < NU:
                g = flow(reads(n + 1), g, note="rd")
            if n < 20 and n % 4 > 0:
                sx = 3 * (n // 4 + 1) + n % 4 - 1
                g = flow(xreads(X, sx, sx), g, note="rd", per=2 if sx in (4, 13) else 1, limit=G * n + G - 1)
            if n in hread:
                g = flow(xreads(Hh, hread[n], self.hset[9 + hread[n]]), g, note="rd", limit=G * n + G - 1)
            if n in oread:
                kp = oread[n]
                g = flow([dsr("ds_read_b128", xreg(self.hset[kp], t), v(V_H), (4 * kp + t) * 1024) for t in range(4)], g, note="rd", limit=G * n + G - 1)
            seq = [self.dmas(u) for u in self.issue[n]]
            while wq and self.wq_at[wq[0][0]] <= n and len(seq) < 3:
                seq.append(a1.wq_piece(*wq.pop(0), s(S_WO)))
            gg = g0 if (n < 24 or len(seq) > 2) else g0 + self.dg
            for q_, sq in enumerate(seq):
                for e, it in enumerate(sq):
                    put(min(gg + 3 * q_ + e, G * n + G - 1), it)
        bars = {}
        minfl = (1e9, 0)
        for bi, n in enumerate(self.bar_units):
            nn = self.bar_units[bi + 1] if bi + 1 < len(self.bar_units) else NU
            need = [u for u in ring if n <= u["first"] < nn]
            for u in need:
                if n > 30: minfl = min(minfl, (n - u["iss"], n))
                assert u["iss"] < n, (u, n)
            bars[n] = dict(vm=[("dma", u["ri"]) for u in need], lg=[], after=[])
        if self.verbose: print("b1: min DMA flight (units of 192 cyc):", minfl)

        def bar_for(n, slack=1):
            for k in range(n, n + slack + 1):
                if k in bars: return k
            if n >= NU - 1: return 10 ** 6
            bars[n] = dict(vm=[], lg=[], after=[]); cap[G * n] -= 2
            return n

        g = flow(self.hx_setup(), G * 12, per=2, note="su")
        if self.warm:
            g = flow(self.warm_setup(), g, per=2, note="su")
            for line, n in self.warm_at[0].items():
                flow(self.warm_gu(line, s(S_RO)), max(g, G * n), note="wa")
            for i, n in enumerate(self.warm_at[1]):
                flow([salu("s_mov_b32", s(S_RO), 54 * 128 * i), bload("buffer_load_dword", v(GV_T), v(V_WARM + 1), s(S_WD, 4), s(S_RO))], G * n, note="wa")
        g = flow(self.p2_setup(), max(g, G * 36), per=1, note="su", limit=G * 48)
        TT = V_TMP
        hready, hend = {}, {}
        for j in range(4):
            base = V_ACC[j & 1]; items = []
            for t in range(4):
                tt = TT + 4 * (t & 1)
                for k in range(2):
                    g_, u_ = base + 16 * k + 4 * t, base + 32 + 16 * k + 4 * t
                    for e in range(4):
                        items.append(valu("v_mul_f32", v(g_ + e), v(g_ + e), v(u_ + e)))
                    items.append(valu("v_cvt_pk_bf16_f32", v(tt + 2 * k), v(g_), v(g_ + 1)))
                    items.append(valu("v_cvt_pk_bf16_f32", v(tt + 2 * k + 1), v(g_ + 2), v(g_ + 3)))
                items += [dsw("ds_write_b128", v(V_HW), v(tt, 4), (8 * j + t) * 1024, tag=("hw", j, t)),
                          salu("s_mov_b32", s(S_HO), (8 * j + t) * 1024),
                          bstore("buffer_store_dwordx4", v(tt, 4), v(V_HG), s(S_HX, 4), s(S_HO), flags=self.hf, tag=("hs", j))]
            g = flow(items, G * self.pend_[j] + 1, per=2 if j in (1, 3) else 1, over=1 if j == 3 else 0, limit=G * 56 if j == 1 else None)
            hend[j] = g // G
            nbar = self.bar_at(g // G + 1); bars[nbar]["lg"].append(("hw", j, 3))
            hready[2 * j] = hready[2 * j + 1] = nbar
        items = []
        for t in range(4):
            tt = TT + 2 * t
            g_, u_ = V_ACC[1] + 4 * t, V_ACC[1] + 16 + 4 * t
            for e in range(4):
                items.append(valu("v_mul_f32", v(g_ + e), v(g_ + e), v(u_ + e)))
            items += [valu("v_cvt_pk_bf16_f32", v(tt), v(g_), v(g_ + 1)), valu("v_cvt_pk_bf16_f32", v(tt + 1), v(g_ + 2), v(g_ + 3)),
                      dsw("ds_write_b64", v(V_HS), v(tt, 2), (32 + t) * 1024, tag=("hw", 4, t)),
                      salu("s_mov_b32", s(S_HO), (32 + t) * 1024),
                      bstore("buffer_store_dwordx2", v(tt, 2), v(V_HG8), s(S_HX, 4), s(S_HO), flags=self.hf, tag=("hs", 4))]
        g = flow(items, G * self.pend_[4] + 1, limit=G * 84)
        hend[4] = g // G
        nbar = self.bar_at(g // G + 1); bars[nbar]["lg"].append(("hw", 4, 3)); hready[8] = nbar
        for kp in range(9):
            assert hready[kp] <= self.own_rd[kp], (kp, hready[kp])
        l_ack, l_fl, l_chk = self.hl
        prev, windows = 0, []
        for i, j in enumerate((1, 2, 3)):
            if j < 3: assert hend[j] + l_ack <= self.h0[i] + 1, (hend[j], self.h0[i])
            n2 = self.h0[i] if j < 3 else bar_for(hend[j] + l_ack, 0)
            bars[n2]["vm"].append(("hs", j)); bars[n2]["after"] += sync.post(F_H + i, s(S_PO), addr=v(V_PHP))
            n3 = flow(sync.poll_issue(F_H + i, s(S_PO), v(V_PH)), G * max(n2 + l_fl, prev) + 1, per=2, note="po") // G
            n4 = n3 + l_chk
            whole(sync.poll_check(F_H + i, s(S_PO), tail, v(V_PH)), n4)
            windows.append((n3, n4))
            prev = n4 + 1
            if j < 3: assert n4 <= self.h0_ok[i], (n4, self.h0_ok[i])
            ld = []
            for kp in ((), (8,), (6, 7))[i]:
                ld.append(salu("s_mov_b32", s(S_RO), 4096 * kp))
                for t in range(4):
                    d = xreg(self.hset[9 + kp], t)
                    if kp < 8:
                        ld.append(bload("buffer_load_dwordx4", d, v(V_HD), s(S_HP, 4), s(S_RO), off=1024 * t, flags=self.hf))
                    else:
                        ld += [bload("buffer_load_dwordx2", half(d, h), v(V_HD8), s(S_HP, 4), s(S_RO), off=1024 * t + 512 * h, flags=self.hf) for h in range(2)]
            n5 = flow(ld, G * n4 + 2, per=2 if i == 2 else 1, note="hl") // G
            prev = max(prev, n5)
            if self.verbose: print("  hidden", j, "stores end", hend[j], "post", n2, "poll", n3, "check", n4, "loads end", n5, "(last needed at", P2 + self.early, ")")
        if self.warm:
            for n in list(self.warm_at[0].values()) + list(self.warm_at[1]):
                assert all(not (a_ - 2 <= n <= b_ + 1) for a_, b_ in windows) and n < 96, n
        g_rs = flow(self.red_setup() + a1.wq_setup(enable=True), G * (hend[3] + 1), per=1, note="su", limit=G * (self.oend[0] - 1))

        l_ack, l_fl, l_chk, l_ld = self.lags
        END = NU - 1
        steps = [((0,), (0, 5), 224), ((1,), (1, 6), 240), ((2,), (2, 7), 224), ((3,), (3, 8), 240), ((4,), (4,), 144)]
        LS = len(steps) - 1
        t_pre, t_acc, t_es, g = [], [], [], 0
        inloop = True
        acc_end = {}
        for st, (dls, es, dst) in enumerate(steps[:LS]):
            for dl in dls:
                g = max(g, G * self.oend[dl] + 1)
                its = self.e_store(dl, st)
                if self.sp and dl < 3:
                    g = flow(its[:6] + [x for x in its[6:] if x.kind == "valu"], g, per=2, note="st")
                    gc = g
                    for t in range(1, 4):
                        g = flow(its[6 * t + 4:6 * t + 6], g + self.sp, per=2, note="st")
                else:
                    gc = g = flow(its, g, per=2, note="st")
                if dl < 3: assert gc < G * self.oend[dl + 1], (dl, gc / G)
            n2 = bar_for(g // G + l_ack)
            if n2 >= END or not inloop:
                inloop = False; t_es.append((es, dst)); continue
            bars[n2]["vm"].append(("st", st)); bars[n2]["after"] += sync.post(F_P + st, s(S_PO))
            n3 = max(n2 + l_fl, prev)
            if n3 >= END - 2:
                bars[n2]["after"] = bars[n2]["after"][:-2]; bars[n2]["vm"].pop()
                inloop = False; t_es.append((es, dst)); continue
            issue_, check_ = sync.poll_issue(F_P + st, s(S_PO)), sync.poll_check(F_P + st, s(S_PO), tail)
            n3 = flow(issue_, G * n3 + 1, per=2, note="po") // G
            n4 = n3 + l_chk
            if n4 >= END - 1:
                t_pre += check_ + self.e_loads(es, dst); t_acc += self.e_acc(es, dst); inloop = False; continue
            whole(check_, n4)
            assert st < 2 or acc_end[st - 2] < n4
            its, gl = self.e_loads(es, dst), G * n4 + 2
            for q_ in range(0, len(its), 2):
                gl = flow(its[q_:q_ + 2], gl, per=2, note="pl") + (min(self.lp, (G * END - gl) // 5) if q_ + 2 < len(its) else 0)
            n4 = gl // G
            prev = n4 + 1
            if n4 + l_ld < END:
                n5 = flow(self.e_acc(es, dst), G * (n4 + l_ld), note="ac") // G
                acc_end[st] = n5
            else:
                n5 = END; t_acc += self.e_acc(es, dst)
            if self.verbose: print("  step", st, "store end", g // G - P2, "post", n2 - P2, "poll", n3 - P2, "loads end", n4 - P2, "acc", n5 - P2)
        t_es.append(steps[LS][1:])
        assert g_rs < G * self.wq_at[0]
        wq_late = sum((a1.wq_piece(rho, i, s(S_WO)) for rho, i in wq[:self.wql]), [])
        self.wq_rest = sum((a1.wq_piece(rho, i, s(S_WO)) for rho, i in wq[self.wql:]), [])
        ts1, ts2 = self.tail_setup()
        MK = [raw("; mark", "mark")] if len(stamps) < 9 else []
        seq = self.e_store(4, LS) + t_pre + ts1 + MK + [wait(vm=[("st", LS)]), barrier()] + sync.post(F_P + LS, s(S_PO)) + MK
        seq += sync.poll_issue(F_P + LS, s(S_PO)) + MK + sync.poll_check(F_P + LS, s(S_PO), tail) + MK
        pend = {i.text.split(",")[2].strip() for i in t_acc}
        for k, (es, dst) in enumerate(t_es):
            t_es[k] = (es, 144 + 16 * k)
            seq += self.e_loads(*t_es[k])
        assert len(t_es) <= 3
        seq += t_acc + ts2
        self.wq_late = wq_late
        for es, dst in t_es: seq += self.e_acc(es, dst)
        if self.verbose: print("  tail steps", t_es, "wq pieces left", len(wq))

        if self.exp >= 10:
            def drop(i):
                t = i.text
                if self.exp & 1 and i.kind == "vst" and s(S_HX, 4) in t: return True
                if self.exp & 2 and i.kind in ("vld", "dma") and s(S_HP, 4) in t: return True
                if self.exp & 4 and i.kind == "vst" and s(S_P, 4) in t: return True
                if self.exp & 8 and i.kind == "vld" and s(S_PA, 4) in t: return True
                if self.exp & 32 and i.kind == "dma" and s(S_WS, 4) in t: return True
                if self.exp & 64 and i.kind == "branch": return True
                if self.exp & 128 and t.startswith(f"s_mov_b32 s{S_OFF},"): return True
                if self.exp & 256 and t.startswith("s_add_u32 m0"): return True
                if self.exp & 512 and i.kind == "dma": return True
                return False
            for g_ in range(NG): gaps[g_] = [i for i in gaps[g_] if not drop(i)]
        for u in self.issue[-1]:
            p += self.dmas(u)
        p.append(wait(vm=[("dma", u["ri"]) for u in ring if u["first"] < 0]))
        p.append(barrier())
        p += reads(0) + xreads(X, 0, 0) + xreads(X, 1, 1) + xreads(X, 2, 2)
        for n in range(NU):
            if T and n in stamps: T(p)
            p.append(wait(lgkm=[("rd", n, 2, 1)]))
            for k, m in enumerate(mfmas(n)):
                p.append(m)
                if k == 0 and n in bars:
                    p += [wait(vm=bars[n]["vm"], lgkm=bars[n]["lg"])] + ([barrier()] if not (self.exp & 1024 and 24 < n < 96) else []) + bars[n]["after"]
                p += gaps[G * n + k]
        if T: T(p)
        for i in seq:
            if i.kind == "mark":
                if T: T(p)
            else:
                p.append(i)
        if T: T(p)
        if self.verbose:
            print("b1: gaps over capacity:", sum(1 for c in cap if c < 0), " free slots:", sum(max(c, 0) for c in cap))

    def finish(self, p, last):
        q = []
        self.finish_rows(q, last)
        w = [] if last else [self.wq_late[i:i + 3] for i in range(0, len(self.wq_late), 3)]
        step = max(1, 90 // max(1, len(w)))
        for i, ins in enumerate(q):
            p.append(ins)
            if w and i % step == step - 1 and ins.kind == "valu": p += w.pop(0)
        assert not w

    def finish_rows(self, p, last):
        Yr = [v(V_Y + 4 * YQ[i >> 1][0] + 2 * YQ[i >> 1][1] + (i & 1)) for i in range(18)]
        M, T1, V2, V2b, Q4, DO = v(V_TMP), v(V_TMP + 1), v(V_TMP + 2), v(V_TMP + 3), V_TMP + 4, V_TMP + 8
        lb = (s(G_LB), s(G_LB + 1))
        if last:
            srd(p, S_XA, s(G_OUT), s(G_OUT + 1), ACT)
        else:
            srd_off(p, S_XA, *lb, LSTRIDE + L_XA, ACT)
            srd_off(p, S_ST, *lb, LSTRIDE + L_ST, 32768)
        for e in range(9):
            p += [valu("v_lshlrev_b32", v(V_X0), 16, v(V_XB + e)), valu("v_and_b32", v(V_X1), "0xffff0000", v(V_XB + e)),
                  valu("v_fma_f32", Yr[2 * e], Yr[2 * e], v(V_RS2), v(V_X0)), valu("v_fma_f32", Yr[2 * e + 1], Yr[2 * e + 1], v(V_RS2), v(V_X1))]

        if last:
            for y in Yr: p.append(valu("v_add_f32", y, y, v(V_MU)))
        else:
            tree_sum(p, M, Yr, T1)
            p += [valu("v_mul_f32", V2, Yr[0], Yr[0]), valu("v_mul_f32", V2b, Yr[1], Yr[1])]
            for i in range(2, 18):
                p.append(valu("v_fmac_f32", (V2, V2b)[i & 1], Yr[i], Yr[i], rmw=True))
            p.append(valu("v_add_f32", V2, V2, V2b))
            a_, b_ = [], []
            xsum(a_, M, T1); xsum(b_, V2, V2b)
            for x, y in zip(a_, b_): p += [x, y]
            Q8 = DO + 12
            p += [dsw("ds_write_b32", v(V_RED), M), dsw("ds_write_b32", v(V_RED), V2, 128, tag="red"), wait(lgkm=["red"]), barrier(),
                  dsr("ds_read_b128", v(Q4, 4), v(V_REDR)), dsr("ds_read_b128", v(Q8, 4), v(V_REDR), 128),
                  valu("v_add_f32", v(Q4), v(Q4), v(Q4 + 1)), valu("v_add_f32", v(Q4 + 2), v(Q4 + 2), v(Q4 + 3)),
                  valu("v_add_f32", M, v(Q4), v(Q4 + 2)), valu("v_mul_f32", M, f32(1.0 / D), M)]
            for y in Yr: p.append(valu("v_sub_f32", y, y, M))
        for e in range(9):
            p.append(valu("v_cvt_pk_bf16_f32", v(DO + e), Yr[2 * e], Yr[2 * e + 1]))
        for g in range(2):
            d = DO + 4 * g
            p += [swap("v_permlane32_swap_b32", v(d), v(d + 2)), swap("v_permlane32_swap_b32", v(d + 1), v(d + 3))]
        for g in range(2):
            d = DO + 4 * g
            p += [swap("v_permlane16_swap_b32", v(d), v(d + 1)), swap("v_permlane16_swap_b32", v(d + 2), v(d + 3))]
        if last:
            for g in range(2):
                p += [bstore("buffer_store_dwordx2", v(DO + 4 * g, 2), v(V_RO), s(S_XA, 4), off=512 * g, flags=self.of),
                      bstore("buffer_store_dwordx2", v(DO + 4 * g + 2, 2), v(V_RO), s(S_XA, 4), off=512 * g + 32, flags=self.of)]
            p.append(bstore("buffer_store_dword", v(DO + 8), v(V_RO8), s(S_XA, 4), off=1024, flags=self.of))
            return
        p += [salu("s_mov_b32", s(S_OFF), 8192), salu("s_mov_b32", s(S_OFF2), 16384),
              bstore("buffer_store_dwordx4", v(DO, 4), v(V_XO4), s(S_XA, 4), flags="sc1"),
              bstore("buffer_store_dwordx4", v(DO + 4, 4), v(V_XO4), s(S_XA, 4), s(S_OFF), flags="sc1"),
              bstore("buffer_store_dword", v(DO + 8), v(V_X8), s(S_XA, 4), s(S_OFF2), flags="sc1")]
        p += [valu("v_add_f32", v(Q8), v(Q8), v(Q8 + 1)), valu("v_add_f32", v(Q8 + 2), v(Q8 + 2), v(Q8 + 3)),
              valu("v_add_f32", V2, v(Q8), v(Q8 + 2)), valu("v_mul_f32", V2, f32(1.0 / D), V2),
              valu("v_fma_f32", V2, "-" + M, M, V2), valu("v_max_f32", V2, 0, V2), valu("v_add_f32", T1, f32(1e-5), V2), valu("v_rsq_f32", T1, T1),
              valu("v_add_f32", M, M, v(V_MU)),
              valu("v_and_b32", V2b, 8, "v0"), vcmp("v_cmp_eq_u32", "vcc", 0, V2b), cnd(M, M, T1),
              bstore("buffer_store_dword", M, v(V_STA), s(S_ST, 4), flags="sc1")]
```

```python
from asm import *
from layout import *

_n = [0]
SPIN_MAX = 1 << 16


def uid(t):
    _n[0] += 1
    return f"L_{t}_{_n[0]}"


def untracked(q):
    return [i if i.kind == "label" else raw(i.text, "branch" if i.kind == "branch" else "raw") for i in finalize(q)]


def setup(p):
    p += [salu("s_lshl_b32", "s36", s(G_R), 11), salu("s_lshl_b32", "s37", s(G_C), 3), salu("s_add_u32", "s37", "s37", "s36"),
          valu("v_and_b32", v(GV_T), 1, "v0"), valu("v_lshlrev_b32", v(GV_T), 2, v(GV_T)),
          valu("v_bfe_u32", v(GV_POLL), "v0", 1, 4), valu("v_lshl_add_u32", v(GV_POST), v(GV_POLL), 7, v(GV_T)),
          valu("v_add_u32", v(GV_POST), "s37", v(GV_POST)),
          vcmp("v_cmp_eq_u32", "vcc", s(G_C), v(GV_POLL)), valu("v_lshl_add_u32", v(GV_POLL), v(GV_POLL), 3, v(GV_T)),
          valu("v_xor_b32", v(GV_T), 8, v(GV_POLL)), cnd(v(GV_POLL), v(GV_POLL), v(GV_T)),
          salu("s_lshl_b32", "s37", s(G_C), 7), salu("s_add_u32", "s37", "s37", "s36"), valu("v_add_u32", v(GV_POLL), "s37", v(GV_POLL)),
          valu("v_mov_b32", v(GV_T), OOB), vcmp("v_cmp_gt_u32", "vcc", 32, "v0"), cnd(v(GV_POST), v(GV_T), v(GV_POST))]


def halo_post_addr(dst, t):
    return [valu("v_bfe_u32", t, "v0", 1, 4), valu("v_lshlrev_b32", t, 7, t), valu("v_and_b32", dst, 4, v(GV_POLL)), valu("v_add_u32", t, t, dst),
            salu("s_lshl_b32", "s36", s(G_R), 11), salu("s_lshl_b32", "s37", s(G_C), 3), salu("s_add_u32", "s36", "s36", "s37"),
            salu("s_add_u32", "s36", "s36", (F_A2 - F_A) * FL_PH + 2048 - 14 * 8),
            scmp("s_cmp_lt_u32", s(G_C), 14), salu("s_cselect_b32", "s36", OOB, "s36"),
            scmp("s_cmp_eq_u32", s(G_R), 15), salu("s_cselect_b32", "s36", OOB, "s36"),
            valu("v_add_u32", t, "s36", t), valu("v_lshrrev_b32", dst, 5, "v0"), vcmp("v_cmp_eq_u32", "vcc", 1, dst), cnd(dst, v(GV_POST), t)]


def flag_srd(p):
    srd_off(p, G_FL, s(G_LB), s(G_LB + 1), L_FL, LSTRIDE + FL_BYTES)


def post(phase, soff_reg, nxt=False, addr=None):
    st = bstore("buffer_store_dword", v(GV_TAG), addr or v(GV_POST), s(G_FL, 4), soff_reg, flags="sc1")
    return [salu("s_mov_b32", soff_reg, FL_PH * phase + (LSTRIDE if nxt else 0)), st]


def poll_issue(phase, soff_reg, addr=None, dst=None):
    ld = bload("buffer_load_dword", dst or v(GV_T), addr or v(GV_POLL), s(G_FL, 4), soff_reg, flags="sc1")
    ld.glue = True
    return [salu("s_mov_b32", soff_reg, FL_PH * phase), ld]


def spin(tail, cmp_text, load_text, pre=()):
    sp, back = uid("sp"), uid("bk")
    tail += [label(sp), raw(f"s_mov_b32 {s(G_SPIN)}, 0")] + [raw(t) for t in pre] + [label(sp + "_l"), raw(load_text),
             raw(f"s_add_u32 {s(G_SPIN)}, {s(G_SPIN)}, 1"), raw(f"s_cmp_gt_u32 {s(G_SPIN)}, {SPIN_MAX}"), raw(f"s_cbranch_scc1 {back}"),
             raw("s_waitcnt vmcnt(0)"), raw(cmp_text), raw(f"s_cbranch_vccnz {sp}_l"), raw(f"s_branch {back}")]
    return [raw(f"s_cbranch_vccnz {sp}", "branch"), label(back)]


def poll_check(phase, soff_reg, tail, addr=None, dst=None):
    dst, ad = dst or v(GV_T), addr or v(GV_POLL)
    c = vcmp("v_cmp_ne_u32", "vcc", v(GV_TAG), dst)
    return [c] + spin(tail, c.text, f"buffer_load_dword {dst}, {ad}, {s(G_FL, 4)}, {soff_reg} offen sc1",
                      [f"s_mov_b32 {soff_reg}, {FL_PH * phase}"])


def poll(phase, soff_reg, tail, addr=None):
    return poll_issue(phase, soff_reg, addr) + poll_check(phase, soff_reg, tail, addr)


def tag_publish(p, SD, va):
    skip = uid("tg")
    q = [Ins("s_memrealtime s[36:37]", "smem", wr="s[36:37]"), wait(lgkm_all=True),
         salu("s_or_b32", "s36", "s36", 1), salu("s_or_b32", "s37", "s37", "0x80000000"),
         valu("v_mov_b32", "v12", "s36"), valu("v_mov_b32", "v13", "s37"),
         vcmp("v_cmp_eq_u32", "vcc", 0, va), cnd("v12", "v13", "v12"),
         valu("v_lshlrev_b32", "v13", 2, "v0"),
         bstore("buffer_store_dword", "v12", "v13", s(SD, 4), flags="sc1")]
    p += [scmp("s_cmp_lg_u32", "s2", 0), raw(f"s_cbranch_scc1 {skip}", "branch")] + untracked(q) + [label(skip)]


def tag_fetch(p, SD, va, tail):
    c = vcmp("v_cmp_eq_u32", "vcc", 0, v(GV_TAG))
    ld = bload("buffer_load_dword", v(GV_TAG), va, s(SD, 4), flags="sc1")
    return [ld], [c] + spin(tail, c.text, ld.text)


def clear_own(p, t, z):
    first = (1 << F_A) | (1 << F_A2) | (1 << F_W) | (1 << F_X)
    p += [valu("v_lshrrev_b32", v(z + 1), 3, "v0"), valu("v_and_b32", v(z), 15, v(z + 1)), valu("v_lshlrev_b32", v(z), 15, v(z)),
          valu("v_lshrrev_b32", t, 4, v(z + 1)), salu("s_mov_b32", "s36", LSTRIDE), valu("v_mul_lo_u32", t, t, "s36"), valu("v_add_u32", t, t, v(z)),
          valu("v_and_b32", v(z), 7, "v0"), valu("v_lshl_add_u32", t, v(z), 4, t),
          valu("v_mov_b32", v(z), first), valu("v_lshrrev_b32", v(z), v(z + 1), v(z)), valu("v_and_b32", v(z), 1, v(z)),
          vcmp("v_cmp_eq_u32", "vcc", 1, v(z)), valu("v_mov_b32", v(z), OOB), cnd(v(z + 4), v(z), t), cnd(t, t, v(z)),
          salu("s_lshl_b32", "s36", s(G_R), 11), salu("s_lshl_b32", "s37", s(G_C), 7), salu("s_add_u32", "s36", "s36", "s37"),
          bload("buffer_load_dword", v(z + 4), v(z + 4), s(G_FL, 4), "s36", flags="sc1")]
    p += [valu("v_mov_b32", v(z + i), 0) for i in range(4)]
    p.append(bstore("buffer_store_dwordx4", v(z, 4), t, s(G_FL, 4), "s36", flags="sc1"))
```

```python
import sys, os
sys.path.insert(0, os.path.dirname(os.path.abspath(__file__)))
from asm import *
from layout import *
import rows, a1, a2, b1, sync

NAME = "interleave_layers__sliding_local_dilated__glu_gated_bilinear__prompt"
out = sys.argv[1]
kw = dict(x.split("=") for x in sys.argv[2:])
I = lambda k, d: int(kw.get(k, d))
TUP = lambda k, d: tuple(int(x) for x in kw.get(k, d).split(","))
nc = I("nc", 4)
stamps = I("stamps", 0)
verbose = I("v", 0)
warm = I("warm", 1)
nstamp = [0]


def T(p):
    if not stamps: return
    k = nstamp[0]; nstamp[0] += 1
    assert k < 32
    p += [Ins(("s_memrealtime" if stamps == 2 else "s_memtime") + " s[42:43]", "smem", wr="s[42:43]"), wait(lgkm_all=True),
          raw(f"s_lshl_b32 s43, s{G_LAYER}, 5"), raw(f"s_or_b32 m0, s43, {k}"), raw("s_nop 0"),
          raw("v_writelane_b32 v95, s42, m0")]


def main_kernel():
    name = NAME + "_kernel"
    tail = []
    wa = TUP("wa", "22,34,44,52,68,76")
    w0, w1, w2 = TUP("w", "1,1,1")
    B = b1.B1(nb=I("nb", 4), nb0=I("nb0", 2), nb2=I("nb2", 3), lau=I("lau", 9), pro=I("pro", 3), npre=TUP("npre", "18,0"),
              lags=TUP("lags", "8,4,5,6"), wqd=TUP("wqd", "51,51,99,99,99,99,99,99"), verbose=verbose, warm=warm, nc=nc, exp=I("exp", 0),
              hl=TUP("hl", "4,2,3"), lau2=I("lau2", 20), sp=I("sp", 12), lp=I("lp", 12), wql=I("wql", 12), k3=TUP("k3", "100,112"), hla=I("hla", 22), hp=I("hp", 2), of=kw.get("of", "").replace("+", " "), dg=I("dg", 6), early=I("early", 16),
              warm_at=({l: n for l, n in ((1, 14), (2, wa[0]), (4, wa[1]), (3, wa[2])) if l >= w2}, wa[3:]))
    p = [scmp("s_cmp_ge_u32", "s2", 256), raw("s_cbranch_scc1 L_main_end", "branch"),
         sload(44, 4, K_X), sload(48, 2, K_WO), sload(G_WS, 2, K_WS), sload(G_WG, 4, K_WG), sload(G_WD, 2, K_WD), sload(76, 4, K_OUT)]
    if I("code", 1):
        p += [raw("s_getpc_b64 s[74:75]", "salu", wr=["s[74:75]"]), label("L_pc"),
              salu("s_lshr_b32", "s36", "s2", 3), salu("s_lshl_b32", "s36", "s36", 11),
              valu("v_and_b32", "v113", 15, "v0"), valu("v_lshl_add_u32", "v113", "v113", 7, "s36"),
              raw("v_min_u32 v113, L_code_end-L_pc-4, v113", "valu", rd=["v113"], wr=["v113"]),
              Ins("global_load_dword v114, v113, s[74:75]", "vld", rd=["v113", "s[74:75]"], wr=["v114"])]
    p += [valu("v_lshrrev_b32", "v1", 6, "v0"), salu("s_mov_b32", s(G_LAYER), 0), valu("v_readfirstlane_b32", s(G_W), "v1")]
    lg = nc.bit_length() - 1
    p += [salu("s_and_b32", "s36", "s2", 7), salu("s_lshr_b32", "s37", "s2", 3),
          salu("s_and_b32", s(G_C), "s36", 16 // nc - 1), salu("s_lshl_b32", s(G_C), s(G_C), lg),
          salu("s_and_b32", "s38", "s37", nc - 1), salu("s_add_u32", s(G_C), s(G_C), "s38"),
          salu("s_lshr_b32", s(G_R), "s36", 4 - lg), salu("s_lshl_b32", s(G_R), s(G_R), 5 - lg),
          salu("s_lshr_b32", "s38", "s37", lg), salu("s_add_u32", s(G_R), s(G_R), "s38"),
          valu("v_and_b32", "v112", 1, "v0"), valu("v_lshlrev_b32", "v112", 2, "v112")]
    later = rows.common(p)
    p.append(wait(lgkm_all=True))
    T(p)
    SD = 72
    early = []
    srd(early, SD, "s78", "s79", 8)
    sync.tag_publish(early, SD, "v112")
    early += [salu("s_mov_b32", s(G_OUT), "s76"), salu("s_mov_b32", s(G_OUT + 1), "s77"),
              salu("s_add_u32", s(G_LB), s(G_WS), WS_L0), salu("s_addc_u32", s(G_LB + 1), s(G_WS + 1), 0)]
    sync.flag_srd(early)
    sync.clear_own(early, "v113", 120)

    def wgu(line, sreg, dst, src, sg, su):
        return [i if i.kind != "vld" else bload("buffer_load_dword", dst, *[x.strip() for x in i.text.split(None, 1)[1].replace(" offen", "").split(",")[1:]])
                for i in B.warm_gu(line, sreg, src=src, sg=sg, su=su)]
    if warm:
        srd(early, 64, s(G_WG), s(G_WG + 1), D * F * 2); srd(early, 68, s(G_WU), s(G_WU + 1), D * F * 2)
        early += B.warm_setup(dst=116, T="v113", T3="v115")
        for line in range(w0): early += wgu(line, "s38", "v118", 116, 64, 68)
    rows.prep(p, later, early)
    t1, t2 = sync.tag_fetch(p, SD, "v112", tail)
    p += t1
    sync.setup(p)
    p += a1.wq_setup()
    p += sync.halo_post_addr("v5", "v6")
    p += [valu("v_bfe_u32", "v1", "v0", 1, 4), salu("s_lshl_b32", "s36", s(G_C), 7), salu("s_lshl_b32", "s37", s(G_R), 3),
          salu("s_add_u32", "s37", "s37", "s36"), valu("v_lshl_add_u32", "v2", "v1", 11, "s37"), valu("v_add_u32", "v2", "v2", "v112"),
          valu("v_xor_b32", "v3", 1, "v1"), vcmp("v_cmp_eq_u32", "vcc", s(G_R), "v1"), cnd("v1", "v1", "v3"),
          valu("v_and_b32", "v3", "0xffffff84", v(GV_POLL)), valu("v_lshl_add_u32", "v1", "v1", 3, "v3"),
          valu("v_and_b32", "v3", "0xffffff80", "v3"), valu("v_lshl_add_u32", "v3", "v0", 2, "v3"),
          valu("v_mov_b32", "v4", OOB), vcmp("v_cmp_gt_u32", "vcc", 32, "v0"), cnd("v2", "v4", "v2"), cnd("v3", "v4", "v3")]
    T(p)
    p += [wait(vm_all=True)] + t2 + [barrier()] + sync.post(F_W, "s36", addr="v2") + sync.post(F_A, "s36", addr="v5") + sync.post(F_X, "s36", addr="v3")
    T(p)
    p += sync.poll(F_W, "s36", tail, "v1")
    T(p)
    for rho in range(3):
        p += a1.wq_round(rho, "s38")
    pre = finalize(p, verbose=verbose)

    p = [label("L_layer")]
    late = a1.setup(p)
    allp = [valu("v_lshrrev_b32", "v27", 1, "v0"), valu("v_lshlrev_b32", "v27", 7, "v27"), valu("v_and_b32", "v28", 4, v(GV_POLL)),
            valu("v_add_u32", "v27", "v27", "v28"), valu("v_add_u32", "v28", 16384, "v27")]
    a_w = []
    if warm and w2 > w0:
        srd(late, 16, s(G_WG), s(G_WG + 1), D * F * 2); srd(late, 20, s(G_WU), s(G_WU + 1), D * F * 2)
        late += B.warm_setup(dst=252, T="v23", T3="v24")
        for line in range(w0, w1): a_w += wgu(line, "s39", "v254", 252, 16, 20)
    first = {7: allp + sync.poll_issue(F_X, "s37", "v27") + sync.poll_issue(F_X, "s37", "v28", "v26") +
                sync.poll_check(F_X, "s37", tail, "v27") + sync.poll_check(F_X, "s37", tail, "v28", "v26")}
    rest = a1.body(p, late, tail, la=I("a1la", 4), st_flags="sc1", wo_keep=I("wok", 0), T=T, HD=I("hd", 3), first=first, warm=a_w)
    p += [wait(vm_all=True), barrier()] + sync.post(F_O, "s36")
    T(p)
    p += rest
    p += a2.setup(p)
    shadow = []
    b1.setup(shadow)
    p += sync.poll(F_O, "s36", tail)
    T(p)
    if warm and w2 > w1:
        for line in range(w1, w2): shadow += wgu(line, "s39", "v254", 252, b1.S_WG, b1.S_WU)
    a2.body(p, shadow, B.prefetch(0), st_flags="sc1", ld_flags="sc1", T=T)
    T(p)
    p += [wait(vm_all=True), barrier()] + sync.post(F_B, "s36")
    T(p)
    p += sum(B.prefetch(1), [])
    p += sync.poll(F_B, "s36", tail)
    T(p)
    B.body(p, tail, T=T, stamps=TUP("st", "0,12,24,48,84,96,108,128,144"))
    p += [scmp("s_cmp_lg_u32", s(G_LAYER), 0), raw("s_cbranch_scc1 L_last", "branch")]
    body, state = finalize(p, verbose=verbose, keep=True)
    q = []
    B.finish(q, False)
    q += [wait(vm_all=True), barrier()] + sync.post(F_A, "s36", nxt=True, addr=v(b1.V_AP)) + B.wq_rest
    T(q)
    q += [salu("s_mov_b32", s(G_LAYER), 1), salu("s_add_u32", s(G_LB), s(G_LB), LSTRIDE), salu("s_addc_u32", s(G_LB + 1), s(G_LB + 1), 0)]
    sync.flag_srd(q)
    q.append(raw("s_branch L_layer", "branch"))
    r = []
    B.finish(r, True)
    if stamps:
        nstamp[0] -= 1
        r.append(wait(vm_all=True))
        T(r)
        r += [salu("s_add_u32", "s36", s(G_WS), WS_STAMP), salu("s_addc_u32", "s37", s(G_WS + 1), 0), salu("s_lshl_b32", "s38", "s2", 10),
              valu("v_lshl_add_u32", "v1", "v0", 2, "s38"), Ins("global_store_dword v1, v95, s[36:37]", "vst", rd=["v1", "v95", "s[36:37]"])]
    prog = pre + body + finalize(q, state=state) + [label("L_last")] + finalize(r, state=state) + [label("L_main_end"), raw("s_endpgm")] + tail + [label("L_code_end")]
    return name, kernel_header(name) + "\n" + text(prog), kernel_desc(name), b1.LDS_BYTES


name, code, desc, lds = main_kernel()
head = open(os.path.join(os.path.dirname(os.path.abspath(__file__)), "..", NAME + ".s.ref")).read().split("; Override")[0]
src = head + "; Generated by gen/build.py (hand-scheduled generator scripts in gen/).  One persistent workgroup per CU.\n"
src += f"; @launch grid=(256,1,1) block=(256,1,1) lds={lds}\n"
src += '.amdgcn_target "amdgcn-amd-amdhsa--gfx950"\n.text\n' + code + '\n.section .rodata,"a"\n.p2align 6\n' + desc + "\n"
open(out, "w").write(src)
if stamps: print("stamps per layer:", nstamp[0])
```

```python
import sys, os
sys.path.insert(0, os.path.dirname(os.path.abspath(__file__)))
from asm import *
from layout import *
import rows, a1, a2, b1, sync

NAME = "interleave_layers__sliding_local_dilated__glu_gated_bilinear__prompt"
out = sys.argv[1]
kw = dict(x.split("=") for x in sys.argv[2:])
I = lambda k, d: int(kw.get(k, d))
TUP = lambda k, d: tuple(int(x) for x in kw.get(k, d).split(","))
nc = I("nc", 4)
stamps = I("stamps", 0)
verbose = I("v", 0)
warm = I("warm", 1)
nstamp = [0]


def T(p):
    if not stamps: return
    k = nstamp[0]; nstamp[0] += 1
    assert k < 32
    p += [Ins(("s_memrealtime" if stamps == 2 else "s_memtime") + " s[42:43]", "smem", wr="s[42:43]"), wait(lgkm_all=True),
          raw(f"s_lshl_b32 s43, s{G_LAYER}, 5"), raw(f"s_or_b32 m0, s43, {k}"), raw("s_nop 0"),
          raw("v_writelane_b32 v95, s42, m0")]


def main_kernel():
    name = NAME + "_kernel"
    tail = []
    wa = TUP("wa", "22,34,44,52,68,76")
    w0, w1, w2 = TUP("w", "1,1,1")
    B = b1.B1(nb=I("nb", 4), nb0=I("nb0", 2), nb2=I("nb2", 3), lau=I("lau", 9), pro=I("pro", 3), npre=TUP("npre", "18,0"),
              lags=TUP("lags", "8,4,5,6"), wqd=TUP("wqd", "51,51,99,99,99,99,99,99"), verbose=verbose, warm=warm, nc=nc, exp=I("exp", 0),
              hl=TUP("hl", "4,2,3"), lau2=I("lau2", 20), sp=I("sp", 12), lp=I("lp", 12), wql=I("wql", 12), k3=TUP("k3", "100,112"), hla=I("hla", 22), hp=I("hp", 2), of=kw.get("of", "").replace("+", " "), dg=I("dg", 6), early=I("early", 16),
              warm_at=({l: n for l, n in ((1, 14), (2, wa[0]), (4, wa[1]), (3, wa[2])) if l >= w2}, wa[3:]))
    p = [scmp("s_cmp_ge_u32", "s2", 256), raw("s_cbranch_scc1 L_main_end", "branch"),
         sload(44, 4, K_X), sload(48, 2, K_WO), sload(G_WS, 2, K_WS), sload(G_WG, 4, K_WG), sload(G_WD, 2, K_WD), sload(76, 4, K_OUT)]
    if I("code", 1):
        p += [raw("s_getpc_b64 s[74:75]", "salu", wr=["s[74:75]"]), label("L_pc"),
              salu("s_lshr_b32", "s36", "s2", 3), salu("s_lshl_b32", "s36", "s36", 11),
              valu("v_and_b32", "v113", 15, "v0"), valu("v_lshl_add_u32", "v113", "v113", 7, "s36"),
              raw("v_min_u32 v113, L_code_end-L_pc-4, v113", "valu", rd=["v113"], wr=["v113"]),
              Ins("global_load_dword v114, v113, s[74:75]", "vld", rd=["v113", "s[74:75]"], wr=["v114"])]
    p += [valu("v_lshrrev_b32", "v1", 6, "v0"), salu("s_mov_b32", s(G_LAYER), 0), valu("v_readfirstlane_b32", s(G_W), "v1")]
    lg = nc.bit_length() - 1
    p += [salu("s_and_b32", "s36", "s2", 7), salu("s_lshr_b32", "s37", "s2", 3),
          salu("s_and_b32", s(G_C), "s36", 16 // nc - 1), salu("s_lshl_b32", s(G_C), s(G_C), lg),
          salu("s_and_b32", "s38", "s37", nc - 1), salu("s_add_u32", s(G_C), s(G_C), "s38"),
          salu("s_lshr_b32", s(G_R), "s36", 4 - lg), salu("s_lshl_b32", s(G_R), s(G_R), 5 - lg),
          salu("s_lshr_b32", "s38", "s37", lg), salu("s_add_u32", s(G_R), s(G_R), "s38"),
          valu("v_and_b32", "v112", 1, "v0"), valu("v_lshlrev_b32", "v112", 2, "v112")]
    later = rows.common(p)
    p.append(wait(lgkm_all=True))
    T(p)
    SD = 72
    early = []
    srd(early, SD, "s78", "s79", 8)
    sync.tag_publish(early, SD, "v112")
    early += [salu("s_mov_b32", s(G_OUT), "s76"), salu("s_mov_b32", s(G_OUT + 1), "s77"),
              salu("s_add_u32", s(G_LB), s(G_WS), WS_L0), salu("s_addc_u32", s(G_LB + 1), s(G_WS + 1), 0)]
    sync.flag_srd(early)
    sync.clear_own(early, "v113", 120)

    def wgu(line, sreg, dst, src, sg, su):
        return [i if i.kind != "vld" else bload("buffer_load_dword", dst, *[x.strip() for x in i.text.split(None, 1)[1].replace(" offen", "").split(",")[1:]])
                for i in B.warm_gu(line, sreg, src=src, sg=sg, su=su)]
    if warm:
        srd(early, 64, s(G_WG), s(G_WG + 1), D * F * 2); srd(early, 68, s(G_WU), s(G_WU + 1), D * F * 2)
        early += B.warm_setup(dst=116, T="v113", T3="v115")
        for line in range(w0): early += wgu(line, "s38", "v118", 116, 64, 68)
    rows.prep(p, later, early)
    t1, t2 = sync.tag_fetch(p, SD, "v112", tail)
    p += t1
    sync.setup(p)
    p += a1.wq_setup()
    p += sync.halo_post_addr("v5", "v6")
    p += [valu("v_bfe_u32", "v1", "v0", 1, 4), salu("s_lshl_b32", "s36", s(G_C), 7), salu("s_lshl_b32", "s37", s(G_R), 3),
          salu("s_add_u32", "s37", "s37", "s36"), valu("v_lshl_add_u32", "v2", "v1", 11, "s37"), valu("v_add_u32", "v2", "v2", "v112"),
          valu("v_xor_b32", "v3", 1, "v1"), vcmp("v_cmp_eq_u32", "vcc", s(G_R), "v1"), cnd("v1", "v1", "v3"),
          valu("v_and_b32", "v3", "0xffffff84", v(GV_POLL)), valu("v_lshl_add_u32", "v1", "v1", 3, "v3"),
          valu("v_and_b32", "v3", "0xffffff80", "v3"), valu("v_lshl_add_u32", "v3", "v0", 2, "v3"),
          valu("v_mov_b32", "v4", OOB), vcmp("v_cmp_gt_u32", "vcc", 32, "v0"), cnd("v2", "v4", "v2"), cnd("v3", "v4", "v3")]
    T(p)
    p += [wait(vm_all=True)] + t2 + [barrier()] + sync.post(F_W, "s36", addr="v2") + sync.post(F_A, "s36", addr="v5") + sync.post(F_X, "s36", addr="v3")
    T(p)
    p += sync.poll(F_W, "s36", tail, "v1")
    T(p)
    for rho in range(3):
        p += a1.wq_round(rho, "s38")
    pre = finalize(p, verbose=verbose)

    p = [label("L_layer")]
    late = a1.setup(p)
    allp = [valu("v_lshrrev_b32", "v27", 1, "v0"), valu("v_lshlrev_b32", "v27", 7, "v27"), valu("v_and_b32", "v28", 4, v(GV_POLL)),
            valu("v_add_u32", "v27", "v27", "v28"), valu("v_add_u32", "v28", 16384, "v27")]
    a_w = []
    if warm and w2 > w0:
        srd(late, 16, s(G_WG), s(G_WG + 1), D * F * 2); srd(late, 20, s(G_WU), s(G_WU + 1), D * F * 2)
        late += B.warm_setup(dst=252, T="v23", T3="v24")
        for line in range(w0, w1): a_w += wgu(line, "s39", "v254", 252, 16, 20)
    first = {7: allp + sync.poll_issue(F_X, "s37", "v27") + sync.poll_issue(F_X, "s37", "v28", "v26") +
                sync.poll_check(F_X, "s37", tail, "v27") + sync.poll_check(F_X, "s37", tail, "v28", "v26")}
    rest = a1.body(p, late, tail, la=I("a1la", 4), st_flags="sc1", wo_keep=I("wok", 0), T=T, HD=I("hd", 3), first=first, warm=a_w)
    p += [wait(vm_all=True), barrier()] + sync.post(F_O, "s36")
    T(p)
    p += rest
    p += a2.setup(p)
    shadow = []
    b1.setup(shadow)
    p += sync.poll(F_O, "s36", tail)
    T(p)
    if warm and w2 > w1:
        for line in range(w1, w2): shadow += wgu(line, "s39", "v254", 252, b1.S_WG, b1.S_WU)
    a2.body(p, shadow, B.prefetch(0), st_flags="sc1", ld_flags="sc1", T=T)
    T(p)
    p += [wait(vm_all=True), barrier()] + sync.post(F_B, "s36")
    T(p)
    p += sum(B.prefetch(1), [])
    p += sync.poll(F_B, "s36", tail)
    T(p)
    B.body(p, tail, T=T, stamps=TUP("st", "0,12,24,48,84,96,108,128,144"))
    p += [scmp("s_cmp_lg_u32", s(G_LAYER), 0), raw("s_cbranch_scc1 L_last", "branch")]
    body, state = finalize(p, verbose=verbose, keep=True)
    q = []
    B.finish(q, False)
    q += [wait(vm_all=True), barrier()] + sync.post(F_A, "s36", nxt=True, addr=v(b1.V_AP)) + B.wq_rest
    T(q)
    q += [salu("s_mov_b32", s(G_LAYER), 1), salu("s_add_u32", s(G_LB), s(G_LB), LSTRIDE), salu("s_addc_u32", s(G_LB + 1), s(G_LB + 1), 0)]
    sync.flag_srd(q)
    q.append(raw("s_branch L_layer", "branch"))
    r = []
    B.finish(r, True)
    if stamps:
        nstamp[0] -= 1
        r.append(wait(vm_all=True))
        T(r)
        r += [salu("s_add_u32", "s36", s(G_WS), WS_STAMP), salu("s_addc_u32", "s37", s(G_WS + 1), 0), salu("s_lshl_b32", "s38", "s2", 10),
              valu("v_lshl_add_u32", "v1", "v0", 2, "s38"), Ins("global_store_dword v1, v95, s[36:37]", "vst", rd=["v1", "v95", "s[36:37]"])]
    if I("dbg", 0):
        pre = finalize([scmp("s_cmp_ge_u32", "s2", 256), raw("s_cbranch_scc1 L_main_end", "branch"), Ins("s_memtime s[40:41]", "smem", wr="s[40:41]"), wait(lgkm_all=True),
                        valu("v_mov_b32", "v95", "s40")]) + pre
        r += [wait(vm_all=True), Ins("s_memrealtime s[40:41]", "smem", wr="s[40:41]"), Ins("s_memtime s[42:43]", "smem", wr="s[42:43]"), sload(36, 2, K_DBG), wait(lgkm_all=True),
              valu("v_sub_u32", "v4", "s40", v(GV_TAG)), valu("v_sub_u32", "v5", "s42", "v95"), valu("v_mov_b32", "v1", 8),
              scmp("s_cmp_lg_u32", "s2", 0), raw("s_cbranch_scc1 L_main_end", "branch"), raw("v_cmp_eq_u32 vcc, 0, v0"), raw("s_and_saveexec_b64 s[38:39], vcc"), raw("s_cbranch_execz L_main_end", "branch"),
              Ins("global_store_dwordx2 v1, v[4:5], s[36:37]", "vst", rd=["v1", "v[4:5]", "s[36:37]"])]
    prog = pre + body + finalize(q, state=state) + [label("L_last")] + finalize(r, state=state) + [label("L_main_end"), raw("s_endpgm")] + tail + [label("L_code_end")]
    return name, kernel_header(name) + "\n" + text(prog), kernel_desc(name), b1.LDS_BYTES


name, code, desc, lds = main_kernel()
head = open(os.path.join(os.path.dirname(os.path.abspath(__file__)), "..", NAME + ".s.ref")).read().split("; Override")[0]
src = head + "; Generated by gen/build.py (hand-scheduled generator scripts in gen/).  One persistent workgroup per CU.\n"
src += f"; @launch grid=(256,1,1) block=(256,1,1) lds={lds}\n"
src += '.amdgcn_target "amdgcn-amd-amdhsa--gfx950"\n.text\n' + code + '\n.section .rodata,"a"\n.p2align 6\n' + desc + "\n"
open(out, "w").write(src)
if stamps: print("stamps per layer:", nstamp[0])
```

```python
import sys, os
sys.path.insert(0, os.path.dirname(os.path.abspath(__file__)))
from asm import *
from layout import *
import rows, a1, a2, b1, sync

NAME = "interleave_layers__sliding_local_dilated__glu_gated_bilinear__prompt"
out = sys.argv[1]
kw = dict(x.split("=") for x in sys.argv[2:])
I = lambda k, d: int(kw.get(k, d))
TUP = lambda k, d: tuple(int(x) for x in kw.get(k, d).split(","))
nc = I("nc", 4)
stamps = I("stamps", 0)
verbose = I("v", 0)
warm = I("warm", 1)
nstamp = [0]


def T(p):
    if not stamps: return
    k = nstamp[0]; nstamp[0] += 1
    assert k < 32
    p += [Ins(("s_memrealtime" if stamps == 2 else "s_memtime") + " s[42:43]", "smem", wr="s[42:43]"), wait(lgkm_all=True),
          raw(f"s_lshl_b32 s43, s{G_LAYER}, 5"), raw(f"s_or_b32 m0, s43, {k}"), raw("s_nop 0"),
          raw("v_writelane_b32 v95, s42, m0")]


def main_kernel():
    name = NAME + "_kernel"
    tail = []
    wa = TUP("wa", "22,34,44,52,68,76")
    w0, w1, w2 = TUP("w", "1,1,1")
    B = b1.B1(nb=I("nb", 4), nb0=I("nb0", 2), nb2=I("nb2", 3), lau=I("lau", 9), pro=I("pro", 3), npre=TUP("npre", "18,0"),
              lags=TUP("lags", "8,4,5,6"), wqd=TUP("wqd", "51,51,99,99,99,99,99,99"), verbose=verbose, warm=warm, nc=nc, exp=I("exp", 0),
              hl=TUP("hl", "4,2,3"), lau2=I("lau2", 20), sp=I("sp", 12), lp=I("lp", 12), wql=I("wql", 12), k3=TUP("k3", "100,112"), hla=I("hla", 22), hp=I("hp", 2), of=kw.get("of", "").replace("+", " "), dg=I("dg", 6), early=I("early", 16),
              warm_at=({l: n for l, n in ((1, 14), (2, wa[0]), (4, wa[1]), (3, wa[2])) if l >= w2}, wa[3:]))
    p = [scmp("s_cmp_ge_u32", "s2", 256), raw("s_cbranch_scc1 L_main_end", "branch"),
         sload(44, 4, K_X), sload(48, 2, K_WO), sload(G_WS, 2, K_WS), sload(G_WG, 4, K_WG), sload(G_WD, 2, K_WD), sload(76, 4, K_OUT)]
    if I("code", 1):
        p += [raw("s_getpc_b64 s[74:75]", "salu", wr=["s[74:75]"]), label("L_pc"),
              salu("s_lshr_b32", "s36", "s2", 3), salu("s_lshl_b32", "s36", "s36", 11),
              valu("v_and_b32", "v113", 15, "v0"), valu("v_lshl_add_u32", "v113", "v113", 7, "s36"),
              raw("v_min_u32 v113, L_code_end-L_pc-4, v113", "valu", rd=["v113"], wr=["v113"]),
              Ins("global_load_dword v114, v113, s[74:75]", "vld", rd=["v113", "s[74:75]"], wr=["v114"])]
    p += [valu("v_lshrrev_b32", "v1", 6, "v0"), salu("s_mov_b32", s(G_LAYER), 0), valu("v_readfirstlane_b32", s(G_W), "v1")]
    lg = nc.bit_length() - 1
    p += [salu("s_and_b32", "s36", "s2", 7), salu("s_lshr_b32", "s37", "s2", 3),
          salu("s_and_b32", s(G_C), "s36", 16 // nc - 1), salu("s_lshl_b32", s(G_C), s(G_C), lg),
          salu("s_and_b32", "s38", "s37", nc - 1), salu("s_add_u32", s(G_C), s(G_C), "s38"),
          salu("s_lshr_b32", s(G_R), "s36", 4 - lg), salu("s_lshl_b32", s(G_R), s(G_R), 5 - lg),
          salu("s_lshr_b32", "s38", "s37", lg), salu("s_add_u32", s(G_R), s(G_R), "s38"),
          valu("v_and_b32", "v112", 1, "v0"), valu("v_lshlrev_b32", "v112", 2, "v112")]
    later = rows.common(p)
    p.append(wait(lgkm_all=True))
    T(p)
    SD = 72
    early = []
    srd(early, SD, "s78", "s79", 8)
    sync.tag_publish(early, SD, "v112")
    early += [salu("s_mov_b32", s(G_OUT), "s76"), salu("s_mov_b32", s(G_OUT + 1), "s77"),
              salu("s_add_u32", s(G_LB), s(G_WS), WS_L0), salu("s_addc_u32", s(G_LB + 1), s(G_WS + 1), 0)]
    sync.flag_srd(early)
    sync.clear_own(early, "v113", 120)

    def wgu(line, sreg, dst, src, sg, su):
        return [i if i.kind != "vld" else bload("buffer_load_dword", dst, *[x.strip() for x in i.text.split(None, 1)[1].replace(" offen", "").split(",")[1:]])
                for i in B.warm_gu(line, sreg, src=src, sg=sg, su=su)]
    if warm:
        srd(early, 64, s(G_WG), s(G_WG + 1), D * F * 2); srd(early, 68, s(G_WU), s(G_WU + 1), D * F * 2)
        early += B.warm_setup(dst=116, T="v113", T3="v115")
        for line in range(w0): early += wgu(line, "s38", "v118", 116, 64, 68)
    rows.prep(p, later, early)
    t1, t2 = sync.tag_fetch(p, SD, "v112", tail)
    p += t1
    sync.setup(p)
    p += a1.wq_setup()
    p += sync.halo_post_addr("v5", "v6")
    p += [valu("v_bfe_u32", "v1", "v0", 1, 4), salu("s_lshl_b32", "s36", s(G_C), 7), salu("s_lshl_b32", "s37", s(G_R), 3),
          salu("s_add_u32", "s37", "s37", "s36"), valu("v_lshl_add_u32", "v2", "v1", 11, "s37"), valu("v_add_u32", "v2", "v2", "v112"),
          valu("v_xor_b32", "v3", 1, "v1"), vcmp("v_cmp_eq_u32", "vcc", s(G_R), "v1"), cnd("v1", "v1", "v3"),
          valu("v_and_b32", "v3", "0xffffff84", v(GV_POLL)), valu("v_lshl_add_u32", "v1", "v1", 3, "v3"),
          valu("v_and_b32", "v3", "0xffffff80", "v3"), valu("v_lshl_add_u32", "v3", "v0", 2, "v3"),
          valu("v_mov_b32", "v4", OOB), vcmp("v_cmp_gt_u32", "vcc", 32, "v0"), cnd("v2", "v4", "v2"), cnd("v3", "v4", "v3")]
    T(p)
    p += [wait(vm_all=True)] + t2 + [barrier()] + sync.post(F_W, "s36", addr="v2") + sync.post(F_A, "s36", addr="v5") + sync.post(F_X, "s36", addr="v3")
    T(p)
    p += sync.poll(F_W, "s36", tail, "v1")
    T(p)
    for rho in range(3):
        p += a1.wq_round(rho, "s38")
    pre = finalize(p, verbose=verbose)

    p = [label("L_layer")]
    late = a1.setup(p)
    allp = [valu("v_lshrrev_b32", "v27", 1, "v0"), valu("v_lshlrev_b32", "v27", 7, "v27"), valu("v_and_b32", "v28", 4, v(GV_POLL)),
            valu("v_add_u32", "v27", "v27", "v28"), valu("v_add_u32", "v28", 16384, "v27")]
    a_w = []
    if warm and w2 > w0:
        srd(late, 16, s(G_WG), s(G_WG + 1), D * F * 2); srd(late, 20, s(G_WU), s(G_WU + 1), D * F * 2)
        late += B.warm_setup(dst=252, T="v23", T3="v24")
        for line in range(w0, w1): a_w += wgu(line, "s39", "v254", 252, 16, 20)
    first = {7: allp + sync.poll_issue(F_X, "s37", "v27") + sync.poll_issue(F_X, "s37", "v28", "v26") +
                sync.poll_check(F_X, "s37", tail, "v27") + sync.poll_check(F_X, "s37", tail, "v28", "v26")}
    rest = a1.body(p, late, tail, la=I("a1la", 4), st_flags="sc1", wo_keep=I("wok", 0), T=T, HD=I("hd", 3), first=first, warm=a_w)
    p += [wait(vm_all=True), barrier()] + sync.post(F_O, "s36")
    T(p)
    p += rest
    p += a2.setup(p)
    shadow = []
    b1.setup(shadow)
    p += sync.poll(F_O, "s36", tail)
    T(p)
    if warm and w2 > w1:
        for line in range(w1, w2): shadow += wgu(line, "s39", "v254", 252, b1.S_WG, b1.S_WU)
    a2.body(p, shadow, B.prefetch(0), st_flags="sc1", ld_flags="sc1", T=T)
    T(p)
    p += [wait(vm_all=True), barrier()] + sync.post(F_B, "s36")
    T(p)
    p += sum(B.prefetch(1), [])
    p += sync.poll(F_B, "s36", tail)
    T(p)
    B.body(p, tail, T=T, stamps=TUP("st", "0,12,24,48,84,96,108,128,144"))
    p += [scmp("s_cmp_lg_u32", s(G_LAYER), 0), raw("s_cbranch_scc1 L_last", "branch")]
    body, state = finalize(p, verbose=verbose, keep=True)
    q = []
    B.finish(q, False)
    q += [wait(vm_all=True), barrier()] + sync.post(F_A, "s36", nxt=True, addr=v(b1.V_AP)) + B.wq_rest
    T(q)
    q += [salu("s_mov_b32", s(G_LAYER), 1), salu("s_add_u32", s(G_LB), s(G_LB), LSTRIDE), salu("s_addc_u32", s(G_LB + 1), s(G_LB + 1), 0)]
    sync.flag_srd(q)
    q.append(raw("s_branch L_layer", "branch"))
    r = []
    B.finish(r, True)
    if stamps:
        nstamp[0] -= 1
        r.append(wait(vm_all=True))
        T(r)
        r += [salu("s_add_u32", "s36", s(G_WS), WS_STAMP), salu("s_addc_u32", "s37", s(G_WS + 1), 0), salu("s_lshl_b32", "s38", "s2", 10),
              valu("v_lshl_add_u32", "v1", "v0", 2, "s38"), Ins("global_store_dword v1, v95, s[36:37]", "vst", rd=["v1", "v95", "s[36:37]"])]
    if I("dbg", 0):
        pre = finalize([scmp("s_cmp_ge_u32", "s2", 256), raw("s_cbranch_scc1 L_main_end", "branch"), Ins("s_memtime s[40:41]", "smem", wr="s[40:41]"), wait(lgkm_all=True),
                        valu("v_mov_b32", "v95", "s40")]) + pre
        r += [wait(vm_all=True), Ins("s_memrealtime s[40:41]", "smem", wr="s[40:41]"), Ins("s_memtime s[42:43]", "smem", wr="s[42:43]"), sload(36, 2, K_DBG), wait(lgkm_all=True),
              valu("v_sub_u32", "v4", "s40", v(GV_TAG)), valu("v_sub_u32", "v5", "s42", "v95"), valu("v_mov_b32", "v1", 8),
              scmp("s_cmp_lg_u32", "s2", 0), raw("s_cbranch_scc1 L_main_end", "branch"), raw("v_cmp_eq_u32 vcc, 0, v0"), raw("s_and_saveexec_b64 s[38:39], vcc"), raw("s_cbranch_execz L_main_end", "branch"),
              Ins("global_store_dwordx2 v1, v[4:5], s[36:37]", "vst", rd=["v1", "v[4:5]", "s[36:37]"])]
    if I("hold", 0):
        r += [wait(vm_all=True), valu("v_readfirstlane_b32", "s38", v(GV_TAG)), label("L_hold"), raw("s_memrealtime s[40:41]"), raw("s_waitcnt lgkmcnt(0)"),
              raw("s_sub_u32 s40, s40, s38"), raw(f"s_cmp_lt_u32 s40, {I('hold', 0) * 100}"), raw("s_cbranch_scc1 L_hold")]
    if I("hold0", 0):
        pre = finalize([Ins("s_memrealtime s[40:41]", "smem", wr="s[40:41]"), scmp("s_cmp_ge_u32", "s2", 256), raw("s_cbranch_scc1 L_main_end", "branch"), wait(lgkm_all=True),
                        valu("v_mov_b32", "v95", "s40")]) + pre
        r += [wait(vm_all=True), valu("v_readfirstlane_b32", "s38", "v95"), label("L_hold"), raw("s_memrealtime s[40:41]"), raw("s_waitcnt lgkmcnt(0)"),
              raw("s_sub_u32 s40, s40, s38"), raw(f"s_cmp_lt_u32 s40, {I('hold0', 0) * 100}"), raw("s_cbranch_scc1 L_hold")]
    prog = pre + body + finalize(q, state=state) + [label("L_last")] + finalize(r, state=state) + [label("L_main_end"), raw("s_endpgm")] + tail + [label("L_code_end")]
    return name, kernel_header(name) + "\n" + text(prog), kernel_desc(name), b1.LDS_BYTES


name, code, desc, lds = main_kernel()
head = open(os.path.join(os.path.dirname(os.path.abspath(__file__)), "..", NAME + ".s.ref")).read().split("; Override")[0]
src = head + "; Generated by gen/build.py (hand-scheduled generator scripts in gen/).  One persistent workgroup per CU.\n"
src += f"; @launch grid=(256,1,1) block=(256,1,1) lds={lds}\n"
src += '.amdgcn_target "amdgcn-amd-amdhsa--gfx950"\n.text\n' + code + '\n.section .rodata,"a"\n.p2align 6\n' + desc + "\n"
open(out, "w").write(src)
if stamps: print("stamps per layer:", nstamp[0])
```

```python
import sys, os
sys.path.insert(0, os.path.dirname(os.path.abspath(__file__)))
from asm import *
from layout import *
import rows, a1, a2, b1, sync

NAME = "interleave_layers__sliding_local_dilated__glu_gated_bilinear__prompt"
out = sys.argv[1]
kw = dict(x.split("=") for x in sys.argv[2:])
I = lambda k, d: int(kw.get(k, d))
TUP = lambda k, d: tuple(int(x) for x in kw.get(k, d).split(","))
nc = I("nc", 4)
stamps = I("stamps", 0)
verbose = I("v", 0)
warm = I("warm", 1)
nstamp = [0]


def T(p):
    if not stamps: return
    k = nstamp[0]; nstamp[0] += 1
    assert k < 32
    p += [Ins(("s_memrealtime" if stamps == 2 else "s_memtime") + " s[42:43]", "smem", wr="s[42:43]"), wait(lgkm_all=True),
          raw(f"s_lshl_b32 s43, s{G_LAYER}, 5"), raw(f"s_or_b32 m0, s43, {k}"), raw("s_nop 0"),
          raw("v_writelane_b32 v95, s42, m0")]


def main_kernel():
    name = NAME + "_kernel"
    tail = []
    wa = TUP("wa", "22,34,44,52,68,76")
    w0, w1, w2 = TUP("w", "1,1,1")
    B = b1.B1(nb=I("nb", 4), nb0=I("nb0", 2), nb2=I("nb2", 3), lau=I("lau", 9), pro=I("pro", 3), npre=TUP("npre", "18,0"),
              lags=TUP("lags", "8,4,5,6"), wqd=TUP("wqd", "51,51,99,99,99,99,99,99"), verbose=verbose, warm=warm, nc=nc, exp=I("exp", 0),
              hl=TUP("hl", "4,2,3"), lau2=I("lau2", 20), sp=I("sp", 12), lp=I("lp", 12), wql=I("wql", 12), k3=TUP("k3", "100,112"), hla=I("hla", 22), hp=I("hp", 2), of=kw.get("of", "").replace("+", " "), dg=I("dg", 6), early=I("early", 16),
              warm_at=({l: n for l, n in ((1, 14), (2, wa[0]), (4, wa[1]), (3, wa[2])) if l >= w2}, wa[3:]))
    p = [scmp("s_cmp_ge_u32", "s2", 256), raw("s_cbranch_scc1 L_main_end", "branch"),
         sload(44, 4, K_X), sload(48, 2, K_WO), sload(G_WS, 2, K_WS), sload(G_WG, 4, K_WG), sload(G_WD, 2, K_WD), sload(76, 4, K_OUT)]
    if I("code", 1):
        p += [raw("s_getpc_b64 s[74:75]", "salu", wr=["s[74:75]"]), label("L_pc"),
              salu("s_lshr_b32", "s36", "s2", 3), salu("s_lshl_b32", "s36", "s36", 11),
              valu("v_and_b32", "v113", 15, "v0"), valu("v_lshl_add_u32", "v113", "v113", 7, "s36"),
              raw("v_min_u32 v113, L_code_end-L_pc-4, v113", "valu", rd=["v113"], wr=["v113"]),
              Ins("global_load_dword v114, v113, s[74:75]", "vld", rd=["v113", "s[74:75]"], wr=["v114"])]
    p += [valu("v_lshrrev_b32", "v1", 6, "v0"), salu("s_mov_b32", s(G_LAYER), 0), valu("v_readfirstlane_b32", s(G_W), "v1")]
    lg = nc.bit_length() - 1
    p += [salu("s_and_b32", "s36", "s2", 7), salu("s_lshr_b32", "s37", "s2", 3),
          salu("s_and_b32", s(G_C), "s36", 16 // nc - 1), salu("s_lshl_b32", s(G_C), s(G_C), lg),
          salu("s_and_b32", "s38", "s37", nc - 1), salu("s_add_u32", s(G_C), s(G_C), "s38"),
          salu("s_lshr_b32", s(G_R), "s36", 4 - lg), salu("s_lshl_b32", s(G_R), s(G_R), 5 - lg),
          salu("s_lshr_b32", "s38", "s37", lg), salu("s_add_u32", s(G_R), s(G_R), "s38"),
          valu("v_and_b32", "v112", 1, "v0"), valu("v_lshlrev_b32", "v112", 2, "v112")]
    later = rows.common(p)
    p.append(wait(lgkm_all=True))
    T(p)
    SD = 72
    early = []
    srd(early, SD, "s78", "s79", 8)
    sync.tag_publish(early, SD, "v112")
    early += [salu("s_mov_b32", s(G_OUT), "s76"), salu("s_mov_b32", s(G_OUT + 1), "s77"),
              salu("s_add_u32", s(G_LB), s(G_WS), WS_L0), salu("s_addc_u32", s(G_LB + 1), s(G_WS + 1), 0)]
    sync.flag_srd(early)
    sync.clear_own(early, "v113", 120)

    def wgu(line, sreg, dst, src, sg, su):
        return [i if i.kind != "vld" else bload("buffer_load_dword", dst, *[x.strip() for x in i.text.split(None, 1)[1].replace(" offen", "").split(",")[1:]])
                for i in B.warm_gu(line, sreg, src=src, sg=sg, su=su)]
    first = []
    if warm:
        q = first if I("wf", 0) else early
        srd(q, 64, s(G_WG), s(G_WG + 1), D * F * 2); srd(q, 68, s(G_WU), s(G_WU + 1), D * F * 2)
        q += B.warm_setup(dst=116, T="v113", T3="v115")
        for line in range(w0): q += wgu(line, "s38", "v118", 116, 64, 68)
    if I("wf", 0) == 2:
        first += early; early = []
    rows.prep(p, later, early, first)
    t1, t2 = sync.tag_fetch(p, SD, "v112", tail)
    p += t1
    sync.setup(p)
    p += a1.wq_setup()
    p += sync.halo_post_addr("v5", "v6")
    p += [valu("v_bfe_u32", "v1", "v0", 1, 4), salu("s_lshl_b32", "s36", s(G_C), 7), salu("s_lshl_b32", "s37", s(G_R), 3),
          salu("s_add_u32", "s37", "s37", "s36"), valu("v_lshl_add_u32", "v2", "v1", 11, "s37"), valu("v_add_u32", "v2", "v2", "v112"),
          valu("v_xor_b32", "v3", 1, "v1"), vcmp("v_cmp_eq_u32", "vcc", s(G_R), "v1"), cnd("v1", "v1", "v3"),
          valu("v_and_b32", "v3", "0xffffff84", v(GV_POLL)), valu("v_lshl_add_u32", "v1", "v1", 3, "v3"),
          valu("v_and_b32", "v3", "0xffffff80", "v3"), valu("v_lshl_add_u32", "v3", "v0", 2, "v3"),
          valu("v_mov_b32", "v4", OOB), vcmp("v_cmp_gt_u32", "vcc", 32, "v0"), cnd("v2", "v4", "v2"), cnd("v3", "v4", "v3")]
    T(p)
    p += [wait(vm_all=True)] + t2 + [barrier()] + sync.post(F_W, "s36", addr="v2") + sync.post(F_A, "s36", addr="v5") + sync.post(F_X, "s36", addr="v3")
    T(p)
    p += sync.poll(F_W, "s36", tail, "v1")
    T(p)
    for rho in range(3):
        p += a1.wq_round(rho, "s38")
    pre = finalize(p, verbose=verbose)

    p = [label("L_layer")]
    late = a1.setup(p)
    allp = [valu("v_lshrrev_b32", "v27", 1, "v0"), valu("v_lshlrev_b32", "v27", 7, "v27"), valu("v_and_b32", "v28", 4, v(GV_POLL)),
            valu("v_add_u32", "v27", "v27", "v28"), valu("v_add_u32", "v28", 16384, "v27")]
    a_w = []
    if warm and w2 > w0:
        srd(late, 16, s(G_WG), s(G_WG + 1), D * F * 2); srd(late, 20, s(G_WU), s(G_WU + 1), D * F * 2)
        late += B.warm_setup(dst=252, T="v23", T3="v24")
        for line in range(w0, w1): a_w += wgu(line, "s39", "v254", 252, 16, 20)
    first = {7: allp + sync.poll_issue(F_X, "s37", "v27") + sync.poll_issue(F_X, "s37", "v28", "v26") +
                sync.poll_check(F_X, "s37", tail, "v27") + sync.poll_check(F_X, "s37", tail, "v28", "v26")}
    rest = a1.body(p, late, tail, la=I("a1la", 4), st_flags="sc1", wo_keep=I("wok", 0), T=T, HD=I("hd", 3), first=first, warm=a_w)
    p += [wait(vm_all=True), barrier()] + sync.post(F_O, "s36")
    T(p)
    p += rest
    p += a2.setup(p)
    shadow = []
    b1.setup(shadow)
    p += sync.poll(F_O, "s36", tail)
    T(p)
    if warm and w2 > w1:
        for line in range(w1, w2): shadow += wgu(line, "s39", "v254", 252, b1.S_WG, b1.S_WU)
    a2.body(p, shadow, B.prefetch(0), st_flags="sc1", ld_flags="sc1", T=T)
    T(p)
    p += [wait(vm_all=True), barrier()] + sync.post(F_B, "s36")
    T(p)
    p += sum(B.prefetch(1), [])
    p += sync.poll(F_B, "s36", tail)
    T(p)
    B.body(p, tail, T=T, stamps=TUP("st", "0,12,24,48,84,96,108,128,144"))
    p += [scmp("s_cmp_lg_u32", s(G_LAYER), 0), raw("s_cbranch_scc1 L_last", "branch")]
    body, state = finalize(p, verbose=verbose, keep=True)
    q = []
    B.finish(q, False)
    q += [wait(vm_all=True), barrier()] + sync.post(F_A, "s36", nxt=True, addr=v(b1.V_AP)) + B.wq_rest
    T(q)
    q += [salu("s_mov_b32", s(G_LAYER), 1), salu("s_add_u32", s(G_LB), s(G_LB), LSTRIDE), salu("s_addc_u32", s(G_LB + 1), s(G_LB + 1), 0)]
    sync.flag_srd(q)
    q.append(raw("s_branch L_layer", "branch"))
    r = []
    B.finish(r, True)
    if stamps:
        nstamp[0] -= 1
        r.append(wait(vm_all=True))
        T(r)
        r += [salu("s_add_u32", "s36", s(G_WS), WS_STAMP), salu("s_addc_u32", "s37", s(G_WS + 1), 0), salu("s_lshl_b32", "s38", "s2", 10),
              valu("v_lshl_add_u32", "v1", "v0", 2, "s38"), Ins("global_store_dword v1, v95, s[36:37]", "vst", rd=["v1", "v95", "s[36:37]"])]
    if I("dbg", 0):
        pre = finalize([scmp("s_cmp_ge_u32", "s2", 256), raw("s_cbranch_scc1 L_main_end", "branch"), Ins("s_memtime s[40:41]", "smem", wr="s[40:41]"), wait(lgkm_all=True),
                        valu("v_mov_b32", "v95", "s40")]) + pre
        r += [wait(vm_all=True), Ins("s_memrealtime s[40:41]", "smem", wr="s[40:41]"), Ins("s_memtime s[42:43]", "smem", wr="s[42:43]"), sload(36, 2, K_DBG), wait(lgkm_all=True),
              valu("v_sub_u32", "v4", "s40", v(GV_TAG)), valu("v_sub_u32", "v5", "s42", "v95"), valu("v_mov_b32", "v1", 8),
              scmp("s_cmp_lg_u32", "s2", 0), raw("s_cbranch_scc1 L_main_end", "branch"), raw("v_cmp_eq_u32 vcc, 0, v0"), raw("s_and_saveexec_b64 s[38:39], vcc"), raw("s_cbranch_execz L_main_end", "branch"),
              Ins("global_store_dwordx2 v1, v[4:5], s[36:37]", "vst", rd=["v1", "v[4:5]", "s[36:37]"])]
    if I("hold", 0):
        r += [wait(vm_all=True), valu("v_readfirstlane_b32", "s38", v(GV_TAG)), label("L_hold"), raw("s_memrealtime s[40:41]"), raw("s_waitcnt lgkmcnt(0)"),
              raw("s_sub_u32 s40, s40, s38"), raw(f"s_cmp_lt_u32 s40, {I('hold', 0) * 100}"), raw("s_cbranch_scc1 L_hold")]
    if I("hold0", 0):
        pre = finalize([Ins("s_memrealtime s[40:41]", "smem", wr="s[40:41]"), scmp("s_cmp_ge_u32", "s2", 256), raw("s_cbranch_scc1 L_main_end", "branch"), wait(lgkm_all=True),
                        valu("v_mov_b32", "v95", "s40")]) + pre
        r += [wait(vm_all=True), valu("v_readfirstlane_b32", "s38", "v95"), label("L_hold"), raw("s_memrealtime s[40:41]"), raw("s_waitcnt lgkmcnt(0)"),
              raw("s_sub_u32 s40, s40, s38"), raw(f"s_cmp_lt_u32 s40, {I('hold0', 0) * 100}"), raw("s_cbranch_scc1 L_hold")]
    if I("hold1", 0):
        r += [wait(vm_all=True), salu("s_add_u32", "s36", s(G_WS), WS_STAMP), salu("s_addc_u32", "s37", s(G_WS + 1), 0), valu("v_mov_b32", "v1", 0),
              Ins("global_load_dword v2, v1, s[36:37] sc1", "vld", rd=["v1"], wr=["v2"]), valu("v_readfirstlane_b32", "s38", "v2"),
              label("L_hold"), raw("s_memrealtime s[40:41]"), raw("s_waitcnt lgkmcnt(0)"),
              raw("s_sub_u32 s40, s40, s38"), raw(f"s_cmp_lt_u32 s40, {I('hold1', 0) * 100}"), raw("s_cbranch_scc1 L_hold")]
    prog = pre + body + finalize(q, state=state) + [label("L_last")] + finalize(r, state=state) + [label("L_main_end"), raw("s_endpgm")] + tail + [label("L_code_end")]
    return name, kernel_header(name) + "\n" + text(prog), kernel_desc(name), b1.LDS_BYTES


name, code, desc, lds = main_kernel()
head = open(os.path.join(os.path.dirname(os.path.abspath(__file__)), "..", NAME + ".s.ref")).read().split("; Override")[0]
src = head + "; Generated by gen/build.py (hand-scheduled generator scripts in gen/).  One persistent workgroup per CU.\n"
if I("hold1", 0) or I("tiny", 0):
    t = [Ins("s_memrealtime s[8:9]", "smem", wr="s[8:9]"), sload(4, 2, K_WS), scmp("s_cmp_lg_u32", "s2", 0), raw("s_cbranch_scc1 L_tiny_end", "branch"), wait(lgkm_all=True),
         salu("s_add_u32", "s4", "s4", WS_STAMP), salu("s_addc_u32", "s5", "s5", 0), valu("v_mov_b32", "v1", 0), valu("v_mov_b32", "v2", "s8"),
         Ins("global_store_dword v1, v2, s[4:5]", "vst", rd=["v1", "v2"]), label("L_tiny_end"), raw("s_endpgm")]
    code = kernel_header("tiny_kernel") + "\n" + text(finalize(t)) + "\n" + code
    desc = kernel_desc("tiny_kernel", vgpr=8, sgpr=16, accum=8) + "\n.p2align 6\n" + desc
    src += f"; @launch kernel=tiny_kernel grid=({I('tg', 1)},1,1) block=(64,1,1) lds=0\n; @launch kernel={name} grid=(256,1,1) block=(256,1,1) lds={lds}\n"
else:
    src += f"; @launch grid=(256,1,1) block=(256,1,1) lds={lds}\n"
src += '.amdgcn_target "amdgcn-amd-amdhsa--gfx950"\n.text\n' + code + '\n.section .rodata,"a"\n.p2align 6\n' + desc + "\n"
open(out, "w").write(src)
if stamps: print("stamps per layer:", nstamp[0])
```
